```python
import torch

def _softmax(x, axis=-1):
    return torch.softmax(x, dim=axis)
def _gelu(x):
    return torch.nn.functional.gelu(x, approximate="tanh")
def _silu(x):
    return torch.nn.functional.silu(x)
def _sigmoid(x):
    return torch.sigmoid(x)
def _layernorm(x, axis=-1, eps=1e-5):
    m = x.mean(dim=axis, keepdim=True)
    v = x.var(dim=axis, keepdim=True, unbiased=False)
    return (x - m) / torch.sqrt(v + eps)
def _scatter_add(tgt, idx, src, axis=0):
    return tgt.clone().index_add_(axis, idx, src)
def _segment_sum(src, seg, n):
    out = torch.zeros((n,) + src.shape[1:], dtype=src.dtype)
    return out.index_add_(0, seg, src)
def _pad(x, pw):
    flat = tuple(v for pair in reversed(pw) for v in pair)
    return torch.nn.functional.pad(x, flat)

kernel_name = 'parallel_sum__ssm_conv_s5__geglu_ffn__prompt'

def setup_inputs():

    _w = (lambda a: (lambda t: t.to(torch.bfloat16) if t.is_floating_point() else t)(torch.as_tensor(a)))
    def _A_setup():
        B, S, D = 1, 2048, 1024
        P = D
        Lambda_re = -0.5 * (lambda _x: torch.exp(torch.as_tensor(_x)))((lambda *s: torch.randn(*s, dtype=torch.bfloat16) * 0.8)(P))
        Lambda_im = (lambda *s: torch.randn(*s, dtype=torch.bfloat16) * 0.8)(P) * 1.0
        B_re = (lambda *s: torch.randn(*s, dtype=torch.bfloat16) * 1.6)(P, D) * (D ** -0.5)
        B_im = (lambda *s: torch.randn(*s, dtype=torch.bfloat16) * 1.6)(P, D) * (D ** -0.5)
        C_re = (lambda *s: torch.randn(*s, dtype=torch.bfloat16) * 1.6)(D, P) * (P ** -0.5)
        C_im = (lambda *s: torch.randn(*s, dtype=torch.bfloat16) * 1.6)(D, P) * (P ** -0.5)
        log_dt = (lambda *s: torch.randn(*s, dtype=torch.bfloat16) * 0.8)(P) * 0.3 - 2.0
        Dskip = (lambda *s: torch.randn(*s, dtype=torch.bfloat16) * 0.4)(D)
        return {
            "x": _w((lambda *s: torch.randn(*s, dtype=torch.bfloat16) * 0.05)(B, S, D)),
            "Lambda_re": _w(Lambda_re),
            "Lambda_im": _w(Lambda_im),
            "B_re": _w(B_re),
            "B_im": _w(B_im),
            "C_re": _w(C_re),
            "C_im": _w(C_im),
            "log_dt": _w(log_dt),
            "Dskip": _w(Dskip),
        }
    _A_in = _A_setup()

    def _B_setup():
        B, S, D, F = 1, 2048, 1024, 3584
        return {
            "x": _w((lambda *s: torch.randn(*s, dtype=torch.bfloat16) * 0.05)(B, S, D)),
            "w_gate": _w((lambda *s: torch.randn(*s, dtype=torch.bfloat16) * 0.05)(D, F)),
            "w_up": _w((lambda *s: torch.randn(*s, dtype=torch.bfloat16) * 0.05)(D, F)),
            "w_down": _w((lambda *s: torch.randn(*s, dtype=torch.bfloat16) * 0.05)(F, D)),
        }
    _B_in = _B_setup()

    return {
        "A_x": _A_in["x"],
        "A_Lambda_re": _A_in["Lambda_re"],
        "A_Lambda_im": _A_in["Lambda_im"],
        "A_B_re": _A_in["B_re"],
        "A_B_im": _A_in["B_im"],
        "A_C_re": _A_in["C_re"],
        "A_C_im": _A_in["C_im"],
        "A_log_dt": _A_in["log_dt"],
        "A_Dskip": _A_in["Dskip"],
        "B_x": _B_in["x"],
        "B_w_gate": _B_in["w_gate"],
        "B_w_up": _B_in["w_up"],
        "B_w_down": _B_in["w_down"],
    }

def reference(A_x, A_Lambda_re, A_Lambda_im, A_B_re, A_B_im, A_C_re, A_C_im, A_log_dt, A_Dskip, B_x, B_w_gate, B_w_up, B_w_down):
    def _A_ref(x, Lambda_re, Lambda_im, B_re, B_im, C_re, C_im, log_dt, Dskip):
        Bsz, L, H = x.shape
        Lam = Lambda_re + 1j * Lambda_im
        Bmat = B_re + 1j * B_im
        Cmat = C_re + 1j * C_im
        dt = torch.exp(log_dt)
        Lam_bar = torch.exp(dt * Lam)
        B_bar = ((Lam_bar - 1.0) / Lam)[:, None] * Bmat
        Bu = torch.einsum("bld,pd->blp", x + 0j, B_bar)
        h = torch.zeros_like(Bu[:, 0, :])
        hs = []
        for t in range(L):
            h = Lam_bar[None, :] * h + Bu[:, t, :]
            hs.append(h)
        hseq = torch.stack(hs, 1)
        y = 2.0 * torch.einsum("blp,dp->bld", hseq, Cmat).real + x * Dskip[None, None, :]
        return y

    def _B_ref(x, w_gate, w_up, w_down):
        return (_gelu(x @ w_gate) * (x @ w_up)) @ w_down

    x = A_x
    xn = _layernorm(x, axis=-1)
    return x + _A_ref(xn, A_Lambda_re, A_Lambda_im, A_B_re, A_B_im, A_C_re, A_C_im, A_log_dt, A_Dskip) + _B_ref(xn, B_w_gate, B_w_up, B_w_down)
```

```python
import struct

KA = dict(x=0, Lre=8, Lim=16, Bre=24, Bim=32, Cre=40, Cim=48, ldt=56, Dskip=64, Bx=72,
          wg=80, wu=88, wd=96, out=104, dbg=112, ws=120)

WS_XN = 0x0
WS_A2 = 0x400000
A2_G = 176 * 4096
A2_SIZE = 32 * A2_G
WS_STATS = 0x1A00000
WS_AGG = 0x1A10000
WS_FLAG = 0x1A50000
WS_PART = 0x1B00000
PART_SIZE = 64 * 4 * 3 * 4 * 4096
WS_STAMP = 0x4000000


def f2u(x):
    return struct.unpack("<I", struct.pack("<f", x))[0]


def hx(x):
    return "0x%x" % (x & 0xFFFFFFFF)


class Asm:
    def __init__(self):
        self.l = []

    def __call__(self, s):
        if isinstance(s, (list, tuple)):
            self.l.extend(s)
        else:
            self.l.append(s)

    def text(self):
        out = []
        for s in self.l:
            if s.endswith(":") or s.startswith("."):
                out.append(s)
            else:
                out.append("    " + s)
        return "\n".join(out) + "\n"


class Cnt:
    def __init__(self, name, maxv):
        self.q = []
        self.name = name
        self.maxv = maxv

    def issue(self, tag):
        self.q.append(tag)

    def need(self, *tags):
        idx = -1
        for i, t in enumerate(self.q):
            if t in tags:
                idx = i
        if idx < 0:
            return None
        n = len(self.q) - 1 - idx
        n = min(n, self.maxv)
        self.q = self.q[len(self.q) - n:] if n else []
        return n

    def drain(self):
        self.q = []


def waitcnt(vm=None, lgkm=None):
    p = []
    if vm is not None:
        p.append(f"vmcnt({vm})")
    if lgkm is not None:
        p.append(f"lgkmcnt({lgkm})")
    return ["s_waitcnt " + " ".join(p)] if p else []


def vr(base, n=1, t="v"):
    return f"{t}{base}" if n == 1 else f"{t}[{base}:{base + n - 1}]"


def sr(base, n=1):
    return vr(base, n, "s")


class R:
    def __init__(self, t, i):
        self.t = t
        self.i = i

    def __add__(self, k):
        return R(self.t, self.i + k)

    def r(self, n=1):
        return vr(self.i, n, self.t)


def srd(A, d, ptr, off, size):
    if off:
        A(f"s_add_u32 s{d}, s{ptr}, {hx(off)}")
        A(f"s_addc_u32 s{d + 1}, s{ptr + 1}, 0")
    else:
        A(f"s_mov_b32 s{d}, s{ptr}")
        A(f"s_mov_b32 s{d + 1}, s{ptr + 1}")
    A(f"s_mov_b32 s{d + 2}, {hx(size)}")
    A(f"s_mov_b32 s{d + 3}, 0x20000")


def kernel_head(name):
    return f".globl {name}\n.p2align 8\n.type {name},@function\n{name}:\n"


def kernel_desc(name, vgpr, accum, sgpr=102):
    return f""".amdhsa_kernel {name}
  .amdhsa_next_free_vgpr {vgpr}
  .amdhsa_next_free_sgpr {sgpr}
  .amdhsa_accum_offset {accum}
  .amdhsa_group_segment_fixed_size 0
  .amdhsa_kernarg_size 128
  .amdhsa_user_sgpr_count 2
  .amdhsa_user_sgpr_kernarg_segment_ptr 1
  .amdhsa_system_sgpr_workgroup_id_x 1
.end_amdhsa_kernel
"""


class Stamps:
    def __init__(self, on, sbase, kidx, maxn=6):
        self.on = on
        self.sbase = sbase
        self.n = 0
        self.kidx = kidx
        self.maxn = maxn
        self.names = []

    def start(self, A):
        if self.on:
            A(f"s_memrealtime s[{self.sbase}:{self.sbase + 1}]")
            self.stamp(A, "start")

    def stamp(self, A, name):
        if self.on:
            assert self.n < self.maxn
            b = self.sbase + 4 + 2 * self.n
            A(f"s_memtime s[{b}:{b + 1}]")
            self.n += 1
            self.names.append(name)

    def dump(self, A, s_ws, s_wave, tmpv, tmps):
        if not self.on:
            return
        self.stamp(A, "end")
        A(f"s_memrealtime s[{self.sbase + 2}:{self.sbase + 3}]")
        A("s_waitcnt lgkmcnt(0)")
        srd(A, tmps, s_ws, WS_STAMP + self.kidx * 0x10000, 0x10000)
        A(f"v_mov_b32 v{tmpv}, s{self.sbase}")
        A(f"v_mov_b32 v{tmpv + 1}, s{self.sbase + 2}")
        for i in range(6):
            if i < self.n:
                A(f"v_mov_b32 v{tmpv + 2 + i}, s{self.sbase + 4 + 2 * i}")
            else:
                A(f"v_mov_b32 v{tmpv + 2 + i}, 0")
        A(f"s_lshl_b32 s{tmps + 4}, s2, 2")
        A(f"s_add_u32 s{tmps + 4}, s{tmps + 4}, s{s_wave}")
        A(f"s_lshl_b32 s{tmps + 4}, s{tmps + 4}, 5")
        A(f"v_mov_b32 v{tmpv + 8}, s{tmps + 4}")
        A(f"buffer_store_dwordx4 v[{tmpv}:{tmpv + 3}], v{tmpv + 8}, s[{tmps}:{tmps + 3}], 0 offen")
        A(f"buffer_store_dwordx4 v[{tmpv + 4}:{tmpv + 7}], v{tmpv + 8}, s[{tmps}:{tmps + 3}], 0 offen offset:16")
        A("s_waitcnt vmcnt(0)")
```

```python
from gen_common import *


def wave_sum2(A, a, b):
    for ctl in ["row_shr:1", "row_shr:2", "row_shr:4", "row_shr:8"]:
        A("s_nop 0")
        A(f"v_add_f32_dpp v{a}, v{a}, v{a} {ctl} row_mask:0xf bank_mask:0xf bound_ctrl:1")
        A(f"v_add_f32_dpp v{b}, v{b}, v{b} {ctl} row_mask:0xf bank_mask:0xf bound_ctrl:1")
    for ctl in ["row_bcast:15 row_mask:0xa", "row_bcast:31 row_mask:0xc"]:
        A("s_nop 0")
        A(f"v_add_f32_dpp v{a}, v{a}, v{a} {ctl} bank_mask:0xf")
        A(f"v_add_f32_dpp v{b}, v{b}, v{b} {ctl} bank_mask:0xf")


def gen_k0(name, opt):
    A = Asm()
    st = Stamps(opt.get("diag"), 60, 0)
    PITCH = 2048 + 32
    A("s_cmp_ge_u32 s2, 256")
    A("s_cbranch_scc1 L0_end")
    st.start(A)
    A(f"s_load_dwordx2 s[4:5], s[0:1], {KA['x']}")
    A(f"s_load_dwordx2 s[6:7], s[0:1], {KA['ws']}")
    A("v_and_b32 v1, 63, v0")
    A("v_lshrrev_b32 v2, 6, v0")
    A("v_lshlrev_b32 v3, 4, v1")
    A("v_readfirstlane_b32 s24, v2")
    A("s_lshr_b32 s25, s2, 3")
    A("s_bfe_u32 s26, s2, 0x20001")
    A("s_and_b32 s27, s2, 1")
    A("s_lshl_b32 s28, s25, 6")
    A("s_lshl_b32 s29, s27, 5")
    A("s_add_u32 s28, s28, s29")
    A("s_lshl_b32 s29, s24, 3")
    A("s_add_u32 s28, s28, s29")
    A("s_add_u32 s28, s28, s26")
    A("s_lshl_b32 s29, s28, 11")
    A("s_add_u32 s30, s29, 8192")
    A("s_waitcnt lgkmcnt(0)")
    srd(A, 8, 4, 0, 2048 * 2048)
    A("buffer_load_dwordx4 v[8:11], v3, s[8:11], s29 offen")
    A("buffer_load_dwordx4 v[12:15], v3, s[8:11], s29 offen offset:1024")
    A("buffer_load_dwordx4 v[16:19], v3, s[8:11], s30 offen")
    A("buffer_load_dwordx4 v[20:23], v3, s[8:11], s30 offen offset:1024")
    srd(A, 12, 6, WS_XN, 0x400000)
    srd(A, 16, 6, WS_STATS, 0x4000)
    srd(A, 20, 6, WS_AGG, 0x40000 + 0x20000)
    assert WS_FLAG == WS_AGG + 0x40000
    A("v_lshlrev_b32 v4, 2, v0")
    A("s_lshl_b32 s31, s2, 10")
    A("v_mov_b32 v5, -1")
    A("buffer_store_dword v5, v4, s[20:23], s31 offen")
    A("v_lshlrev_b32 v6, 1, v0")
    A("s_lshl_b32 s31, s2, 9")
    A("s_add_u32 s31, s31, 0x40000")
    A("v_mov_b32 v7, 0")
    A("buffer_store_short v7, v6, s[20:23], s31 offen")
    X = [32, 48]
    A("s_waitcnt vmcnt(4)")
    for d in range(8):
        A(f"v_lshlrev_b32 v{X[0] + 2 * d}, 16, v{8 + d}")
        A(f"v_and_b32 v{X[0] + 2 * d + 1}, 0xffff0000, v{8 + d}")
    A("s_waitcnt vmcnt(2)")
    for d in range(8):
        A(f"v_lshlrev_b32 v{X[1] + 2 * d}, 16, v{16 + d}")
        A(f"v_and_b32 v{X[1] + 2 * d + 1}, 0xffff0000, v{16 + d}")
    for r in range(2):
        A(f"v_pk_add_f32 v[{24 + 2 * r}:{25 + 2 * r}], v[{X[r]}:{X[r] + 1}], v[{X[r] + 2}:{X[r] + 3}]")
    for d in range(2, 8):
        for r in range(2):
            A(f"v_pk_add_f32 v[{24 + 2 * r}:{25 + 2 * r}], v[{24 + 2 * r}:{25 + 2 * r}], v[{X[r] + 2 * d}:{X[r] + 2 * d + 1}]")
    A("v_add_f32 v24, v24, v25")
    A("v_add_f32 v26, v26, v27")
    wave_sum2(A, 24, 26)
    A("s_nop 0")
    A("v_readlane_b32 s32, v24, 63")
    A("v_readlane_b32 s33, v26, 63")
    A(f"v_mov_b32 v28, {hx(f2u(1.0 / 1024))}")
    A("s_nop 0")
    A("v_mul_f32 v24, s32, v28")
    A("v_mul_f32 v26, s33, v28")
    for r in range(2):
        A(f"v_mov_b32 v{64 + 2 * r}, 0")
        A(f"v_mov_b32 v{65 + 2 * r}, 0")
    for d in range(8):
        for r in range(2):
            A(f"v_pk_add_f32 v[{68 + 2 * r}:{69 + 2 * r}], v[{X[r] + 2 * d}:{X[r] + 2 * d + 1}], v[{24 + 2 * r}:{25 + 2 * r}] op_sel_hi:[1,0] neg_lo:[0,1] neg_hi:[0,1]")
        for r in range(2):
            A(f"v_pk_fma_f32 v[{64 + 2 * r}:{65 + 2 * r}], v[{68 + 2 * r}:{69 + 2 * r}], v[{68 + 2 * r}:{69 + 2 * r}], v[{64 + 2 * r}:{65 + 2 * r}]")
    A("v_add_f32 v64, v64, v65")
    A("v_add_f32 v66, v66, v67")
    wave_sum2(A, 64, 66)
    A("s_nop 0")
    A("v_readlane_b32 s32, v64, 63")
    A("v_readlane_b32 s33, v66, 63")
    A("v_cvt_pk_bf16_f32 v25, v24, v26")
    A("s_nop 0")
    A("v_mul_f32 v64, s32, v28")
    A("v_mul_f32 v66, s33, v28")
    A("v_cvt_pk_bf16_f32 v64, v64, v66")
    A("v_lshlrev_b32 v24, 16, v25")
    A("v_and_b32 v26, 0xffff0000, v25")
    A("v_lshlrev_b32 v65, 16, v64")
    A("v_and_b32 v66, 0xffff0000, v64")
    A(f"v_add_f32 v65, {hx(f2u(1e-5))}, v65")
    A(f"v_add_f32 v66, {hx(f2u(1e-5))}, v66")
    A("v_cvt_pk_bf16_f32 v64, v65, v66")
    A("v_lshlrev_b32 v65, 16, v64")
    A("v_and_b32 v66, 0xffff0000, v64")
    A("v_sqrt_f32 v65, v65")
    A("v_sqrt_f32 v66, v66")
    A("s_nop 0")
    A("v_cvt_pk_bf16_f32 v64, v65, v66")
    A("v_lshlrev_b32 v65, 16, v64")
    A("v_and_b32 v66, 0xffff0000, v64")
    A("v_rcp_f32 v25, v65")
    A("v_rcp_f32 v27, v66")
    A("s_lshl_b32 s31, s28, 3")
    A("v_mov_b32 v29, 0")
    A("s_mov_b64 exec, 1")
    A("buffer_store_dwordx2 v[24:25], v29, s[16:19], s31 offen")
    A("buffer_store_dwordx2 v[26:27], v29, s[16:19], s31 offen offset:32")
    A("s_mov_b64 exec, -1")
    for r in range(2):
        for d in range(8):
            x = X[r] + 2 * d
            A(f"v_pk_add_f32 v[{x}:{x + 1}], v[{x}:{x + 1}], v[{24 + 2 * r}:{25 + 2 * r}] op_sel_hi:[1,0] neg_lo:[0,1] neg_hi:[0,1]")
        for d in range(8):
            x = X[r] + 2 * d
            A(f"v_cvt_pk_bf16_f32 v{8 + 8 * r + d}, v{x}, v{x + 1}")
        for d in range(8):
            x = X[r] + 2 * d
            A(f"v_lshlrev_b32 v{x}, 16, v{8 + 8 * r + d}")
            A(f"v_and_b32 v{x + 1}, 0xffff0000, v{8 + 8 * r + d}")
        for d in range(8):
            x = X[r] + 2 * d
            A(f"v_pk_mul_f32 v[{x}:{x + 1}], v[{x}:{x + 1}], v[{24 + 2 * r}:{25 + 2 * r}] op_sel:[0,1]")
        for d in range(8):
            x = X[r] + 2 * d
            A(f"v_cvt_pk_bf16_f32 v{8 + 8 * r + d}, v{x}, v{x + 1}")
    A(f"s_mul_i32 s31, s24, {2 * PITCH}")
    A("v_add_u32 v4, s31, v3")
    A("ds_write_b128 v4, v[8:11]")
    A("ds_write_b128 v4, v[12:15] offset:1024")
    A(f"ds_write_b128 v4, v[16:19] offset:{PITCH}")
    A(f"ds_write_b128 v4, v[20:23] offset:{PITCH + 1024}")
    A("v_and_b32 v5, 7, v1")
    A("v_lshrrev_b32 v6, 3, v1")
    A(f"v_mul_u32_u24 v7, {PITCH}, v5")
    A("v_lshl_add_u32 v7, v6, 4, v7")
    A("s_lshl_b32 s31, s24, 9")
    A("v_add_u32 v7, s31, v7")
    A("v_lshrrev_b32 v29, 2, v6")
    A("v_and_b32 v6, 3, v6")
    A("v_lshlrev_b32 v29, 12, v29")
    A("v_lshl_add_u32 v29, v6, 8, v29")
    A("v_lshl_add_u32 v29, v5, 4, v29")
    A("s_lshl_b32 s31, s25, 17")
    A("s_lshl_b32 s32, s26, 10")
    A("s_add_u32 s31, s31, s32")
    A("s_lshl_b32 s32, s27, 7")
    A("s_add_u32 s31, s31, s32")
    A("s_lshl_b32 s32, s24, 15")
    A("s_add_u32 s31, s31, s32")
    A("s_waitcnt lgkmcnt(0)")
    A("s_barrier")
    for j in range(4):
        A(f"ds_read_b128 v[{8 + 4 * j}:{11 + 4 * j}], v7 offset:{128 * j}")
    aux = opt.get("k0_st", "")
    for j in range(4):
        A(f"s_waitcnt lgkmcnt({3 - j})")
        A(f"buffer_store_dwordx4 v[{8 + 4 * j}:{11 + 4 * j}], v29, s[12:15], s31 offen {aux}")
        if j < 3:
            A("s_add_u32 s31, s31, 8192")
    if opt.get("diag"):
        A("s_waitcnt vmcnt(0)")
    st.dump(A, 6, 24, 32, 40)
    A("L0_end:")
    A("s_endpgm")
    return dict(text=kernel_head(name) + A.text(), desc=kernel_desc(name, 72, 72), lds=8 * PITCH, grid=256, block=256, stamps=st.names)
```

```python
import math
from gen_common import *

STAGE = 36864
NST = 4
T_UP = 14336
T_SSM = 28672
LOG2E = 1.4426950408889634

S_WSP = 80
SRD_F = 4
SRD_S = 8
SRD_X = 12
SRD_A2 = 16
SRD_AG = 20
S_W, S_G, S_g, S_m, S_odd = 24, 25, 26, 27, 28
S_FOFF, S_SOFF, S_XOFF0, S_XOFF1 = 29, 30, 31, 32
S_DF, S_DS = 33, 34
S_DST = 35
S_DFS, S_DSS = 36, 37
S_RST = 38
S_IT = 39
S_T = 40

V_LANE = 1
V_L16 = 2
V_FO = 3
V_SO = 10
V_RB = 12
V_RD = 16
V_PAR = 20
V_C = 44
V_T = 46
V_SACC = 64
V_X = 128
V_W = 192
V_E = 216


def accF(t, jb, b):
    return R("a", ((t * 7 + jb) * 4 + b) * 4)


def accS(ri, sb, b):
    return R("v", V_SACC + ((ri * 2 + sb) * 4 + b) * 4)


def par(sb, k):
    return V_PAR + sb * 12 + 2 * k


P_L1, P_L16, P_L64, P_L16Q, P_L512Q, P_CF = range(6)


def cmul_add(dst, lam, h, add):
    return [
        f"v_pk_fma_f32 v[{dst}:{dst + 1}], v[{lam}:{lam + 1}], v[{h}:{h + 1}], v[{add}:{add + 1}] op_sel_hi:[1,0,1]",
        f"v_pk_fma_f32 v[{dst}:{dst + 1}], v[{lam}:{lam + 1}], v[{h}:{h + 1}], v[{dst}:{dst + 1}] op_sel:[1,1,0] op_sel_hi:[0,1,1] neg_lo:[1,0,0]",
    ]


def cmul(dst, lam, h):
    return [
        f"v_pk_mul_f32 v[{dst}:{dst + 1}], v[{lam}:{lam + 1}], v[{h}:{h + 1}] op_sel_hi:[1,0]",
        f"v_pk_fma_f32 v[{dst}:{dst + 1}], v[{lam}:{lam + 1}], v[{h}:{h + 1}], v[{dst}:{dst + 1}] op_sel:[1,1,0] op_sel_hi:[0,1,1] neg_lo:[1,0,0]",
    ]


def interleave(*lists):
    out = []
    n = max(len(x) for x in lists)
    for i in range(n):
        for x in lists:
            if i < len(x):
                out.append(x[i])
    return out


class K1:
    def __init__(self, name, opt):
        self.name = name
        self.opt = opt
        self.A = Asm()
        self.vm = Cnt("vm", 63)
        self.lg = Cnt("lgkm", 15)
        self.PD = opt.get("k1_pd", 4)
        self.NR = 6
        self.st = Stamps(opt.get("diag"), 60, 1)
        self.order = [("S", 0, 0), ("S", 1, 0), ("S", 0, 1), ("S", 1, 1)] + [("F", t, jb) for jb in range(7) for t in range(2)]

    def frag(self, f):
        return (f // 18,) + self.order[f % 18]

    def wreg(self, f):
        return V_W + 4 * (f % self.NR)

    def rd_instrs(self, f):
        kk, kind, p, q = self.frag(f)
        w = self.wreg(f)
        if kind == "S":
            off = T_SSM + p * 4096 + q * 2048
            return [f"ds_read_b128 v[{w}:{w + 3}], v{V_RD + 2 + kk} offset:{off}"]
        off = p * T_UP + kk * 7168 + (q * 32 if q < 6 else 0)
        a = V_RD + (0 if q < 6 else 1)
        return [f"ds_read_b64_tr_b16 v[{w + 2 * h}:{w + 2 * h + 1}], v{a} offset:{off + h * 1792}" for h in range(2)]

    def xreg(self, par_, kk, b):
        return V_X + ((par_ * 2 + kk) * 4 + b) * 4

    def x_load(self, par_, kk, b):
        x = self.xreg(par_, kk, b)
        return f"buffer_load_dwordx4 v[{x}:{x + 3}], v{V_L16}, s[{SRD_X}:{SRD_X + 3}], s{S_XOFF0 + kk} offen offset:{b * 1024}"

    def dma(self, n):
        aux = self.opt.get("k1_w_aux", "")
        if n < 7:
            return (f"s_add_u32 m0, s{S_DFS}, {n * 1024}",
                    f"buffer_load_dwordx4 v{V_FO + n}, s[{SRD_F}:{SRD_F + 3}], s{S_FOFF} offen {aux} lds")
        e = n - 7
        return (f"s_add_u32 m0, s{S_DSS}, {e * 1024}",
                f"buffer_load_dwordx4 v{V_SO + e}, s[{SRD_S}:{SRD_S + 3}], s{S_SOFF} offen {aux} lds")

    def dma_advance(self):
        return [f"s_add_u32 s{S_FOFF}, s{S_FOFF}, {64 * 7168}",
                f"s_add_u32 s{S_SOFF}, s{S_SOFF}, 128",
                f"s_add_u32 s{S_DST}, s{S_DST}, {STAGE}",
                f"s_cmp_eq_u32 s{S_DST}, {STAGE * NST}",
                f"s_cselect_b32 s{S_DST}, 0, s{S_DST}",
                f"s_add_u32 s{S_DFS}, s{S_DF}, s{S_DST}",
                f"s_add_u32 s{S_DSS}, s{S_DS}, s{S_DST}"]

    def x_advance(self):
        return [f"s_add_u32 s{S_XOFF0}, s{S_XOFF0}, 8192", f"s_add_u32 s{S_XOFF1}, s{S_XOFF1}, 8192"]

    def rd_advance_s(self):
        return [f"s_add_u32 s{S_RST}, s{S_RST}, {STAGE}",
                f"s_cmp_eq_u32 s{S_RST}, {STAGE * NST}",
                f"s_cselect_b32 s{S_RST}, 0, s{S_RST}"]

    def mfma(self, f, b, par_):
        kk, kind, p, q = self.frag(f)
        w = self.wreg(f)
        x = self.xreg(par_, kk, b)
        if kind == "S":
            c = accS(p, q, b).r(4)
            return f"v_mfma_f32_16x16x32_bf16 {c}, v[{x}:{x + 3}], v[{w}:{w + 3}], {c}"
        c = accF(p, q, b).r(4)
        return f"v_mfma_f32_16x16x32_bf16 {c}, v[{w}:{w + 3}], v[{x}:{x + 3}], {c}"

    def step(self, s, do_x, do_dma, do_next):
        A, PD = self.A, self.PD
        par_ = s & 1
        vops = []
        if do_x:
            for kk in range(2):
                for b in range(4):
                    vops.append((None, self.x_load(par_ ^ 1, kk, b), ("X", s + 1, kk)))
        if do_dma:
            for n in range(9):
                m, ld = self.dma(n)
                vops.append((m, ld, ("D", s + 2)))
        vslot = {2 * i: op for i, op in enumerate(vops)}
        misc = {}
        if do_x:
            misc.setdefault(17, []).extend(self.x_advance())
        if do_dma:
            adv = self.dma_advance()
            misc.setdefault(33, []).extend(adv[:2])
            misc.setdefault(34, []).extend(adv[2:5])
            misc.setdefault(35, []).extend(adv[5:])
        if do_next:
            misc.setdefault(29, []).extend(self.rd_advance_s())
        for f in range(36):
            vmw = None
            if f == 0:
                vmw = self.vm.need(("X", s, 0))
            if f == 18:
                vmw = self.vm.need(("X", s, 1))
            nxt = f + PD
            bar = do_next and nxt == 36
            if bar:
                w2 = self.vm.need(("D", s + 1))
                vmw = w2 if w2 is not None else vmw
            lw = self.lg.need(("W", s, f))
            A(waitcnt(vmw, lw))
            if bar:
                A("s_barrier")
            rds = []
            if nxt < 36:
                rds = [(i, ("W", s, nxt)) for i in self.rd_instrs(nxt)]
            elif do_next:
                rds = [(i, ("W", s + 1, nxt - 36)) for i in self.rd_instrs(nxt - 36)]
            fill = [[], [], [], []]
            if do_next:
                if f == 30:
                    fill[3].append(f"v_add_u32 v{V_RD + 2}, s{S_RST}, v{V_RB + 2}")
                    fill[2].append(f"v_add_u32 v{V_RD + 3}, s{S_RST}, v{V_RB + 3}")
                if f == 36 - PD:
                    fill[2].append(f"v_add_u32 v{V_RD + 0}, s{S_RST}, v{V_RB + 0}")
                    fill[3].append(f"v_add_u32 v{V_RD + 1}, s{S_RST}, v{V_RB + 1}")
            for i, (ins, tag) in enumerate(rds):
                fill[i].insert(0, (ins, "lg", tag))
            if f in vslot:
                pre, ins, tag = vslot[f]
                if pre:
                    fill[1].append(pre)
                fill[2].append((ins, "vm", tag))
            for i, ins in enumerate(misc.get(f, [])):
                fill[min(1 + i, 3)].append(ins)
            for b in range(4):
                A(self.mfma(f, b, par_))
                for it in fill[b]:
                    if isinstance(it, tuple):
                        A(it[0])
                        (self.lg if it[1] == "lg" else self.vm).issue(it[2])
                    else:
                        A(it)

    def prologue(self):
        A, PD = self.A, self.PD
        T = S_T
        A("s_cmp_ge_u32 s2, 256")
        A("s_cbranch_scc1 L1_end")
        self.st.start(A)
        A(f"s_load_dwordx4 s[{T}:{T + 3}], s[0:1], {KA['wg']}")
        A(f"s_load_dwordx4 s[{T + 4}:{T + 7}], s[0:1], {KA['Bre']}")
        A(f"s_load_dwordx4 s[{T + 8}:{T + 11}], s[0:1], {KA['Lre']}")
        A(f"s_load_dwordx2 s[{T + 12}:{T + 13}], s[0:1], {KA['ldt']}")
        A(f"s_load_dwordx2 s[{S_WSP}:{S_WSP + 1}], s[0:1], {KA['ws']}")
        A(f"v_lshrrev_b32 v{V_T}, 6, v0")
        A(f"v_and_b32 v{V_LANE}, 63, v0")
        A(f"v_readfirstlane_b32 s{S_W}, v{V_T}")
        A(f"v_lshlrev_b32 v{V_L16}, 4, v{V_LANE}")
        A(f"s_and_b32 s{S_g}, s2, 7")
        A(f"s_lshl_b32 s{S_g}, s{S_g}, 2")
        A(f"s_bfe_u32 s{S_m}, s2, 0x20003")
        A(f"s_add_u32 s{S_g}, s{S_g}, s{S_m}")
        A(f"s_lshr_b32 s{S_m}, s2, 5")
        A(f"s_and_b32 s{S_odd}, s{S_g}, 1")
        A(f"s_lshl_b32 s{S_G}, s{S_m}, 2")
        A(f"s_add_u32 s{S_G}, s{S_G}, s{S_W}")
        t0, t1, t2 = V_T, V_T + 1, V_T + 2
        for n in range(7):
            A(f"v_add_u32 v{t0}, {64 * n}, v{V_LANE}")
            A(f"v_mul_u32_u24 v{t1}, 4682, v{t0}")
            A(f"v_lshrrev_b32 v{t1}, 16, v{t1}")
            A(f"v_mul_u32_u24 v{t2}, 14, v{t1}")
            A(f"v_sub_u32 v{t0}, v{t0}, v{t2}")
            A(f"v_lshlrev_b32 v{t0}, 4, v{t0}")
            A(f"v_lshrrev_b32 v{t2}, 1, v{t1}")
            A(f"v_xor_b32 v{t2}, v{t2}, v{t1}")
            A(f"v_and_b32 v{t2}, 4, v{t2}")
            A(f"v_mul_u32_u24 v{t2}, 3, v{t2}")
            A(f"v_xor_b32 v{t1}, v{t1}, v{t2}")
            A(f"v_mul_u32_u24 v{t1}, 7168, v{t1}")
            A(f"v_add_u32 v{V_FO + n}, v{t0}, v{t1}")
        for x in range(448):
            assert (x * 4682) >> 16 == x // 14
        A(f"v_lshrrev_b32 v{t0}, 3, v{V_LANE}")
        A(f"v_and_b32 v{t1}, 7, v{V_LANE}")
        for e in range(2):
            A(f"v_add_u32 v{t2}, {8 * e}, v{t0}")
            A(f"v_lshrrev_b32 v{V_SO + e}, 1, v{t2}")
            A(f"v_xor_b32 v{V_SO + e}, v{V_SO + e}, v{t1}")
            A(f"v_lshlrev_b32 v{V_SO + e}, 4, v{V_SO + e}")
            A(f"v_lshl_add_u32 v{V_SO + e}, v{t2}, 11, v{V_SO + e}")
        A(f"s_and_b32 s{T + 14}, s{S_W}, 1")
        A(f"s_lshr_b32 s{T + 15}, s{S_W}, 1")
        A(f"s_mul_i32 s{S_FOFF}, s{T + 14}, {32 * 7168}")
        A(f"s_mul_i32 s{T + 16}, s{S_g}, 224")
        A(f"s_add_u32 s{S_FOFF}, s{S_FOFF}, s{T + 16}")
        A(f"s_lshl_b32 s{S_SOFF}, s{S_g}, 16")
        A(f"s_lshl_b32 s{T + 16}, s{T + 14}, 15")
        A(f"s_add_u32 s{S_SOFF}, s{S_SOFF}, s{T + 16}")
        A(f"s_lshl_b32 s{S_XOFF0}, s{S_G}, 17")
        A(f"s_add_u32 s{S_XOFF1}, s{S_XOFF0}, 4096")
        A(f"s_mul_i32 s{S_DF}, s{S_W}, 7168")
        A(f"s_lshl_b32 s{S_DS}, s{S_W}, 11")
        A(f"s_add_u32 s{S_DS}, s{S_DS}, {T_SSM}")
        A(f"s_mov_b32 s{S_DST}, 0")
        A(f"s_mov_b32 s{S_DFS}, s{S_DF}")
        A(f"s_mov_b32 s{S_DSS}, s{S_DS}")
        A(f"s_mov_b32 s{S_RST}, 0")
        A("s_waitcnt lgkmcnt(0)")
        A(f"s_cmp_eq_u32 s{T + 15}, 0")
        A(f"s_cselect_b32 s{SRD_F}, s{T}, s{T + 2}")
        A(f"s_cselect_b32 s{SRD_F + 1}, s{T + 1}, s{T + 3}")
        A(f"s_cselect_b32 s{SRD_S}, s{T + 4}, s{T + 6}")
        A(f"s_cselect_b32 s{SRD_S + 1}, s{T + 5}, s{T + 7}")
        A(f"s_mov_b32 s{SRD_F + 2}, {1024 * 7168}")
        A(f"s_mov_b32 s{SRD_F + 3}, 0x20000")
        A(f"s_mov_b32 s{SRD_S + 2}, {1024 * 2048}")
        A(f"s_mov_b32 s{SRD_S + 3}, 0x20000")
        srd(A, SRD_X, S_WSP, WS_XN, 0x400000)
        for n in range(9):
            m, ld = self.dma(n)
            A(m); A("s_nop 0"); A(ld); self.vm.issue(("D", 0))
        A(self.dma_advance())
        PL = V_E
        A(f"v_and_b32 v{t0}, 15, v{V_LANE}")
        A(f"v_lshlrev_b32 v{t0}, 1, v{t0}")
        A(f"s_lshl_b32 s{T + 16}, s{S_g}, 6")
        for j, p in enumerate([T + 8, T + 10, T + 12]):
            srd(A, SRD_AG, p, 0, 2048)
            for sb in range(2):
                A(f"buffer_load_ushort v{PL + 2 * j + sb}, v{t0}, s[{SRD_AG}:{SRD_AG + 3}], s{T + 16} offen offset:{32 * sb}")
                self.vm.issue("par")
        for kk in range(2):
            for b in range(4):
                A(self.x_load(0, kk, b)); self.vm.issue(("X", 0, kk))
        A(self.x_advance())
        for n in range(9):
            m, ld = self.dma(n)
            A(m); A("s_nop 0"); A(ld); self.vm.issue(("D", 1))
        A(self.dma_advance())
        srd(A, SRD_A2, S_WSP, WS_A2, A2_SIZE)
        A(f"s_lshl_b32 s{T + 16}, s{S_g}, 13")
        A(f"s_add_u32 s{T + 16}, s{T + 16}, {hx(WS_AGG)}")
        A(f"s_add_u32 s{SRD_AG}, s{S_WSP}, s{T + 16}")
        A(f"s_addc_u32 s{SRD_AG + 1}, s{S_WSP + 1}, 0")
        A(f"s_mov_b32 s{SRD_AG + 2}, 8192")
        A(f"s_mov_b32 s{SRD_AG + 3}, 0x20000")
        q, r, c, i = V_T, V_T + 1, V_T + 2, V_T + 3
        u = V_T + 4
        A(f"v_lshrrev_b32 v{q}, 4, v{V_LANE}")
        A(f"v_bfe_u32 v{r}, v{V_LANE}, 2, 2")
        A(f"v_and_b32 v{c}, 3, v{V_LANE}")
        A(f"v_and_b32 v{i}, 15, v{V_LANE}")
        A(f"v_lshrrev_b32 v{u}, 1, v{q}")
        A(f"v_lshl_add_u32 v{u}, v{u}, 4, v{r}")
        A(f"v_and_b32 v{u + 1}, 1, v{q}")
        A(f"v_lshl_add_u32 v{u}, v{u + 1}, 2, v{u}")
        A(f"v_mul_u32_u24 v{u}, 224, v{u}")
        A(f"v_lshl_add_u32 v{u}, v{c}, 3, v{u}")
        A(f"s_lshl_b32 s{T + 16}, s{S_odd}, 5")
        A(f"s_mul_i32 s{T + 17}, s{S_odd}, 192")
        A(f"s_sub_u32 s{T + 17}, 192, s{T + 17}")
        A(f"v_add_u32 v{V_RB}, s{T + 16}, v{u}")
        A(f"v_add_u32 v{V_RB + 1}, s{T + 17}, v{u}")
        A(f"v_lshrrev_b32 v{u}, 1, v{i}")
        A(f"v_xor_b32 v{u}, v{u}, v{q}")
        A(f"v_lshlrev_b32 v{u}, 4, v{u}")
        A(f"v_lshl_add_u32 v{V_RB + 2}, v{i}, 7, v{u}")
        A(f"v_xor_b32 v{V_RB + 3}, 64, v{V_RB + 2}")
        for j in range(4):
            A(f"v_mov_b32 v{V_RD + j}, v{V_RB + j}")
        for j in range(224):
            A(f"v_accvgpr_write_b32 a{j}, 0")
        for j in range(0, 64, 2):
            A(f"v_mov_b64 v[{V_SACC + j}:{V_SACC + j + 1}], 0")
        c0 = -2.0 * LOG2E * math.sqrt(2.0 / math.pi)
        A(f"v_mov_b32 v{V_C}, {hx(f2u(c0 * 0.044715))}")
        A(f"v_mov_b32 v{V_C + 1}, {hx(f2u(c0))}")
        A(waitcnt(self.vm.need("par")))
        lre, lim, dt = PL, PL + 2, PL + 4
        zr, zi = PL + 6, PL + 8
        nq = PL + 10
        tm = PL + 12
        A(f"v_cvt_f32_u32 v{nq}, v{q}")
        for j in range(6):
            A(f"v_lshlrev_b32 v{PL + j}, 16, v{PL + j}")
        for sb in range(2):
            A(f"v_mul_f32 v{dt + sb}, {hx(f2u(LOG2E))}, v{dt + sb}")
        for sb in range(2):
            A(f"v_exp_f32 v{dt + sb}, v{dt + sb}")
        A("s_nop 0")
        A(f"v_cvt_pk_bf16_f32 v{tm}, v{dt}, v{dt + 1}")
        A(f"v_lshlrev_b32 v{dt}, 16, v{tm}")
        A(f"v_and_b32 v{dt + 1}, 0xffff0000, v{tm}")
        for sb in range(2):
            A(f"v_mul_f32 v{zr + sb}, v{dt + sb}, v{lre + sb}")
            A(f"v_mul_f32 v{zi + sb}, v{dt + sb}, v{lim + sb}")
        for sb in range(2):
            A(f"v_mul_f32 v{zr + sb}, {hx(f2u(LOG2E))}, v{zr + sb}")
            A(f"v_mul_f32 v{zi + sb}, {hx(f2u(1.0 / (2 * math.pi)))}, v{zi + sb}")
        for k, (n, byq) in {P_L1: (1, False), P_L16: (16, False), P_L64: (64, False), P_L16Q: (16, True), P_L512Q: (512, True)}.items():
            if byq:
                A(f"v_mul_f32 v{tm + 6}, {hx(f2u(float(n)))}, v{nq}")
            else:
                A(f"v_mov_b32 v{tm + 6}, {hx(f2u(float(n)))}")
            for sb in range(2):
                A(f"v_mul_f32 v{tm + sb}, v{tm + 6}, v{zr + sb}")
                A(f"v_mul_f32 v{tm + 2 + sb}, v{tm + 6}, v{zi + sb}")
            for sb in range(2):
                A(f"v_rndne_f32 v{tm + 4 + sb}, v{tm + 2 + sb}")
            for sb in range(2):
                A(f"v_sub_f32 v{tm + 2 + sb}, v{tm + 2 + sb}, v{tm + 4 + sb}")
            for sb in range(2):
                A(f"v_exp_f32 v{tm + sb}, v{tm + sb}")
            for sb in range(2):
                A(f"v_cos_f32 v{par(sb, k)}, v{tm + 2 + sb}")
                A(f"v_sin_f32 v{par(sb, k) + 1}, v{tm + 2 + sb}")
            A("s_nop 0")
            for sb in range(2):
                p = par(sb, k)
                A(f"v_mul_f32 v{p}, v{p}, v{tm + sb}")
                A(f"v_mul_f32 v{p + 1}, v{p + 1}, v{tm + sb}")
        for sb in range(2):
            l1, cf = par(sb, P_L1), par(sb, P_CF)
            A(f"v_mul_f32 v{tm}, v{lre + sb}, v{lre + sb}")
            A(f"v_fma_f32 v{tm}, v{lim + sb}, v{lim + sb}, v{tm}")
            A(f"v_rcp_f32 v{tm}, v{tm}")
            A(f"v_add_f32 v{tm + 1}, -1.0, v{l1}")
            A(f"v_mul_f32 v{cf}, v{tm + 1}, v{lre + sb}")
            A(f"v_fma_f32 v{cf}, v{l1 + 1}, v{lim + sb}, v{cf}")
            A(f"v_mul_f32 v{cf + 1}, v{l1 + 1}, v{lre + sb}")
            A(f"v_fma_f32 v{cf + 1}, -v{tm + 1}, v{lim + sb}, v{cf + 1}")
            A(f"v_add_f32 v{tm}, v{tm}, v{tm}")
            A(f"v_mul_f32 v{cf}, v{cf}, v{tm}")
            A(f"v_mul_f32 v{cf + 1}, v{cf + 1}, v{tm}")
        A(waitcnt(self.vm.need(("D", 0))))
        A("s_barrier")
        self.st.stamp(A, "tile0")
        for f in range(PD):
            for ins in self.rd_instrs(f):
                A(ins); self.lg.issue(("W", 0, f))

    def epilogue(self):
        A = self.A
        T = S_T
        U = V_X
        u = lambda sb, tau: U + (sb * 16 + tau) * 2
        self.st.stamp(A, "loopend")
        for sb in range(2):
            cf = par(sb, P_CF)
            l1, l2 = [], []
            for r in range(4):
                for b in range(4):
                    d = u(sb, 4 * r + b)
                    a_re = accS(0, sb, b).i + r
                    a_im = accS(1, sb, b).i + r
                    s = r & 1
                    l1.append(f"v_pk_mul_f32 v[{d}:{d + 1}], v[{cf}:{cf + 1}], v[{a_re - s}:{a_re - s + 1}] op_sel:[0,{s}] op_sel_hi:[1,{s}]")
                    l2.append(f"v_pk_fma_f32 v[{d}:{d + 1}], v[{cf}:{cf + 1}], v[{a_im - s}:{a_im - s + 1}], v[{d}:{d + 1}] op_sel:[1,{s},0] op_sel_hi:[0,{s},1] neg_lo:[1,0,0]")
            A(l1); A(l2)
        Q0, Q1 = V_SACC, V_SACC + 4
        cur = [u(0, 0), u(1, 0)]
        for tau in range(1, 16):
            dst = Q0 if tau & 1 else Q1
            A(interleave(*[cmul_add(dst + 2 * sb, par(sb, P_L1), cur[sb], u(sb, tau)) for sb in range(2)]))
            cur = [dst, dst + 2]
        a = Q0
        g0, g1, g2, g3 = a, V_SACC + 8, V_SACC + 12, V_SACC + 16
        for j in range(4):
            A(f"v_mov_b32 v{g2 + j}, v{g0 + j}")
        A("s_nop 1")
        for j in range(4):
            A(f"v_permlane32_swap_b32 v{g0 + j}, v{g2 + j}")
        for j in range(4):
            A(f"v_mov_b32 v{g1 + j}, v{g0 + j}")
        for j in range(4):
            A(f"v_mov_b32 v{g3 + j}, v{g2 + j}")
        for j in range(4):
            A(f"v_permlane16_swap_b32 v{g0 + j}, v{g1 + j}")
        for j in range(4):
            A(f"v_permlane16_swap_b32 v{g2 + j}, v{g3 + j}")
        for prev, nx in [(g0, g1), (g1, g2), (g2, g3)]:
            A(interleave(*[cmul_add(nx + 2 * sb, par(sb, P_L16), prev + 2 * sb, nx + 2 * sb) for sb in range(2)]))
        A(f"s_sub_u32 s{T}, 31, s{S_G}")
        A(f"s_lshl_b32 s{T}, s{T}, 8")
        A("s_mov_b64 exec, 0xffff")
        A(f"buffer_store_dwordx4 v[{g3}:{g3 + 3}], v{V_L16}, s[{SRD_AG}:{SRD_AG + 3}], s{T} offen sc1")
        PQ = V_SACC + 20
        A(f"v_mov_b64 v[{PQ}:{PQ + 1}], 0")
        A(f"v_mov_b64 v[{PQ + 2}:{PQ + 3}], 0")
        for qq, src in [(1, g0), (2, g1), (3, g2)]:
            A("s_lshl_b64 exec, exec, 16")
            A(f"v_mov_b64 v[{PQ}:{PQ + 1}], v[{src}:{src + 1}]")
            A(f"v_mov_b64 v[{PQ + 2}:{PQ + 3}], v[{src + 2}:{src + 3}]")
        A("s_mov_b64 exec, -1")
        self.st.stamp(A, "publish")
        aux = self.opt.get("k1_st", "")
        A(f"s_mul_i32 s{T}, s{S_g}, 7")
        A(f"s_add_u32 s{T}, s{T}, s{S_odd}")
        A(f"s_lshl_b32 s{T}, s{T}, 11")
        A(f"s_mul_i32 s{T + 1}, s{S_G}, {A2_G}")
        A(f"s_add_u32 s{T}, s{T}, s{T + 1}")
        A(f"s_mul_i32 s{T + 2}, s{S_odd}, {4 * 4096 - 8}")
        A(f"s_sub_u32 s{T + 2}, {3 * 4096}, s{T + 2}")
        A(f"s_add_u32 s{T + 2}, s{T + 2}, s{T}")
        Gt, Ut, Zt = V_W, V_W + 8, V_W + 16
        OUT = [V_E, V_E + 4]
        nb = 0

        def gelu8(srcs, out):
            n = len(srcs)
            for j, (ga, ua) in enumerate(srcs):
                A(f"v_accvgpr_read_b32 v{Gt + j}, a{ga}")
            for j in range(0, n, 2):
                A(f"v_pk_mul_f32 v[{Zt + j}:{Zt + j + 1}], v[{Gt + j}:{Gt + j + 1}], v[{Gt + j}:{Gt + j + 1}]")
            for j in range(0, n, 2):
                A(f"v_pk_fma_f32 v[{Zt + j}:{Zt + j + 1}], v[{Zt + j}:{Zt + j + 1}], v[{V_C}:{V_C + 1}], v[{V_C}:{V_C + 1}] op_sel:[0,0,1] op_sel_hi:[1,0,1]")
            for j in range(0, n, 2):
                A(f"v_pk_mul_f32 v[{Zt + j}:{Zt + j + 1}], v[{Zt + j}:{Zt + j + 1}], v[{Gt + j}:{Gt + j + 1}]")
            for j in range(n):
                A(f"v_exp_f32 v{Zt + j}, v{Zt + j}")
            for j, (ga, ua) in enumerate(srcs):
                A(f"v_accvgpr_read_b32 v{Ut + j}, a{ua}")
            for j in range(0, n, 2):
                A(f"v_pk_add_f32 v[{Zt + j}:{Zt + j + 1}], v[{Zt + j}:{Zt + j + 1}], 1.0 op_sel_hi:[1,0]")
            for j in range(n):
                A(f"v_rcp_f32 v{Zt + j}, v{Zt + j}")
            for j in range(0, n, 2):
                A(f"v_pk_mul_f32 v[{Ut + j}:{Ut + j + 1}], v[{Ut + j}:{Ut + j + 1}], v[{Gt + j}:{Gt + j + 1}]")
            for j in range(0, n, 2):
                A(f"v_pk_mul_f32 v[{Ut + j}:{Ut + j + 1}], v[{Ut + j}:{Ut + j + 1}], v[{Zt + j}:{Zt + j + 1}]")
            for j in range(0, n, 2):
                A(f"v_cvt_pk_bf16_f32 v{out + j // 2}, v{Ut + j}, v{Ut + j + 1}")

        for pp in range(3):
            for b in range(4):
                srcs = [(accF(0, 2 * pp + hb, b).i + r, accF(1, 2 * pp + hb, b).i + r) for hb in range(2) for r in range(4)]
                o = OUT[nb & 1]; nb += 1
                gelu8(srcs, o)
                A(f"buffer_store_dwordx4 v[{o}:{o + 3}], v{V_L16}, s[{SRD_A2}:{SRD_A2 + 3}], s{T} offen offset:{b * 1024} {aux}")
            if pp < 2:
                A(f"s_add_u32 s{T}, s{T}, 4096")
        for b2 in range(2):
            srcs = [(accF(0, 6, 2 * b2 + hb).i + r, accF(1, 6, 2 * b2 + hb).i + r) for hb in range(2) for r in range(4)]
            o = OUT[nb & 1]; nb += 1
            gelu8(srcs, o)
            for hb in range(2):
                A(f"buffer_store_dwordx2 v[{o + 2 * hb}:{o + 2 * hb + 1}], v{V_L16}, s[{SRD_A2}:{SRD_A2 + 3}], s{T + 2} offen offset:{(2 * b2 + hb) * 1024} {aux}")
        self.st.stamp(A, "gelu")
        LB = V_SACC + 24
        va, vm_ = V_T, V_T + 1
        A(f"v_lshrrev_b32 v{va}, 4, v{V_LANE}")
        A(f"v_and_b32 v{vm_}, 15, v{V_LANE}")
        A(f"v_lshlrev_b32 v{va}, 11, v{va}")
        A(f"v_lshl_add_u32 v{va}, v{vm_}, 4, v{va}")
        A(f"s_sub_u32 s{T + 3}, 32, s{S_G}")
        A(f"s_lshl_b32 s{T + 3}, s{T + 3}, 8")
        A(f"v_add_u32 v{va}, s{T + 3}, v{va}")
        A(f"s_mov_b32 s{T + 4}, 0")
        A("L1_poll:")
        for e in range(8):
            A(f"buffer_load_dwordx4 v[{LB + 4 * e}:{LB + 4 * e + 3}], v{va}, s[{SRD_AG}:{SRD_AG + 3}], 0 offen offset:{e * 256} sc1")
        A(f"s_add_u32 s{T + 4}, s{T + 4}, 1")
        A("s_waitcnt vmcnt(0)")
        A(f"v_max_u32 v{vm_}, v{LB}, v{LB + 1}")
        for j in range(2, 32, 2):
            A(f"v_max3_u32 v{vm_}, v{vm_}, v{LB + j}, v{LB + j + 1}")
        A(f"v_cmp_eq_u32 vcc, -1, v{vm_}")
        A(f"s_cmp_gt_u32 s{T + 4}, 0x40000")
        A("s_cbranch_scc1 L1_polldone")
        A("s_cbranch_vccnz L1_poll")
        A("L1_polldone:")
        for e in range(6, -1, -1):
            A(interleave(*[cmul_add(LB + 4 * e + 2 * sb, par(sb, P_L64), LB + 4 * (e + 1) + 2 * sb, LB + 4 * e + 2 * sb) for sb in range(2)]))
        Sx, St = LB + 4, LB + 8
        A(interleave(*[cmul(Sx + 2 * sb, par(sb, P_L512Q), LB + 2 * sb) for sb in range(2)]))
        for swp in ["v_permlane32_swap_b32", "v_permlane16_swap_b32"]:
            for j in range(4):
                A(f"v_mov_b32 v{St + j}, v{Sx + j}")
            A("s_nop 1")
            for j in range(4):
                A(f"{swp} v{Sx + j}, v{St + j}")
            for j in range(0, 4, 2):
                A(f"v_pk_add_f32 v[{Sx + j}:{Sx + j + 1}], v[{Sx + j}:{Sx + j + 1}], v[{St + j}:{St + j + 1}]")
        A(interleave(*[cmul_add(PQ + 2 * sb, par(sb, P_L16Q), Sx + 2 * sb, PQ + 2 * sb) for sb in range(2)]))
        cur = [PQ, PQ + 2]
        for tau in range(16):
            A(interleave(*[cmul_add(u(sb, tau), par(sb, P_L1), cur[sb], u(sb, tau)) for sb in range(2)]))
            cur = [u(0, tau), u(1, tau)]
        vw, vrd = V_T + 2, V_T + 3
        A(f"v_and_b32 v{vw}, 15, v{V_LANE}")
        A(f"v_lshrrev_b32 v{vrd}, 4, v{V_LANE}")
        A(f"v_lshlrev_b32 v{vw}, 5, v{vw}")
        A(f"v_lshl_add_u32 v{vw}, v{vrd}, 3, v{vw}")
        A(f"s_lshl_b32 s{T + 3}, s{S_W}, 13")
        A(f"v_add_u32 v{vw}, s{T + 3}, v{vw}")
        A(f"v_lshlrev_b32 v{vrd}, 8, v{vrd}")
        A(f"v_and_b32 v{va}, 15, v{V_LANE}")
        A(f"v_lshl_add_u32 v{vrd}, v{va}, 3, v{vrd}")
        A(f"v_add_u32 v{vrd}, s{T + 3}, v{vrd}")
        PK = V_SACC
        k = 0
        for ri in range(2):
            ng = "-" if ri else ""
            for b in range(4):
                for sb in range(2):
                    d = PK + 2 * k; k += 1
                    A(f"v_cvt_pk_bf16_f32 v{d}, {ng}v{u(sb, b) + ri}, {ng}v{u(sb, 4 + b) + ri}")
                    A(f"v_cvt_pk_bf16_f32 v{d + 1}, {ng}v{u(sb, 8 + b) + ri}, {ng}v{u(sb, 12 + b) + ri}")
                    A(f"ds_write_b64 v{vw}, v[{d}:{d + 1}] offset:{(ri * 4 + b) * 1024 + sb * 512}")
        A(f"s_lshl_b32 s{T}, s{S_g}, 13")
        A(f"s_add_u32 s{T}, s{T}, {112 * 4096}")
        A(f"s_add_u32 s{T}, s{T}, s{T + 1}")
        A(f"s_add_u32 s{T + 2}, s{T}, 4096")
        FR = V_SACC + 32
        A("s_waitcnt lgkmcnt(0)")
        for ri in range(2):
            for b in range(4):
                d = FR + (ri * 4 + b) * 4
                for h in range(2):
                    A(f"ds_read_b64_tr_b16 v[{d + 2 * h}:{d + 2 * h + 1}], v{vrd} offset:{(ri * 4 + b) * 1024 + h * 128}")
        for ri in range(2):
            for b in range(4):
                d = FR + (ri * 4 + b) * 4
                A(f"s_waitcnt lgkmcnt({14 - 2 * (ri * 4 + b)})")
                A(f"buffer_store_dwordx4 v[{d}:{d + 3}], v{V_L16}, s[{SRD_A2}:{SRD_A2 + 3}], s{T + 2 * ri} offen offset:{b * 1024} {aux}")
        if self.opt.get("diag"):
            A("s_waitcnt vmcnt(0)")
        self.st.dump(A, S_WSP, S_W, V_E, 84)

    def gen(self):
        A = self.A
        self.prologue()
        texts = []
        for it in range(3):
            sub = Asm(); self.A = sub
            self.step(2 * it, True, True, True)
            self.step(2 * it + 1, True, True, True)
            texts.append(sub.l)
        self.A = A
        assert texts[1] == texts[2], "loop not in steady state"
        assert texts[0] == texts[1], "first iteration differs from steady state"
        A(f"s_mov_b32 s{S_IT}, 0")
        A(".p2align 6")
        A("L1_loop:")
        A(texts[1])
        A(f"s_add_u32 s{S_IT}, s{S_IT}, 1")
        A(f"s_cmp_lt_u32 s{S_IT}, 7")
        A("s_cbranch_scc1 L1_loop")
        self.step(6, True, False, True)
        self.step(7, False, False, False)
        A("s_nop 7")
        self.epilogue()
        A("L1_end:")
        A("s_endpgm")
        return dict(text=kernel_head(self.name) + A.text(), desc=kernel_desc(self.name, 512, 256), lds=STAGE * NST, grid=256, block=256, stamps=self.st.names)


def gen_k1(name, opt):
    return K1(name, opt).gen()
```

```python
from gen_common import *

STAGE = 32768
NST = 4
L_X = STAGE * NST
NF, NS = 7, 4
NSTEP = NF + NS

S_WSP = 80
SRD_D = 4
SRD_C = 8
SRD_A = 12
SRD_P = 16
SRD_FL = 20
SRD_O = 24
SRD_T = 28
S_W, S_G, S_mt, S_nt, S_s, S_tile = 32, 33, 34, 35, 36, 37
S_AOFF = 38
S_DOFF = 39
S_DB = 40
S_T = 44

V_LANE = 1
V_L16 = 2
V_FO = 3
V_SO = 11
V_RF = 20
V_RS = 28
V_T = 30
V_W = 40
V_ST = 72
V_DK = 80
V_E = 84
V_ACC = 128


def acc(jl, b):
    return V_ACC + (jl * 4 + b) * 4


class K2:
    def __init__(self, name, opt):
        self.name = name
        self.opt = opt
        self.A = Asm()
        self.vm = Cnt("vm", 63)
        self.lg = Cnt("lgkm", 15)
        self.PD = opt.get("k2_pd", 4)
        self.NR = 8
        self.st = Stamps(opt.get("diag"), 60, 2)

    def wreg(self, f):
        return V_W + 4 * (f % self.NR)

    def areg(self, s, kb, b):
        return (((s & 1) * 4 + kb) * 4 + b) * 4

    def rd_instrs(self, s, f):
        kb, jl = f // 8, f % 8
        w = self.wreg(f)
        so = (s & 1) * STAGE
        if s < NF:
            return [f"ds_read_b64_tr_b16 v[{w + 2 * h}:{w + 2 * h + 1}], v{V_RF + jl} offset:{so + kb * 8192 + h * 4096}" for h in range(2)]
        ri, half = kb & 1, kb >> 1
        return [f"ds_read_b128 v[{w}:{w + 3}], v{V_RS + half} offset:{so + ri * 16384 + jl * 2048}"]

    def a_load(self, s, kb, b):
        a = self.areg(s, kb, b)
        aux = self.opt.get("k2_a_aux", "")
        return f"buffer_load_dwordx4 a[{a}:{a + 3}], v{V_L16}, s[{SRD_A}:{SRD_A + 3}], s{S_AOFF} offen offset:{b * 1024} {aux}"

    def a_adv(self, s, kb):
        if s == NF - 1 and kb == 3:
            return f"s_mov_b32 s{S_AOFF}, s{S_T + 12}"
        return f"s_add_u32 s{S_AOFF}, s{S_AOFF}, 4096"

    def dma(self, t, e):
        aux = self.opt.get("k2_w_aux", "")
        m = f"s_add_u32 m0, s{S_DB}, {(t % NST) * STAGE + e * 1024}"
        if t < NF:
            return m, f"buffer_load_dwordx4 v{V_FO + e}, s[{SRD_D}:{SRD_D + 3}], s{S_DOFF} offen {aux} lds"
        return m, f"buffer_load_dwordx4 v{V_SO + e}, s[{SRD_C}:{SRD_C + 3}], s{S_DOFF} offen {aux} lds"

    def d_adv(self, t):
        if t == NF - 1:
            return f"s_mov_b32 s{S_DOFF}, s{S_T + 13}"
        return f"s_add_u32 s{S_DOFF}, s{S_DOFF}, {128 * 2048 if t < NF else 128}"

    def step(self, s):
        A, PD = self.A, self.PD
        do_a = s + 1 < NSTEP
        do_dma = s + 2 < NSTEP
        do_next = s + 1 < NSTEP
        vops = []
        if do_a:
            for kb in range(4):
                for b in range(4):
                    vops.append((None, self.a_load(s + 1, kb, b), ("A", s + 1, kb), self.a_adv(s + 1, kb) if b == 3 else None))
        if do_dma:
            for e in range(8):
                m, ld = self.dma(s + 2, e)
                vops.append((m, ld, ("D", s + 2), self.d_adv(s + 2) if e == 7 else None))
        slots = [g for g in range(32) if g % 4 != 3]
        vslot = {slots[i]: op for i, op in enumerate(vops)}
        for f in range(32):
            kb, jl = f // 8, f % 8
            vmw = None
            if jl == 0:
                vmw = self.vm.need(("A", s, kb))
            nxt = f + PD
            bar = do_next and nxt == 32
            if bar:
                w2 = self.vm.need(("D", s + 1))
                vmw = w2 if w2 is not None else vmw
            lw = self.lg.need(("W", s, f))
            A(waitcnt(vmw, lw))
            if bar:
                A("s_barrier")
            fill = [[], [], [], []]
            rds = []
            if nxt < 32:
                rds = [(i, ("W", s, nxt)) for i in self.rd_instrs(s, nxt)]
            elif do_next:
                rds = [(i, ("W", s + 1, nxt - 32)) for i in self.rd_instrs(s + 1, nxt - 32)]
            if do_next and (s & 1) == 1:
                if s + 1 < NF:
                    j = f + PD - 24
                    if 0 <= j < 8:
                        fill[2].append(f"v_xor_b32 v{V_RF + j}, 0x10000, v{V_RF + j}")
                elif s >= NF:
                    if f + PD == 24:
                        fill[2].append(f"v_xor_b32 v{V_RS}, 0x10000, v{V_RS}")
                    if f + PD == 31:
                        fill[2].append(f"v_xor_b32 v{V_RS + 1}, 0x10000, v{V_RS + 1}")
            for i, (ins, tag) in enumerate(rds):
                fill[i].insert(0, (ins, "lg", tag))
            if f in vslot:
                pre, ins, tag, post = vslot[f]
                if pre:
                    fill[1].append(pre)
                fill[2].append((ins, "vm", tag))
                if post:
                    fill[3].append(post)
            w = self.wreg(f)
            for b in range(4):
                a = self.areg(s, kb, b)
                c = acc(jl, b)
                src_c = "0" if (s == 0 and kb == 0) else f"v[{c}:{c + 3}]"
                A(f"v_mfma_f32_16x16x32_bf16 v[{c}:{c + 3}], v[{w}:{w + 3}], a[{a}:{a + 3}], {src_c}")
                for it in fill[b]:
                    if isinstance(it, tuple):
                        A(it[0])
                        (self.lg if it[1] == "lg" else self.vm).issue(it[2])
                    else:
                        A(it)

    def prologue(self):
        A, PD = self.A, self.PD
        T = S_T
        A("s_cmp_ge_u32 s2, 256")
        A("s_cbranch_scc1 L2_end")
        self.st.start(A)
        A(f"s_load_dwordx4 s[{T}:{T + 3}], s[0:1], {KA['wd']}")
        A(f"s_load_dwordx4 s[{T + 4}:{T + 7}], s[0:1], {KA['Cre']}")
        A(f"s_load_dwordx2 s[{T + 8}:{T + 9}], s[0:1], {KA['x']}")
        A(f"s_load_dwordx2 s[{T + 10}:{T + 11}], s[0:1], {KA['Dskip']}")
        A(f"s_load_dwordx2 s[{S_WSP}:{S_WSP + 1}], s[0:1], {KA['ws']}")
        A(f"v_lshrrev_b32 v{V_T}, 6, v0")
        A(f"v_and_b32 v{V_LANE}, 63, v0")
        A(f"v_readfirstlane_b32 s{S_W}, v{V_T}")
        A(f"v_lshlrev_b32 v{V_L16}, 4, v{V_LANE}")
        mp = self.opt.get("k2_map", "ksplit")
        if mp == "ksplit":
            A(f"s_and_b32 s{S_s}, s2, 3")
            A(f"s_and_b32 s{S_mt}, s2, 4")
            A(f"s_lshr_b32 s{S_nt}, s2, 6")
            A(f"s_add_u32 s{S_mt}, s{S_mt}, s{S_nt}")
            A(f"s_bfe_u32 s{S_nt}, s2, 0x30003")
        else:
            A(f"s_bfe_u32 s{S_s}, s2, 0x20003")
            A(f"s_and_b32 s{S_mt}, s2, 6")
            A(f"s_bfe_u32 s{S_nt}, s2, 0x10005")
            A(f"s_add_u32 s{S_mt}, s{S_mt}, s{S_nt}")
            A(f"s_and_b32 s{S_nt}, s2, 1")
            A(f"s_lshl_b32 s{S_nt}, s{S_nt}, 2")
            A(f"s_lshr_b32 s{S_tile}, s2, 6")
            A(f"s_add_u32 s{S_nt}, s{S_nt}, s{S_tile}")
        A(f"s_lshl_b32 s{S_tile}, s{S_mt}, 3")
        A(f"s_add_u32 s{S_tile}, s{S_tile}, s{S_nt}")
        A(f"s_lshl_b32 s{S_G}, s{S_mt}, 2")
        A(f"s_add_u32 s{S_G}, s{S_G}, s{S_W}")
        t0, t1, t2, t3 = V_T, V_T + 1, V_T + 2, V_T + 3
        A(f"v_lshrrev_b32 v{t0}, 4, v{V_LANE}")
        A(f"v_and_b32 v{t1}, 15, v{V_LANE}")
        A(f"s_lshl_b32 s{T + 14}, s{S_s}, 2")
        for e in range(2):
            A(f"v_add_u32 v{t2}, {4 * e}, v{t0}")
            A(f"v_lshlrev_b32 v{t3}, 1, v{t2}")
            A(f"v_xor_b32 v{t3}, v{t3}, v{t1}")
            A(f"v_add_u32 v{t3}, s{T + 14}, v{t3}")
            A(f"v_and_b32 v{t3}, 15, v{t3}")
            A(f"v_lshlrev_b32 v{t3}, 4, v{t3}")
            A(f"v_lshl_add_u32 v{V_FO + e}, v{t2}, 11, v{t3}")
        for e in range(2, 8):
            A(f"v_add_u32 v{V_FO + e}, {(e // 2) * 8 * 2048}, v{V_FO + (e & 1)}")
        A(f"v_lshrrev_b32 v{t0}, 3, v{V_LANE}")
        A(f"v_and_b32 v{t1}, 7, v{V_LANE}")
        A(f"s_and_b32 s{T + 14}, s{S_W}, 1")
        A(f"s_lshl_b32 s{T + 14}, s{T + 14}, 1")
        A(f"s_add_u32 s{T + 14}, s{T + 14}, s{S_s}")
        A(f"s_lshl_b32 s{T + 14}, s{T + 14}, 5")
        for e in range(8):
            A(f"v_add_u32 v{t2}, {8 * e}, v{t0}")
            A(f"v_bfe_u32 v{t3}, v{t2}, 1, 3")
            A(f"v_xor_b32 v{t3}, v{t3}, v{t1}")
            A(f"v_lshlrev_b32 v{t3}, 4, v{t3}")
            A(f"v_add_u32 v{t2}, s{T + 14}, v{t2}")
            A(f"v_and_b32 v{t2}, 127, v{t2}")
            A(f"v_lshl_add_u32 v{V_SO + e}, v{t2}, 11, v{t3}")
        A(f"s_mul_i32 s{S_AOFF}, s{S_G}, {A2_G}")
        A(f"s_lshl_b32 s{T + 14}, s{S_s}, 16")
        A(f"s_add_u32 s{T + 12}, s{S_AOFF}, s{T + 14}")
        A(f"s_add_u32 s{T + 12}, s{T + 12}, {112 * 4096}")
        A(f"s_mul_i32 s{T + 14}, s{S_s}, {28 * 4096}")
        A(f"s_add_u32 s{S_AOFF}, s{S_AOFF}, s{T + 14}")
        A(f"s_mul_i32 s{S_DOFF}, s{S_s}, {896 * 2048}")
        A(f"s_lshl_b32 s{T + 14}, s{S_W}, 16")
        A(f"s_add_u32 s{S_DOFF}, s{S_DOFF}, s{T + 14}")
        A(f"s_lshl_b32 s{T + 14}, s{S_nt}, 8")
        A(f"s_add_u32 s{S_DOFF}, s{S_DOFF}, s{T + 14}")
        A(f"s_lshl_b32 s{T + 13}, s{S_nt}, 18")
        A(f"s_lshl_b32 s{T + 14}, s{S_s}, 9")
        A(f"s_add_u32 s{T + 13}, s{T + 13}, s{T + 14}")
        A(f"s_lshl_b32 s{S_DB}, s{S_W}, 13")
        A("s_waitcnt lgkmcnt(0)")
        srd(A, SRD_D, T, 0, 3584 * 2048)
        srd(A, SRD_A, S_WSP, WS_A2, A2_SIZE)
        for e in range(8):
            m, ld = self.dma(0, e)
            A(m); A("s_nop 0"); A(ld); self.vm.issue(("D", 0))
        A(self.d_adv(0))
        for kb in range(4):
            for b in range(4):
                A(self.a_load(0, kb, b)); self.vm.issue(("A", 0, kb))
            A(self.a_adv(0, kb))
        for e in range(8):
            m, ld = self.dma(1, e)
            A(m); A("s_nop 0"); A(ld); self.vm.issue(("D", 1))
        A(self.d_adv(1))
        A(f"s_cmp_lt_u32 s{S_W}, 2")
        A(f"s_cselect_b32 s{SRD_C}, s{T + 4}, s{T + 6}")
        A(f"s_cselect_b32 s{SRD_C + 1}, s{T + 5}, s{T + 7}")
        A(f"s_mov_b32 s{SRD_C + 2}, {1024 * 2048}")
        A(f"s_mov_b32 s{SRD_C + 3}, 0x20000")
        srd(A, SRD_P, S_WSP, WS_PART, PART_SIZE)
        srd(A, SRD_FL, S_WSP, WS_FLAG, 0x20000)
        srd(A, SRD_O, T + 2, 0, 2048 * 4096)
        srd(A, SRD_T, T + 8, 0, 2048 * 2048)
        A(f"v_lshrrev_b32 v{t0}, 2, v{V_LANE}")
        A(f"v_and_b32 v{t1}, 3, v{V_LANE}")
        A(f"v_lshlrev_b32 v{t1}, 4, v{t1}")
        A(f"v_lshl_add_u32 v{t0}, v{t0}, 13, v{t1}")
        A(f"s_lshl_b32 s{T + 14}, s{S_nt}, 2")
        A(f"s_add_u32 s{T + 14}, s{T + 14}, s{S_s}")
        A(f"s_lshl_b32 s{T + 15}, s{T + 14}, 6")
        A(f"s_lshl_b32 s{T + 4}, s{S_G}, 17")
        A(f"s_add_u32 s{T + 4}, s{T + 4}, s{T + 15}")
        A(f"s_lshl_b32 s{T + 5}, s{S_W}, 12")
        for b in range(4):
            A(f"s_add_u32 m0, s{T + 5}, {L_X + b * 1024}")
            A("s_nop 0")
            A(f"buffer_load_dwordx4 v{t0}, s[{SRD_T}:{SRD_T + 3}], s{T + 4} offen lds"); self.vm.issue("res")
            A(f"s_add_u32 s{T + 4}, s{T + 4}, 2048")
        q, i = V_T + 4, V_T + 5
        A(f"v_lshrrev_b32 v{q}, 4, v{V_LANE}")
        A(f"v_and_b32 v{i}, 15, v{V_LANE}")
        srd(A, SRD_T, T + 10, 0, 2048)
        A(f"v_lshlrev_b32 v{t1}, 3, v{q}")
        for jl in range(2):
            A(f"buffer_load_dwordx2 v[{V_DK + 2 * jl}:{V_DK + 2 * jl + 1}], v{t1}, s[{SRD_T}:{SRD_T + 3}], s{T + 15} offen offset:{32 * jl}"); self.vm.issue("res")
        srd(A, SRD_T, S_WSP, WS_STATS, 0x4000)
        A(f"v_lshlrev_b32 v{t2}, 5, v{i}")
        A(f"s_lshl_b32 s{T + 4}, s{S_G}, 9")
        for j in range(2):
            A(f"buffer_load_dwordx4 v[{V_ST + 4 * j}:{V_ST + 4 * j + 3}], v{t2}, s[{SRD_T}:{SRD_T + 3}], s{T + 4} offen offset:{16 * j}"); self.vm.issue("res")
        r, c = V_T + 6, V_T + 7
        A(f"v_bfe_u32 v{r}, v{V_LANE}, 2, 4")
        A(f"v_and_b32 v{c}, 3, v{V_LANE}")
        A(f"v_lshlrev_b32 v{t0}, 8, v{r}")
        A(f"v_lshl_add_u32 v{t0}, v{c}, 3, v{t0}")
        A(f"v_and_b32 v{t3}, 7, v{r}")
        A(f"v_lshl_add_u32 v{t0}, v{t3}, 5, v{t0}")
        for jl in range(8):
            A(f"v_xor_b32 v{V_RF + jl}, {jl * 32}, v{t0}")
        A(f"v_lshrrev_b32 v{t0}, 1, v{i}")
        A(f"v_xor_b32 v{t0}, v{t0}, v{q}")
        A(f"v_lshlrev_b32 v{t0}, 4, v{t0}")
        A(f"v_lshl_add_u32 v{t0}, v{i}, 7, v{t0}")
        assert (NF % NST) >> 1 == 1
        A(f"v_add_u32 v{V_RS}, 0x10000, v{t0}")
        A(f"v_xor_b32 v{V_RS + 1}, 64, v{V_RS}")
        A(waitcnt(self.vm.need(("D", 0))))
        A("s_barrier")
        self.st.stamp(A, "tile0")
        for f in range(PD):
            for ins in self.rd_instrs(0, f):
                A(ins); self.lg.issue(("W", 0, f))

    def epilogue(self):
        A = self.A
        T = S_T
        self.st.stamp(A, "loopend")
        q, i = V_T + 4, V_T + 5
        A("s_nop 7")
        nb = 0
        for d in range(1, 4):
            A(f"s_add_u32 s{T}, s{S_s}, {d}")
            A(f"s_and_b32 s{T}, s{T}, 3")
            A(f"s_lshl_b32 s{T + 1}, s{S_tile}, 2")
            A(f"s_add_u32 s{T}, s{T}, s{T + 1}")
            A(f"s_mul_i32 s{T}, s{T}, 3")
            A(f"s_add_u32 s{T}, s{T}, {d - 1}")
            A(f"s_lshl_b32 s{T}, s{T}, 2")
            A(f"s_add_u32 s{T}, s{T}, s{S_W}")
            A(f"s_lshl_b32 s{T}, s{T}, 12")
            for b in range(4):
                o = V_W + 4 * (nb % 8); nb += 1
                for hb in range(2):
                    c = acc(2 * d + hb, b)
                    A(f"v_cvt_pk_bf16_f32 v{o + 2 * hb}, v{c}, v{c + 1}")
                    A(f"v_cvt_pk_bf16_f32 v{o + 2 * hb + 1}, v{c + 2}, v{c + 3}")
                A(f"buffer_store_dwordx4 v[{o}:{o + 3}], v{V_L16}, s[{SRD_P}:{SRD_P + 3}], s{T} offen offset:{b * 1024} sc1")
        xr = V_T
        A(f"v_lshlrev_b32 v{xr}, 6, v{i}")
        A(f"v_lshl_add_u32 v{xr}, v{q}, 3, v{xr}")
        A(f"s_lshl_b32 s{T + 5}, s{S_W}, 12")
        A(f"s_add_u32 s{T + 5}, s{T + 5}, {L_X}")
        A(f"v_add_u32 v{xr}, s{T + 5}, v{xr}")
        XR = V_E
        for b in range(4):
            for jl in range(2):
                d = XR + (b * 2 + jl) * 2
                A(f"ds_read_b64 v[{d}:{d + 1}], v{xr} offset:{b * 1024 + jl * 32}")
        DK = V_E + 16
        for j in range(4):
            A(f"v_lshlrev_b32 v{DK + 2 * j}, 16, v{V_DK + j}")
            A(f"v_and_b32 v{DK + 2 * j + 1}, 0xffff0000, v{V_DK + j}")
        XF, XD = V_E + 24, V_E + 28
        A("s_waitcnt lgkmcnt(0)")
        for b in range(4):
            st = V_ST + 2 * b
            for jl in range(2):
                d = XR + (b * 2 + jl) * 2
                c = acc(jl, b)
                for j in range(2):
                    A(f"v_lshlrev_b32 v{XF + 2 * j}, 16, v{d + j}")
                    A(f"v_and_b32 v{XF + 2 * j + 1}, 0xffff0000, v{d + j}")
                for j in range(2):
                    A(f"v_pk_add_f32 v[{XD + 2 * j}:{XD + 2 * j + 1}], v[{XF + 2 * j}:{XF + 2 * j + 1}], v[{st}:{st + 1}] op_sel_hi:[1,0] neg_lo:[0,1] neg_hi:[0,1]")
                for j in range(2):
                    A(f"v_pk_mul_f32 v[{XD + 2 * j}:{XD + 2 * j + 1}], v[{XD + 2 * j}:{XD + 2 * j + 1}], v[{st}:{st + 1}] op_sel:[0,1]")
                for j in range(2):
                    k = DK + 4 * jl + 2 * j
                    A(f"v_pk_fma_f32 v[{XF + 2 * j}:{XF + 2 * j + 1}], v[{XD + 2 * j}:{XD + 2 * j + 1}], v[{k}:{k + 1}], v[{XF + 2 * j}:{XF + 2 * j + 1}]")
                for j in range(2):
                    A(f"v_pk_add_f32 v[{c + 2 * j}:{c + 2 * j + 1}], v[{c + 2 * j}:{c + 2 * j + 1}], v[{XF + 2 * j}:{XF + 2 * j + 1}]")
        fo, one = V_T + 1, V_T + 2
        A(f"s_add_u32 s{T}, s{S_s}, 1")
        A(f"v_add_u32 v{fo}, s{T}, v{V_LANE}")
        A(f"v_and_b32 v{fo}, 3, v{fo}")
        A(f"v_lshlrev_b32 v{fo}, 9, v{fo}")
        A(f"v_lshl_add_u32 v{fo}, v{V_LANE}, 2, v{fo}")
        A(f"v_mov_b32 v{one}, 1")
        A(f"s_lshl_b32 s{T}, s{S_tile}, 11")
        A(f"s_lshl_b32 s{T + 1}, s{S_W}, 7")
        A(f"s_add_u32 s{T}, s{T}, s{T + 1}")
        A("s_waitcnt vmcnt(0)")
        A("s_mov_b64 exec, 7")
        A(f"buffer_store_dword v{one}, v{fo}, s[{SRD_FL}:{SRD_FL + 3}], s{T} offen sc1")
        A("s_mov_b64 exec, -1")
        self.st.stamp(A, "sent")
        A(f"s_lshl_b32 s{T + 1}, s{S_s}, 9")
        A(f"s_add_u32 s{T}, s{T}, s{T + 1}")
        A(f"v_mov_b32 v{fo}, 0")
        A(f"s_mov_b32 s{T + 4}, 0")
        FL = V_E
        A("L2_poll:")
        A(f"buffer_load_dwordx3 v[{FL}:{FL + 2}], v{fo}, s[{SRD_FL}:{SRD_FL + 3}], s{T} offen sc1")
        A(f"s_add_u32 s{T + 4}, s{T + 4}, 1")
        A("s_waitcnt vmcnt(0)")
        A(f"v_min3_u32 v{FL}, v{FL}, v{FL + 1}, v{FL + 2}")
        A(f"v_cmp_eq_u32 vcc, 0, v{FL}")
        A(f"s_cmp_gt_u32 s{T + 4}, 0x40000")
        A("s_cbranch_scc1 L2_polldone")
        A("s_cbranch_vccnz L2_poll")
        A("L2_polldone:")
        self.st.stamp(A, "polled")
        A(f"s_lshl_b32 s{T}, s{S_tile}, 2")
        A(f"s_add_u32 s{T}, s{T}, s{S_s}")
        A(f"s_mul_i32 s{T}, s{T}, {3 * 16384}")
        A(f"s_lshl_b32 s{T + 1}, s{S_W}, 12")
        A(f"s_add_u32 s{T}, s{T}, s{T + 1}")
        A(f"s_add_u32 s{T + 1}, s{T}, 16384")
        A(f"s_add_u32 s{T + 2}, s{T}, 32768")
        RX = acc(2, 0)
        for b in range(4):
            for sc in range(3):
                d = RX + (b * 3 + sc) * 4
                A(f"buffer_load_dwordx4 v[{d}:{d + 3}], v{V_L16}, s[{SRD_P}:{SRD_P + 3}], s{T + sc} offen offset:{b * 1024} sc1")
        vo = V_T
        A(f"v_lshlrev_b32 v{vo}, 14, v{i}")
        A(f"v_lshl_add_u32 v{vo}, v{q}, 4, v{vo}")
        A(f"s_lshl_b32 s{T + 4}, s{S_G}, 18")
        A(f"s_lshl_b32 s{T + 5}, s{T + 14}, 7")
        A(f"s_add_u32 s{T + 4}, s{T + 4}, s{T + 5}")
        aux = self.opt.get("k2_st", "")
        TM = V_E
        for b in range(4):
            A(f"s_waitcnt vmcnt({9 - 3 * b + 2 * b})")
            for sc in range(3):
                d = RX + (b * 3 + sc) * 4
                for j in range(4):
                    A(f"v_lshlrev_b32 v{TM + 2 * j}, 16, v{d + j}")
                    A(f"v_and_b32 v{TM + 2 * j + 1}, 0xffff0000, v{d + j}")
                for j in range(4):
                    c = acc(j >> 1, b) + 2 * (j & 1)
                    A(f"v_pk_add_f32 v[{c}:{c + 1}], v[{c}:{c + 1}], v[{TM + 2 * j}:{TM + 2 * j + 1}]")
            for jl in range(2):
                c = acc(jl, b)
                A(f"buffer_store_dwordx4 v[{c}:{c + 3}], v{vo}, s[{SRD_O}:{SRD_O + 3}], s{T + 4} offen offset:{jl * 64} {aux}")
            if b < 3:
                A(f"s_add_u32 s{T + 4}, s{T + 4}, 4096")
        if self.opt.get("diag"):
            A("s_waitcnt vmcnt(0)")
        self.st.dump(A, S_WSP, S_W, V_E, 84)

    def gen(self):
        A = self.A
        self.prologue()
        for s in range(NSTEP):
            self.step(s)
        self.epilogue()
        A("L2_end:")
        A("s_endpgm")
        return dict(text=kernel_head(self.name) + A.text(), desc=kernel_desc(self.name, 384, 256), lds=L_X + 16384, grid=256, block=256, stamps=self.st.names)


def gen_k2(name, opt):
    return K2(name, opt).gen()
```

```python
import sys, json
from gen_common import *
import gen_k0, gen_k1, gen_k2

NAME = "parallel_sum__ssm_conv_s5__geglu_ffn__prompt"

def build(opt):
    ks = [("ln_kernel", gen_k0.gen_k0), ("gemm1_kernel", gen_k1.gen_k1), (NAME + "_kernel", gen_k2.gen_k2)]
    parts = [(n, f(n, opt)) for n, f in ks]
    hdr = [l for l in open("cdna_kernels/" + NAME + ".s.ref").read().split("\n") if l.startswith(";") and "@launch" not in l and "Override launch" not in l and "grid=ceil" not in l]
    out = "\n".join(hdr) + "\n"
    for n, p in parts:
        out += f"; @launch kernel={n} grid=({p['grid']},1,1) block=({p['block']},1,1) lds={p['lds']}\n"
    out += '.amdgcn_target "amdgcn-amd-amdhsa--gfx950"\n.text\n'
    for n, p in parts:
        out += p["text"]
    out += '.section .rodata,"a"\n'
    for n, p in parts:
        out += ".p2align 6\n" + p["desc"]
    return out, {n: p["stamps"] for n, p in parts}

if __name__ == "__main__":
    opt = json.loads(sys.argv[2]) if len(sys.argv) > 2 else {}
    txt, _ = build(opt)
    open(sys.argv[1], "w").write(txt)
    print("wrote", sys.argv[1], len(txt), "bytes")
```

```python
import struct

KA = dict(x=0, Lre=8, Lim=16, Bre=24, Bim=32, Cre=40, Cim=48, ldt=56, Dskip=64, Bx=72,
          wg=80, wu=88, wd=96, out=104, dbg=112, ws=120)

WS_XN = 0x0
WS_A2 = 0x400000
A2_G = 176 * 4096
A2_SIZE = 32 * A2_G
WS_STATS = 0x1A00000
WS_AGG = 0x1A10000
WS_FLAG = 0x1A50000
WS_PART = 0x1B00000
PART_SIZE = 64 * 4 * 3 * 4 * 4096
WS_STAMP = 0x4000000


def f2u(x):
    return struct.unpack("<I", struct.pack("<f", x))[0]


def hx(x):
    return "0x%x" % (x & 0xFFFFFFFF)


class Asm:
    def __init__(self):
        self.l = []

    def __call__(self, s):
        if isinstance(s, (list, tuple)):
            self.l.extend(s)
        else:
            self.l.append(s)

    def text(self):
        out = []
        for s in self.l:
            if s.endswith(":") or s.startswith("."):
                out.append(s)
            else:
                out.append("    " + s)
        return "\n".join(out) + "\n"


class Cnt:
    def __init__(self, name, maxv):
        self.q = []
        self.name = name
        self.maxv = maxv

    def issue(self, tag):
        self.q.append(tag)

    def need(self, *tags):
        idx = -1
        for i, t in enumerate(self.q):
            if t in tags:
                idx = i
        if idx < 0:
            return None
        n = len(self.q) - 1 - idx
        n = min(n, self.maxv)
        self.q = self.q[len(self.q) - n:] if n else []
        return n

    def drain(self):
        self.q = []


def waitcnt(vm=None, lgkm=None):
    p = []
    if vm is not None:
        p.append(f"vmcnt({vm})")
    if lgkm is not None:
        p.append(f"lgkmcnt({lgkm})")
    return ["s_waitcnt " + " ".join(p)] if p else []


def vr(base, n=1, t="v"):
    return f"{t}{base}" if n == 1 else f"{t}[{base}:{base + n - 1}]"


def sr(base, n=1):
    return vr(base, n, "s")


class R:
    def __init__(self, t, i):
        self.t = t
        self.i = i

    def __add__(self, k):
        return R(self.t, self.i + k)

    def r(self, n=1):
        return vr(self.i, n, self.t)


def srd(A, d, ptr, off, size):
    if off:
        A(f"s_add_u32 s{d}, s{ptr}, {hx(off)}")
        A(f"s_addc_u32 s{d + 1}, s{ptr + 1}, 0")
    else:
        A(f"s_mov_b32 s{d}, s{ptr}")
        A(f"s_mov_b32 s{d + 1}, s{ptr + 1}")
    A(f"s_mov_b32 s{d + 2}, {hx(size)}")
    A(f"s_mov_b32 s{d + 3}, 0x20000")


def kernel_head(name):
    return f".globl {name}\n.p2align 8\n.type {name},@function\n{name}:\n"


def kernel_desc(name, vgpr, accum, sgpr=102):
    return f""".amdhsa_kernel {name}
  .amdhsa_next_free_vgpr {vgpr}
  .amdhsa_next_free_sgpr {sgpr}
  .amdhsa_accum_offset {accum}
  .amdhsa_group_segment_fixed_size 0
  .amdhsa_kernarg_size 128
  .amdhsa_user_sgpr_count 2
  .amdhsa_user_sgpr_kernarg_segment_ptr 1
  .amdhsa_system_sgpr_workgroup_id_x 1
.end_amdhsa_kernel
"""


class Stamps:
    def __init__(self, on, kidx, only=None):
        self.on = on
        self.only = None if only is None else set(only) | {"start", "end"}
        self.n = 0
        self.kidx = kidx
        self.names = []

    def start(self, A):
        if self.on:
            A("s_memrealtime s[90:91]")
            A("s_waitcnt lgkmcnt(0)")
            A("s_mov_b32 s92, s90")
            A(self.stamp("start"))

    def stamp(self, name):
        if not self.on or (self.only is not None and name not in self.only):
            return []
        assert self.n < 10
        out = []
        if self.n:
            out.append(f"s_mov_b32 s{93 + self.n - 1}, s90")
        out.append(f"{'s_memrealtime' if self.on == 'rt' else 's_memtime'} s[90:91]")
        self.n += 1
        self.names.append(name)
        return out

    def dump(self, A, s_ws, s_wave, tmpv, tmps):
        if not self.on:
            return
        A("s_waitcnt vmcnt(0) lgkmcnt(0)")
        A(self.stamp("end"))
        A("s_waitcnt lgkmcnt(0)")
        A(f"v_mov_b32 v{tmpv + 1 + self.n}, s90")
        A("s_memrealtime s[90:91]")
        A("s_waitcnt lgkmcnt(0)")
        srd(A, tmps, s_ws, WS_STAMP + self.kidx * 0x10000, 0x10000)
        A(f"v_mov_b32 v{tmpv}, s92")
        A(f"v_mov_b32 v{tmpv + 1}, s90")
        for i in range(self.n - 1):
            A(f"v_mov_b32 v{tmpv + 2 + i}, s{93 + i}")
        A("s_lshl_b32 s90, s2, 2")
        A(f"s_add_u32 s90, s90, s{s_wave}")
        A("s_lshl_b32 s90, s90, 6")
        A(f"v_mov_b32 v{tmpv + 12}, s90")
        for j in range(3):
            A(f"buffer_store_dwordx4 v[{tmpv + 4 * j}:{tmpv + 4 * j + 3}], v{tmpv + 12}, s[{tmps}:{tmps + 3}], 0 offen offset:{16 * j}")
        A("s_waitcnt vmcnt(0)")
```

```python
import math
from gen_common import *
from sched import *
import hazard

LOG2E = 1.4426950408889634
ST1, NST = 36864, 4
T_UP, T_SSM = 14336, 28672
ST2 = 32768
L_X = ST1 * NST
L_H = 3 * ST2
NF, NS = 7, 4
NSTEP = NF + NS
FL_A = 0x20000

SRD_F, SRD_S, SRD_X, SRD_A2, SRD_AG, SRD_D, SRD_C, SRD_P, SRD_FL, SRD_O, SRD_T = 4, 8, 12, 16, 20, 24, 28, 32, 36, 40, 44
S_W, S_G, S_g, S_m, S_odd, S_sp, S_nt, S_tile = range(48, 56)
S_FOFF, S_SOFF, S_XOFF0, S_XOFF1, S_DF, S_DS, S_DST, S_DFS, S_DSS, S_RST, S_IT = range(56, 67)
S_AOFF, S_AEND, S_AOWN, S_ASSM, S_DOFF, S_DOWN, S_DSSM = range(67, 74)
S_DP = 3
S_GC = 74
S_WSP, S_XP, S_KP = 76, 78, 80
S_T = 82
S_DB, S_FA, S_HO, S_U0, S_U1, S_U2, S_U3, S_U4 = S_DF, S_DS, S_DST, S_FOFF, S_SOFF, S_XOFF0, S_XOFF1, S_DFS

V_LANE, V_L16 = 1, 2
V_FO, V_SO, V_RB, V_RD = 3, 10, 12, 16
V_PAR = 20
V_T = 44
V_RAW = 56
V_SACC = 64
V_FACC = 128
A_FACC, A_X, A_W = 0, 96, 160
V_FO2, V_RF, V_SO2, V_RS, V_SEL, V_FLG, V_T2 = 3, 12, 20, 28, 32, 38, 40
V_OWN, V_PK, V_FR = 128, 176, 208
A_BUF, A_W2, A_RES = 0, 192, 224
ACC2 = [48 + 4 * i for i in range(20)] + [176 + 4 * i for i in range(8)] + [240 + 4 * i for i in range(4)]

P_L1, P_L16, P_L64, P_L16Q, P_L512Q, P_CF = range(6)


def accF(t, jb, b):
    if jb < 4:
        return R("v", V_FACC + (t * 4 + jb) * 16 + b * 4)
    return R("a", A_FACC + (t * 3 + jb - 4) * 16 + b * 4)


def accS(ri, sb, b):
    return R("v", V_SACC + (sb * 4 + b) * 8 + ri * 4)


def uu(sb, tau):
    r, b = tau >> 2, tau & 3
    return V_SACC - 8 + (sb * 4 + b) * 8 + 2 * r


def par(sb, k):
    return V_PAR + sb * 12 + 2 * k


def acc2(jl, b):
    return ACC2[jl * 4 + b]


def own(p, b):
    return V_OWN + [0, 32, 16][p] + 4 * b


def cmul_add(dst, lam, h, add):
    return [
        f"v_pk_fma_f32 v[{dst}:{dst + 1}], v[{lam}:{lam + 1}], v[{h}:{h + 1}], v[{add}:{add + 1}] op_sel_hi:[1,0,1]",
        f"v_pk_fma_f32 v[{dst}:{dst + 1}], v[{lam}:{lam + 1}], v[{h}:{h + 1}], v[{dst}:{dst + 1}] op_sel:[1,1,0] op_sel_hi:[0,1,1] neg_lo:[1,0,0]",
    ]


def cmul(dst, lam, h):
    return [
        f"v_pk_mul_f32 v[{dst}:{dst + 1}], v[{lam}:{lam + 1}], v[{h}:{h + 1}] op_sel_hi:[1,0]",
        f"v_pk_fma_f32 v[{dst}:{dst + 1}], v[{lam}:{lam + 1}], v[{h}:{h + 1}], v[{dst}:{dst + 1}] op_sel:[1,1,0] op_sel_hi:[0,1,1] neg_lo:[1,0,0]",
    ]


def interleave(*lists):
    out = []
    for i in range(max(len(x) for x in lists)):
        for x in lists:
            if i < len(x):
                out.append(x[i])
    return out


def srd_items(d, ptr, off, size):
    A = Asm()
    srd(A, d, ptr, off, size)
    return [It(A.l[:2]), It(A.l[2]), It(A.l[3])]


class F:
    def __init__(self, name, opt):
        self.name, self.opt = name, opt
        self.A = Asm()
        self.vm, self.lg = Cnt("vm", 63), Cnt("lgkm", 15)
        self.PD = 4
        self.st = Stamps(opt.get("diag"), opt.get("kidx", 1), opt.get("stamps", "tile0 loopend gelu ssmfin faflag fapoll send1 rxdone").split())
        self.order = [("S", 0, 0), ("S", 1, 0), ("S", 0, 1), ("S", 1, 1)] + [("F", t, jb) for jb in range(7) for t in range(2)]
        self.spins = []

    def frag(self, f):
        return (f // 18,) + self.order[f % 18]

    def rd1(self, f):
        kk, kind, p, q = self.frag(f)
        w = A_W + 4 * (f % 6)
        if kind == "S":
            return [f"ds_read_b128 a[{w}:{w + 3}], v{V_RD + 2 + kk} offset:{T_SSM + p * 4096 + q * 2048}"]
        off = p * T_UP + kk * 7168 + (q * 32 if q < 6 else 0)
        a = V_RD + (0 if q < 6 else 1)
        return [f"ds_read_b64_tr_b16 a[{w + 2 * h}:{w + 2 * h + 1}], v{a} offset:{off + h * 1792}" for h in range(2)]

    def xreg(self, par_, kk, b):
        return A_X + ((par_ * 2 + kk) * 4 + b) * 4

    def x_load(self, par_, kk, b):
        x = self.xreg(par_, kk, b)
        return f"buffer_load_dwordx4 a[{x}:{x + 3}], v{V_L16}, s[{SRD_X}:{SRD_X + 3}], s{S_XOFF0 + kk} offen offset:{b * 1024}"

    def dma1(self, n):
        if n < 7:
            m = None if n & 3 else (f"s_add_u32 m0, s{S_DFS}, 4096" if n else f"s_mov_b32 m0, s{S_DFS}")
            return m, f"buffer_load_dwordx4 v{V_FO + n}, s[{SRD_F}:{SRD_F + 3}], s{S_FOFF} offen offset:{(n & 3) * 1024} lds"
        e = n - 7
        return (None if e else f"s_mov_b32 m0, s{S_DSS}"), f"buffer_load_dwordx4 v{V_SO + e}, s[{SRD_S}:{SRD_S + 3}], s{S_SOFF} offen offset:{e * 1024} lds"

    def dma1_adv(self):
        return [f"s_add_u32 s{S_FOFF}, s{S_FOFF}, {64 * 7168}",
                f"s_add_u32 s{S_SOFF}, s{S_SOFF}, 128",
                f"s_add_u32 s{S_DST}, s{S_DST}, {ST1}",
                [f"s_cmp_eq_u32 s{S_DST}, {ST1 * NST}", f"s_cselect_b32 s{S_DST}, 0, s{S_DST}"],
                f"s_add_u32 s{S_DFS}, s{S_DF}, s{S_DST}",
                f"s_add_u32 s{S_DSS}, s{S_DS}, s{S_DST}"]

    def x_adv(self):
        return [f"s_add_u32 s{S_XOFF0}, s{S_XOFF0}, 8192", f"s_add_u32 s{S_XOFF1}, s{S_XOFF1}, 8192"]

    def mfma1(self, s, f, b):
        kk, kind, p, q = self.frag(f)
        w = A_W + 4 * (f % 6)
        x = self.xreg(s & 1, kk, b)
        c = (accS(p, q, b) if kind == "S" else accF(p, q, b)).r(4)
        sc = "0" if (s == 0 and kk == 0) else c
        if kind == "S":
            return f"v_mfma_f32_16x16x32_bf16 {c}, a[{x}:{x + 3}], a[{w}:{w + 3}], {sc}"
        return f"v_mfma_f32_16x16x32_bf16 {c}, a[{w}:{w + 3}], a[{x}:{x + 3}], {sc}"

    def put_dma(self, S, m, ld, tag, at):
        if m:
            return S.dma(m, ld, tag, at)
        return S.place(It(ld, "vm", tag), at)

    def dma2(self, t, e):
        m = None if e & 3 else f"s_add_u32 m0, s{S_DB}, {(t % 4) * ST2 + e * 1024}"
        if t < NF:
            return m, f"buffer_load_dwordx4 v{V_FO2 + e}, s[{SRD_D}:{SRD_D + 3}], s{S_DOFF} offen offset:{(e & 3) * 1024} lds"
        return m, f"buffer_load_dwordx4 v{V_SO2 + e}, s[{SRD_C}:{SRD_C + 3}], s{S_DOFF} offen offset:{(e & 3) * 1024} lds"

    def dma2_adv(self, t):
        if t == NF - 1:
            return [f"s_mov_b32 s{S_DOFF}, s{S_DSSM}"]
        if t >= NF:
            return [f"s_add_u32 s{S_DOFF}, s{S_DOFF}, 128"]
        return [f"s_add_u32 s{S_DP}, s{S_DP}, {128 * 2048}",
                f"s_add_u32 s{S_T + 7}, s{S_DP}, {96 * 2048}",
                [f"s_cmp_ge_u32 s{S_DP}, s{S_DOWN}", f"s_cselect_b32 s{S_DOFF}, s{S_T + 7}, s{S_DP}"]]

    def areg(self, s, kb, b):
        if s == 0 and kb < 3:
            return R("v", own(kb, b))
        return R("a", A_BUF + ((s % 3) * 16 + kb * 4 + b) * 4)

    def a_load(self, s, kb, b):
        return f"buffer_load_dwordx4 {self.areg(s, kb, b).r(4)}, v{V_L16}, s[{SRD_A2}:{SRD_A2 + 3}], s{S_AOFF} offen offset:{b * 1024} {self.opt.get('a_aux', 'sc1')}"

    def a_adv(self, s, kb):
        if s == NF - 1 and kb == 3:
            return [f"s_mov_b32 s{S_AOFF}, s{S_ASSM}"]
        out = [f"s_add_u32 s{S_AOFF}, s{S_AOFF}, 4096"]
        if s < NF:
            out.append([f"s_cmp_eq_u32 s{S_AOFF}, s{S_AOWN}", f"s_cselect_b32 s{S_AOFF}, s{S_AEND}, s{S_AOFF}"])
        return out

    def rd2(self, idx, s, kb, jl):
        w = A_W2 + 4 * (idx % 8)
        so = (s & 1) * ST2
        if s < NF:
            return [f"ds_read_b64_tr_b16 a[{w + 2 * h}:{w + 2 * h + 1}], v{V_RF + jl} offset:{so + kb * 8192 + h * 4096}" for h in range(2)]
        ri, half = kb & 1, kb >> 1
        return [f"ds_read_b128 a[{w}:{w + 3}], v{V_RS + half + 2 * ((s >> 1) & 1)} offset:{so + ri * 16384 + jl * 2048}"]

    def poll_items(self, label, load, reg, red=()):
        cmp_ = list(red) + [f"v_cmp_eq_u32 vcc, 0, v{reg}"]
        self.spins.append((label, load, cmp_))
        return It(load, "vm", label), [It(cmp_, needs=[("vm", label)], cost=2),
                                       It([f"s_cbranch_vccnz {label}_spin", f"{label}_back:"])]

    def emit_spins(self):
        A = self.A
        for label, load, cmp_ in self.spins:
            A(f"{label}_spin:")
            A(f"s_mov_b32 s{S_T + 6}, 0")
            A(f"{label}_loop:")
            A(load)
            A(f"s_add_u32 s{S_T + 6}, s{S_T + 6}, 1")
            A("s_waitcnt vmcnt(0)")
            A(cmp_)
            A(f"s_cmp_gt_u32 s{S_T + 6}, 0x40000")
            A(f"s_cbranch_scc1 {label}_back")
            A(f"s_cbranch_vccnz {label}_loop")
            A(f"s_branch {label}_back")

    def prologue(self):
        A = self.A
        T = S_T
        A("s_cmp_ge_u32 s2, 256")
        A("s_cbranch_scc1 LF_end")
        self.st.start(A)
        A(f"s_load_dwordx4 s[{SRD_D}:{SRD_D + 3}], s[0:1], {KA['wg']}")
        A(f"s_load_dwordx4 s[{SRD_C}:{SRD_C + 3}], s[0:1], {KA['Bre']}")
        A(f"s_load_dwordx2 s[{S_WSP}:{S_WSP + 1}], s[0:1], {KA['ws']}")
        A(f"s_load_dwordx4 s[{SRD_P}:{SRD_P + 3}], s[0:1], {KA['Lre']}")
        A(f"s_load_dwordx4 s[{SRD_FL}:{SRD_FL + 3}], s[0:1], {KA['ldt']}")
        A(f"s_load_dwordx4 s[{SRD_O}:{SRD_O + 3}], s[0:1], {KA['wd']}")
        A(f"s_load_dwordx4 s[{SRD_A2}:{SRD_A2 + 3}], s[0:1], {KA['Cre']}")
        A(f"s_load_dwordx2 s[{S_XP}:{S_XP + 1}], s[0:1], {KA['x']}")
        t0, t1, t2, t3 = V_T, V_T + 1, V_T + 2, V_T + 3
        A(f"v_lshrrev_b32 v{t0}, 6, v0")
        A(f"v_and_b32 v{V_LANE}, 63, v0")
        A(f"v_readfirstlane_b32 s{S_W}, v{t0}")
        A(f"v_lshlrev_b32 v{V_L16}, 4, v{V_LANE}")
        A(f"s_and_b32 s{S_sp}, s2, 3")
        A(f"s_bfe_u32 s{S_nt}, s2, 0x30003")
        A(f"s_and_b32 s{S_m}, s2, 4")
        A(f"s_lshr_b32 s{T}, s2, 6")
        A(f"s_add_u32 s{S_m}, s{S_m}, s{T}")
        A(f"s_lshl_b32 s{S_g}, s{S_sp}, 3")
        A(f"s_add_u32 s{S_g}, s{S_g}, s{S_nt}")
        A(f"s_lshl_b32 s{S_G}, s{S_m}, 2")
        A(f"s_add_u32 s{S_G}, s{S_G}, s{S_W}")
        A(f"s_movk_i32 s{T}, 6944")
        A(f"s_movk_i32 s{T + 1}, 28672")
        A(f"v_mul_u32_u24 v{t0}, 4682, v{V_LANE}")
        for n in range(7):
            if n:
                A(f"v_add_u32 v{t0}, {64 * 4682}, v{t0}")
            A(f"v_bfe_u32 v{t2}, v{t0}, 18, 1")
            A(f"v_bfe_u32 v{t3}, v{t0}, 19, 1")
            A(f"v_lshrrev_b32 v{t1}, 16, v{t0}")
            A(f"v_sub_u32 v{t2}, v{t2}, v{t3}")
            A(f"v_mad_u32_u24 v{t1}, v{t1}, s{T}, v{V_L16}")
            A(f"v_mad_i32_i24 v{V_FO + n}, v{t2}, s{T + 1}, v{t1}")
            if n >= 4:
                A(f"v_add_u32 v{V_FO + n}, 4096, v{V_FO + n}")
        for n in range(7):
            for lane in range(64):
                ci = 64 * n + lane
                p = ci // 14
                k = (p & ~12) | ((p & 4) << 1) | ((p & 8) >> 1)
                t = ci * 4682
                got = (t >> 16) * 6944 + lane * 16 + (((t >> 18) & 1) - ((t >> 19) & 1)) * 28672 + (4096 if n >= 4 else 0)
                assert got >= 0 and got + (n & 3) * 1024 == k * 7168 + (ci % 14) * 16
        A(f"v_lshrrev_b32 v{t0}, 3, v{V_LANE}")
        A(f"v_lshrrev_b32 v{t1}, 4, v{V_LANE}")
        A(f"v_and_b32 v{t2}, 7, v{V_LANE}")
        A(f"v_xor_b32 v{t1}, v{t1}, v{t2}")
        A(f"v_lshlrev_b32 v{t1}, 4, v{t1}")
        A(f"v_lshl_add_u32 v{V_SO}, v{t0}, 11, v{t1}")
        A(f"v_xor_b32 v{V_SO + 1}, 64, v{V_SO}")
        A(f"v_add_u32 v{V_SO + 1}, {8 * 2048 - 1024}, v{V_SO + 1}")
        A(f"s_and_b32 s{T}, s{S_W}, 1")
        A(f"s_mul_i32 s{S_FOFF}, s{T}, {32 * 7168}")
        A(f"s_mul_i32 s{T + 1}, s{S_g}, 224")
        A(f"s_add_u32 s{S_FOFF}, s{S_FOFF}, s{T + 1}")
        A(f"s_lshl_b32 s{S_SOFF}, s{S_g}, 16")
        A(f"s_lshl_b32 s{T}, s{T}, 15")
        A(f"s_add_u32 s{S_SOFF}, s{S_SOFF}, s{T}")
        A(f"s_lshl_b32 s{S_XOFF0}, s{S_G}, 17")
        A(f"s_add_u32 s{S_XOFF1}, s{S_XOFF0}, 4096")
        A(f"s_mul_i32 s{S_DF}, s{S_W}, 7168")
        A(f"s_lshl_b32 s{S_DS}, s{S_W}, 11")
        A(f"s_add_u32 s{S_DS}, s{S_DS}, {T_SSM}")
        A(f"s_mov_b32 s{S_DST}, 0")
        A(f"s_mov_b32 s{S_DFS}, s{S_DF}")
        A(f"s_mov_b32 s{S_DSS}, s{S_DS}")
        A(f"s_mov_b32 s{SRD_F + 2}, {1024 * 7168}")
        A(f"s_mov_b32 s{SRD_F + 3}, 0x20000")
        A(f"s_mov_b32 s{SRD_S + 2}, {1024 * 2048}")
        A(f"s_mov_b32 s{SRD_S + 3}, 0x20000")
        A(f"s_cmp_lt_u32 s{S_W}, 2")
        A("s_waitcnt lgkmcnt(0)")
        A(f"s_cselect_b32 s{SRD_F}, s{SRD_D}, s{SRD_D + 2}")
        A(f"s_cselect_b32 s{SRD_F + 1}, s{SRD_D + 1}, s{SRD_D + 3}")
        A(f"s_cselect_b32 s{SRD_S}, s{SRD_C}, s{SRD_C + 2}")
        A(f"s_cselect_b32 s{SRD_S + 1}, s{SRD_C + 1}, s{SRD_C + 3}")
        A(f"s_cselect_b32 s{SRD_C}, s{SRD_A2}, s{SRD_A2 + 2}")
        A(f"s_cselect_b32 s{SRD_C + 1}, s{SRD_A2 + 1}, s{SRD_A2 + 3}")
        A(self.st.stamp("karg"))

        def dmas(t):
            for n in range(9):
                m, ld = self.dma1(n)
                if m:
                    A(m); A("s_nop 0")
                A(ld); self.vm.issue(("D", t))
            for x in self.dma1_adv():
                A(x)
        dmas(0)
        srd(A, SRD_X, S_WSP, WS_XN, 0x400000)
        for kk in range(2):
            for b in range(4):
                A(self.x_load(0, kk, b)); self.vm.issue(("X", 0, kk))
        A(self.x_adv())
        dmas(1)
        q, r, c, i, u = V_T, V_T + 1, V_T + 2, V_T + 3, V_T + 4
        A(f"s_and_b32 s{S_odd}, s{S_g}, 1")
        A(f"v_lshrrev_b32 v{q}, 4, v{V_LANE}")
        A(f"v_bfe_u32 v{r}, v{V_LANE}, 2, 3")
        A(f"v_and_b32 v{c}, 3, v{V_LANE}")
        A(f"v_and_b32 v{i}, 15, v{V_LANE}")
        A(f"v_lshrrev_b32 v{u}, 5, v{V_LANE}")
        A(f"v_lshl_add_u32 v{u}, v{u}, 4, v{r}")
        A(f"v_mul_u32_u24 v{u}, 224, v{u}")
        A(f"v_lshl_add_u32 v{u}, v{c}, 3, v{u}")
        A(f"s_lshl_b32 s{T}, s{S_odd}, 5")
        A(f"s_mul_i32 s{T + 1}, s{S_odd}, 192")
        A(f"s_sub_u32 s{T + 1}, 192, s{T + 1}")
        A(f"v_add_u32 v{V_RB}, s{T}, v{u}")
        A(f"v_add_u32 v{V_RB + 1}, s{T + 1}, v{u}")
        A(f"v_lshrrev_b32 v{u}, 1, v{i}")
        A(f"v_xor_b32 v{u}, v{u}, v{q}")
        A(f"v_lshlrev_b32 v{u}, 4, v{u}")
        A(f"v_lshl_add_u32 v{V_RB + 2}, v{i}, 7, v{u}")
        A(f"v_xor_b32 v{V_RB + 3}, 64, v{V_RB + 2}")
        for j in range(4):
            A(f"v_mov_b32 v{V_RD + j}, v{V_RB + j}")
        A(f"s_mov_b32 s{S_RST}, 0")
        A(f"s_mov_b32 s{S_IT}, 0")
        A(waitcnt(self.vm.need(("D", 0))))
        A("s_barrier")
        A(self.st.stamp("tile0"))
        for f in range(self.PD):
            for ins in self.rd1(f):
                A(ins); self.lg.issue(("W", 0, f))

    def setup_items(self):
        T = S_T
        it = []
        it += [f"v_and_b32 v{V_T}, 15, v{V_LANE}", f"v_lshlrev_b32 v{V_T}, 1, v{V_T}", f"s_lshl_b32 s{T}, s{S_g}, 6"]
        for j, p in enumerate([SRD_P, SRD_P + 2, SRD_FL]):
            it += srd_items(SRD_T, p, 0, 2048)
            for sb in range(2):
                it.append(It(f"buffer_load_ushort v{V_RAW + 2 * j + sb}, v{V_T}, s[{SRD_T}:{SRD_T + 3}], s{T} offen offset:{32 * sb}", "vm", "par"))
        it += [[f"s_mov_b32 s{S_KP}, s{SRD_FL + 2}", f"s_mov_b32 s{S_KP + 1}, s{SRD_FL + 3}"]]
        it += srd_items(SRD_D, SRD_O, 0, 3584 * 2048)
        it += srd_items(SRD_O, SRD_O + 2, 0, 2048 * 4096)
        it += [f"s_mov_b32 s{SRD_C + 2}, {1024 * 2048}", f"s_mov_b32 s{SRD_C + 3}, 0x20000"]
        it += srd_items(SRD_A2, S_WSP, WS_A2, A2_SIZE)
        it += srd_items(SRD_P, S_WSP, WS_PART, PART_SIZE)
        it += srd_items(SRD_FL, S_WSP, WS_FLAG, 0x40000)
        it += [f"s_lshl_b32 s{T}, s{S_g}, 13", f"s_add_u32 s{T}, s{T}, {hx(WS_AGG)}",
               [f"s_add_u32 s{SRD_AG}, s{S_WSP}, s{T}", f"s_addc_u32 s{SRD_AG + 1}, s{S_WSP + 1}, 0"],
               f"s_mov_b32 s{SRD_AG + 2}, 8192", f"s_mov_b32 s{SRD_AG + 3}, 0x20000"]
        c0 = -2.0 * LOG2E * math.sqrt(2.0 / math.pi)
        it += [f"s_mov_b32 s{S_GC}, {hx(f2u(c0 * 0.044715))}", f"s_mov_b32 s{S_GC + 1}, {hx(f2u(c0))}"]
        it += [f"s_lshl_b32 s{S_tile}, s{S_m}, 3", f"s_add_u32 s{S_tile}, s{S_tile}, s{S_nt}"]
        it += [f"s_mul_i32 s{T}, s{S_G}, {A2_G}",
               f"s_lshl_b32 s{T + 1}, s{S_sp}, 16",
               f"s_add_u32 s{S_ASSM}, s{T}, s{T + 1}",
               f"s_add_u32 s{S_ASSM}, s{S_ASSM}, {112 * 4096}",
               f"s_mul_i32 s{T + 1}, s{S_sp}, {28 * 4096}",
               f"s_add_u32 s{S_AOFF}, s{T}, s{T + 1}",
               f"s_mul_i32 s{T}, s{S_nt}, 7",
               f"s_add_u32 s{T}, s{T}, s{S_odd}",
               f"s_lshr_b32 s{T}, s{T}, 1",
               f"s_lshl_b32 s{T + 1}, s{T}, 12",
               f"s_add_u32 s{S_AOWN}, s{S_AOFF}, s{T + 1}",
               f"s_add_u32 s{S_AEND}, s{S_AOWN}, {3 * 4096}",
               [f"s_cmp_eq_u32 s{S_AOFF}, s{S_AOWN}", f"s_cselect_b32 s{S_AOFF}, s{S_AEND}, s{S_AOFF}"],
               f"s_mul_i32 s{T + 1}, s{S_sp}, {896 * 2048}",
               f"s_lshl_b32 s{T + 2}, s{S_nt}, 8",
               f"s_add_u32 s{T + 1}, s{T + 1}, s{T + 2}",
               f"s_lshl_b32 s{T}, s{T}, 16",
               f"s_add_u32 s{S_DOWN}, s{T + 1}, s{T}",
               f"s_lshl_b32 s{T + 2}, s{S_W}, 16",
               f"s_add_u32 s{S_DOFF}, s{S_DOWN}, s{T + 2}",
               f"s_add_u32 s{S_DP}, s{T + 1}, s{T + 2}",
               f"s_sub_u32 s{S_DP}, s{S_DP}, {96 * 2048}",
               [f"s_cmp_eq_u32 s{S_W}, 3", f"s_cselect_b32 s{T}, s{T}, 0"],
               [f"s_cmp_lg_u32 s{T}, 0", f"s_cselect_b32 s{S_DOFF}, s{T + 1}, s{S_DOFF}"],
               f"s_lshl_b32 s{S_DSSM}, s{S_nt}, 18",
               f"s_lshl_b32 s{T}, s{S_sp}, 9",
               f"s_add_u32 s{S_DSSM}, s{S_DSSM}, s{T}"]
        return it

    def param_items(self):
        PL = V_RAW
        lre, lim, dt = PL, PL + 2, PL + 4
        zr, zi, nq, tm = V_T, V_T + 2, V_T + 4, V_T + 5
        o = [It(f"v_lshlrev_b32 v{PL}, 16, v{PL}", needs=[("vm", "par")])]
        o += [f"v_lshlrev_b32 v{PL + j}, 16, v{PL + j}" for j in range(1, 6)]
        o += [f"v_lshrrev_b32 v{nq}, 4, v{V_LANE}", f"v_cvt_f32_u32 v{nq}, v{nq}"]
        o += [f"v_mul_f32 v{dt + sb}, {hx(f2u(LOG2E))}, v{dt + sb}" for sb in range(2)]
        o += [f"v_exp_f32 v{dt + sb}, v{dt + sb}" for sb in range(2)]
        o += [f"v_cvt_pk_bf16_f32 v{tm}, v{dt}, v{dt + 1}", f"v_lshlrev_b32 v{dt}, 16, v{tm}", f"v_and_b32 v{dt + 1}, 0xffff0000, v{tm}"]
        for sb in range(2):
            o += [f"v_mul_f32 v{zr + sb}, v{dt + sb}, v{lre + sb}", f"v_mul_f32 v{zi + sb}, v{dt + sb}, v{lim + sb}"]
        for sb in range(2):
            o += [f"v_mul_f32 v{zr + sb}, {hx(f2u(LOG2E))}, v{zr + sb}", f"v_mul_f32 v{zi + sb}, {hx(f2u(1.0 / (2 * math.pi)))}, v{zi + sb}"]
        for k, (n, byq) in {P_L1: (1, False), P_L16: (16, False), P_L64: (64, False), P_L16Q: (16, True), P_L512Q: (512, True)}.items():
            if byq:
                o.append(f"v_mul_f32 v{tm + 6}, {hx(f2u(float(n)))}, v{nq}")
                mul = f"v{tm + 6}"
            else:
                mul = hx(f2u(float(n)))
            for sb in range(2):
                o += [f"v_mul_f32 v{tm + sb}, {mul}, v{zr + sb}", f"v_mul_f32 v{tm + 2 + sb}, {mul}, v{zi + sb}"]
            o += [f"v_rndne_f32 v{tm + 4 + sb}, v{tm + 2 + sb}" for sb in range(2)]
            o += [f"v_sub_f32 v{tm + 2 + sb}, v{tm + 2 + sb}, v{tm + 4 + sb}" for sb in range(2)]
            o += [f"v_exp_f32 v{tm + sb}, v{tm + sb}" for sb in range(2)]
            for sb in range(2):
                o += [f"v_cos_f32 v{par(sb, k)}, v{tm + 2 + sb}", f"v_sin_f32 v{par(sb, k) + 1}, v{tm + 2 + sb}"]
            for sb in range(2):
                p = par(sb, k)
                o += [f"v_mul_f32 v{p}, v{p}, v{tm + sb}", f"v_mul_f32 v{p + 1}, v{p + 1}, v{tm + sb}"]
        for sb in range(2):
            l1, cf = par(sb, P_L1), par(sb, P_CF)
            o += [f"v_mul_f32 v{tm}, v{lre + sb}, v{lre + sb}",
                  f"v_fma_f32 v{tm}, v{lim + sb}, v{lim + sb}, v{tm}",
                  f"v_rcp_f32 v{tm}, v{tm}",
                  f"v_add_f32 v{tm + 1}, -1.0, v{l1}",
                  f"v_mul_f32 v{cf}, v{tm + 1}, v{lre + sb}",
                  f"v_fma_f32 v{cf}, v{l1 + 1}, v{lim + sb}, v{cf}",
                  f"v_mul_f32 v{cf + 1}, v{l1 + 1}, v{lre + sb}",
                  f"v_fma_f32 v{cf + 1}, -v{tm + 1}, v{lim + sb}, v{cf + 1}",
                  f"v_add_f32 v{tm}, v{tm}, v{tm}",
                  f"v_mul_f32 v{cf}, v{cf}, v{tm}",
                  f"v_mul_f32 v{cf + 1}, v{cf + 1}, v{tm}"]
        return o

    def fo2_items(self):
        T = S_T
        t0, t1, t2, t3 = V_RAW + 6, V_RAW + 7, V_SO + 1, 0
        o = [f"s_lshl_b32 s{T}, s{S_sp}, 2", f"s_lshl_b32 s{S_DB}, s{S_W}, 13",
             f"v_lshrrev_b32 v{t0}, 4, v{V_LANE}", f"v_and_b32 v{t1}, 15, v{V_LANE}"]
        for e in range(2):
            o += [f"v_add_u32 v{t2}, {4 * e}, v{t0}",
                  f"v_lshlrev_b32 v{t3}, 1, v{t2}",
                  f"v_xor_b32 v{t3}, v{t3}, v{t1}",
                  f"v_add_u32 v{t3}, s{T}, v{t3}",
                  f"v_and_b32 v{t3}, 15, v{t3}",
                  f"v_lshlrev_b32 v{t3}, 4, v{t3}",
                  f"v_lshl_add_u32 v{V_FO2 + e}, v{t2}, 11, v{t3}"]
        for e in range(7, 0, -1):
            d = (e // 2) * 8 * 2048 - (e & 3) * 1024
            o.append(f"v_add_u32 v{V_FO2 + e}, {hx(d)}, v{V_FO2 + (e & 1)}")
        return o

    def res_loads(self, S, n):
        T = S_T
        t0, t1 = V_RAW + 6, V_RAW + 7
        o = srd_items(SRD_T, S_XP, 0, 2048 * 2048)
        o += [f"v_lshrrev_b32 v{t0}, 2, v{V_LANE}", f"v_and_b32 v{t1}, 3, v{V_LANE}", f"v_lshlrev_b32 v{t1}, 4, v{t1}", f"v_lshl_add_u32 v{t0}, v{t0}, 13, v{t1}",
              f"s_lshl_b32 s{S_U0}, s{S_nt}, 2", f"s_add_u32 s{S_U0}, s{S_U0}, s{S_sp}",
              f"s_lshl_b32 s{T + 1}, s{S_U0}, 6", f"s_lshl_b32 s{T}, s{S_G}, 17", f"s_add_u32 s{T}, s{T}, s{T + 1}",
              f"s_lshl_b32 s{S_U1}, s{S_W}, 12", f"s_add_u32 s{S_U1}, s{S_U1}, {L_X}"]
        n = S.seq(o, n)
        for b in range(4):
            ldi = f"buffer_load_dwordx4 v{t0}, s[{SRD_T}:{SRD_T + 3}], s{T} offen offset:{b * 1024} lds"
            n = self.put_dma(S, f"s_mov_b32 m0, s{S_U1}" if b == 0 else None, ldi, "res", n + 2)
            n = S.place(f"s_add_u32 s{T}, s{T}, 1024", n + 1)
        o = srd_items(SRD_T, S_KP, 0, 2048) + [f"v_lshrrev_b32 v{t1}, 4, v{V_LANE}", f"v_lshlrev_b32 v{t1}, 3, v{t1}"]
        o += [It(f"buffer_load_dwordx2 a[{A_RES + 8 + 2 * jl}:{A_RES + 9 + 2 * jl}], v{t1}, s[{SRD_T}:{SRD_T + 3}], s{T + 1} offen offset:{32 * jl}", "vm", "res") for jl in range(2)]
        o += srd_items(SRD_T, S_WSP, WS_STATS, 0x4000) + [f"v_and_b32 v{t0}, 15, v{V_LANE}", f"v_lshlrev_b32 v{t0}, 5, v{t0}", f"s_lshl_b32 s{T}, s{S_G}, 9"]
        o += [It(f"buffer_load_dwordx4 a[{A_RES + 4 * j}:{A_RES + 4 * j + 3}], v{t0}, s[{SRD_T}:{SRD_T + 3}], s{T} offen offset:{16 * j}", "vm", "res") for j in range(2)]
        return S.seq(o, n + 1)

    def prefetch_items(self):
        T = S_T
        t0, t1 = V_RAW + 6, V_RAW + 7
        o = []
        if self.opt.get("pf_w2", 0):
            o += [f"s_and_b32 s{T}, s{S_m}, 3",
                  f"s_lshl_b32 s{T + 1}, s{T}, 2", f"s_add_u32 s{T + 1}, s{T + 1}, s{S_W}",
                  f"s_mul_i32 s{T + 1}, s{T + 1}, {56 * 2048}",
                  f"s_mul_i32 s{T + 2}, s{S_sp}, {896 * 2048}", f"s_add_u32 s{T + 1}, s{T + 1}, s{T + 2}",
                  f"s_lshl_b32 s{T + 2}, s{S_nt}, 8", f"s_add_u32 s{T + 1}, s{T + 1}, s{T + 2}",
                  f"s_add_u32 s{T + 2}, s{T + 1}, {32 * 2048}",
                  f"v_lshrrev_b32 v{t0}, 1, v{V_LANE}", f"v_and_b32 v{t1}, 1, v{V_LANE}",
                  f"v_lshlrev_b32 v{t0}, 11, v{t0}", f"v_lshl_add_u32 v{t0}, v{t1}, 7, v{t0}",
                  It(f"buffer_load_dword v0, v{t0}, s[{SRD_D}:{SRD_D + 3}], s{T + 1} offen", "vm", "pf"),
                  It(f"buffer_load_dword v0, v{t0}, s[{SRD_D}:{SRD_D + 3}], s{T + 2} offen", "vm", "pf"),
                  f"s_lshl_b32 s{T}, s{T}, 1", f"s_and_b32 s{T + 1}, s{S_W}, 1", f"s_add_u32 s{T}, s{T}, s{T + 1}",
                  f"s_lshl_b32 s{T}, s{T}, 15", f"s_add_u32 s{T}, s{T}, s{S_DSSM}",
                  f"v_lshrrev_b32 v{t0}, 2, v{V_LANE}", f"v_and_b32 v{t1}, 3, v{V_LANE}",
                  f"v_lshlrev_b32 v{t0}, 11, v{t0}", f"v_lshl_add_u32 v{t0}, v{t1}, 7, v{t0}",
                  It(f"buffer_load_dword v0, v{t0}, s[{SRD_C}:{SRD_C + 3}], s{T} offen", "vm", "pf")]
        if self.opt.get("pf_code", 1):
            o += [[f"s_getpc_b64 s[{T + 2}:{T + 3}]", "LF_pc:"],
                  f"s_and_b32 s{T}, s{S_nt}, 1", f"s_lshl_b32 s{T}, s{T}, 2", f"s_add_u32 s{T}, s{T}, s{S_W}",
                  f"s_lshl_b32 s{T}, s{T}, 13",
                  f"v_lshl_add_u32 v{t0}, v{V_LANE}, 7, s{T}",
                  f"v_min_u32 v{t0}, LF_end-LF_pc, v{t0}",
                  f"v_mov_b32 v{t1}, s{T + 3}",
                  f"v_add_co_u32 v{t0}, vcc, s{T + 2}, v{t0}",
                  "s_nop 0",
                  f"v_addc_co_u32 v{t1}, vcc, 0, v{t1}, vcc",
                  It(f"global_load_dword v0, v[{t0}:{t1}], off", "vm", "pf")]
        return o

    def gemm1(self):
        A, PD = self.A, self.PD
        S = Stream(self.vm, self.lg)
        NV = 8
        for s in range(NV):
            for f in range(36):
                needs = [("lg", ("W", s, f))]
                if f in (0, 18):
                    needs.append(("vm", ("X", s, f // 18)))
                bar = s + 1 < NV and f + PD == 36
                if bar:
                    needs.append(("vm", ("D", s + 1)))
                for b in range(4):
                    S.mfma(self.mfma1(s, f, b), needs if b == 0 else (), bar and b == 0)
        for s in range(NV):
            base = 144 * s
            do_x, do_dma, do_next = s + 1 < NV, s + 2 < NV, s + 1 < NV
            for f in range(36):
                nxt = f + PD
                if nxt < 36 or do_next:
                    tag = ("W", s, nxt) if nxt < 36 else ("W", s + 1, nxt - 36)
                    for i, ins in enumerate(self.rd1(nxt % 36)):
                        S.force(It(ins, "lg", tag), base + 4 * f + i)
            i = 0
            if do_x:
                for kk in range(2):
                    for b in range(4):
                        n = S.force(It(self.x_load((s + 1) & 1, kk, b), "vm", ("X", s + 1, kk)), base + 8 * i + 2); i += 1
                S.seq(self.x_adv(), n + 1)
            if do_dma:
                for k in range(9):
                    m, ld = self.dma1(k)
                    n = self.put_dma(S, m, ld, ("D", s + 2), base + 8 * i + 2); i += 1
                n = S.seq(self.dma1_adv(), n + 1)
                assert n < base + 143
            if do_next:
                n = S.seq([f"s_add_u32 s{S_RST}, s{S_RST}, {ST1}",
                           [f"s_cmp_eq_u32 s{S_RST}, {ST1 * NST}", f"s_cselect_b32 s{S_RST}, 0, s{S_RST}"],
                           f"v_add_u32 v{V_RD + 2}, s{S_RST}, v{V_RB + 2}",
                           f"v_add_u32 v{V_RD + 3}, s{S_RST}, v{V_RB + 3}"], base + 4 * 24)
                assert n < base + 4 * (36 - PD)
                n = S.seq([f"v_add_u32 v{V_RD}, s{S_RST}, v{V_RB}",
                           f"v_add_u32 v{V_RD + 1}, s{S_RST}, v{V_RB + 1}"], base + 4 * (36 - PD))
                assert n < base + 144
            if s in (2, 4):
                S.place(f"s_add_u32 s{S_IT}, s{S_IT}, 1", base + 4)
        n = S.seq(self.setup_items(), 0)
        assert n < 140, n
        n = S.seq(self.param_items(), 144 * 5)
        n = S.seq(self.fo2_items(), max(n + 1, 144 * 6))
        n = S.seq(self.prefetch_items(), max(n + 1, 144 * 6 + 56))
        n = self.res_loads(S, n + 1)
        n = max(n + 1, 144 * 7)
        for t in range(2):
            for e in range(8):
                m, ld = self.dma2(t, e)
                n = self.put_dma(S, m, ld, ("D2", t), n + 6)
            n = S.seq(self.dma2_adv(t), n + 1)
        pre, segs = S.emit()
        flat = lambda a, b: [x for s in segs[a:b] for x in s]
        body, body2 = flat(144, 432), flat(432, 720)
        if body != body2:
            assert len(body) == len(body2)
            for x, y in zip(body, body2):
                if x != y:
                    import re
                    assert x.startswith("s_waitcnt") and y.startswith("s_waitcnt"), (x, y)
                    cx, cy = dict(re.findall(r"(\w+)\((\d+)\)", x)), dict(re.findall(r"(\w+)\((\d+)\)", y))
                    assert all(k in cy and int(cy[k]) <= int(v) for k, v in cx.items()), (x, y)
        A(pre)
        A(flat(0, 144))
        A(self.st.stamp("step0"))
        A(".p2align 5")
        A("LF_loop:")
        A(body2)
        A(f"s_cmp_lt_u32 s{S_IT}, 6")
        A("s_cbranch_scc1 LF_loop")
        A(self.st.stamp("loop12"))
        A(flat(720, 864))
        A(self.st.stamp("step13"))
        A(flat(864, 1008))
        A(self.st.stamp("step14"))
        A(flat(1008, 144 * NV))
        bad = hazard.check(body2 + body2)
        assert not bad, bad
        self.over1 = S.over

    def transition(self):
        A = self.A
        T = S_T
        vm = self.vm
        A(self.st.stamp("loopend"))
        for sb in range(2):
            cf = par(sb, P_CF)
            for b in range(4):
                l1, l2 = [], []
                for r in range(4):
                    d = uu(sb, 4 * r + b)
                    a_re, a_im, s = accS(0, sb, b).i + r, accS(1, sb, b).i + r, r & 1
                    l1.append(f"v_pk_mul_f32 v[{d}:{d + 1}], v[{cf}:{cf + 1}], v[{a_re - s}:{a_re - s + 1}] op_sel:[0,{s}] op_sel_hi:[1,{s}]")
                    l2.append(f"v_pk_fma_f32 v[{d}:{d + 1}], v[{cf}:{cf + 1}], v[{a_im - s}:{a_im - s + 1}], v[{d}:{d + 1}] op_sel:[1,{s},0] op_sel_hi:[0,{s},1] neg_lo:[1,0,0]")
                A(l1); A(l2)
        Q0, Q1 = 120, 124
        cur = [uu(0, 0), uu(1, 0)]
        for tau in range(1, 16):
            dst = Q0 if tau & 1 else Q1
            A(interleave(*[cmul_add(dst + 2 * sb, par(sb, P_L1), cur[sb], uu(sb, tau)) for sb in range(2)]))
            cur = [dst, dst + 2]
        g0, g1, g2, g3, PQ = Q0, Q1, 12, 16, 52
        A([f"v_mov_b64 v[{g2 + j}:{g2 + j + 1}], v[{g0 + j}:{g0 + j + 1}]" for j in (0, 2)])
        A(f"s_sub_u32 s{T}, 31, s{S_G}")
        A(f"s_lshl_b32 s{T}, s{T}, 8")
        A([f"v_permlane32_swap_b32 v{g0 + j}, v{g2 + j}" for j in range(4)])
        A([f"v_mov_b64 v[{g1 + j}:{g1 + j + 1}], v[{g0 + j}:{g0 + j + 1}]" for j in (0, 2)])
        A([f"v_mov_b64 v[{g3 + j}:{g3 + j + 1}], v[{g2 + j}:{g2 + j + 1}]" for j in (0, 2)])
        A([f"v_permlane16_swap_b32 v{g0 + j}, v{g1 + j}" for j in range(4)])
        A([f"v_permlane16_swap_b32 v{g2 + j}, v{g3 + j}" for j in range(4)])
        for prev, nx in [(g0, g1), (g1, g2), (g2, g3)]:
            A(interleave(*[cmul_add(nx + 2 * sb, par(sb, P_L16), prev + 2 * sb, nx + 2 * sb) for sb in range(2)]))
        A("s_mov_b64 exec, 0xffff")
        A(f"buffer_store_dwordx4 v[{g3}:{g3 + 3}], v{V_L16}, s[{SRD_AG}:{SRD_AG + 3}], s{T} offen sc1"); vm.issue("agg")
        A(f"v_mov_b64 v[{PQ}:{PQ + 1}], 0")
        A(f"v_mov_b64 v[{PQ + 2}:{PQ + 3}], 0")
        for src in (g0, g1, g2):
            A("s_lshl_b64 exec, exec, 16")
            A(f"v_mov_b64 v[{PQ}:{PQ + 1}], v[{src}:{src + 1}]")
            A(f"v_mov_b64 v[{PQ + 2}:{PQ + 3}], v[{src + 2}:{src + 3}]")
        A("s_mov_b64 exec, -1")
        A(self.st.stamp("publish"))
        A(f"s_mov_b32 s{T}, s{S_AOWN}")
        A(f"s_mul_i32 s{T + 2}, s{S_odd}, {4 * 4096 - 8}")
        A(f"s_sub_u32 s{T + 2}, {3 * 4096}, s{T + 2}")
        A(f"s_add_u32 s{T + 2}, s{T + 2}, s{T}")
        Z = 120
        GT, UT = 224, 232

        def gelu(gq, uq, out):
            g, u = [], []
            for h in range(2):
                if gq[h].t == "a":
                    A([f"v_accvgpr_read_b32 v{GT + 4 * h + r}, a{gq[h].i + r}" for r in range(4)])
                    g += [GT + 4 * h, GT + 4 * h + 2]; u += [UT + 4 * h, UT + 4 * h + 2]
                else:
                    g += [gq[h].i, gq[h].i + 2]; u += [uq[h].i, uq[h].i + 2]
            p = lambda x: f"v[{x}:{x + 1}]"
            sc = f"s[{S_GC}:{S_GC + 1}]"
            A([f"v_pk_mul_f32 {p(Z + 2 * j)}, {p(g[j])}, {p(g[j])}" for j in range(4)])
            A([f"v_pk_fma_f32 {p(Z + 2 * j)}, {p(Z + 2 * j)}, {sc}, {sc} op_sel:[0,0,1] op_sel_hi:[1,0,1]" for j in range(4)])
            A([f"v_pk_mul_f32 {p(Z + 2 * j)}, {p(Z + 2 * j)}, {p(g[j])}" for j in range(4)])
            A([f"v_exp_f32 v{Z + j}, v{Z + j}" for j in range(8)])
            for h in range(2):
                if uq[h].t == "a":
                    A([f"v_accvgpr_read_b32 v{UT + 4 * h + r}, a{uq[h].i + r}" for r in range(4)])
            A([f"v_pk_add_f32 {p(Z + 2 * j)}, {p(Z + 2 * j)}, 1.0 op_sel_hi:[1,0]" for j in range(4)])
            A([f"v_rcp_f32 v{Z + j}, v{Z + j}" for j in range(8)])
            A([f"v_pk_mul_f32 {p(u[j])}, {p(u[j])}, {p(g[j])}" for j in range(4)])
            A([f"v_pk_mul_f32 {p(u[j])}, {p(u[j])}, {p(Z + 2 * j)}" for j in range(4)])
            A([f"v_cvt_pk_bf16_f32 v{out + j}, v{u[j]}, v{u[j] + 1}" for j in range(4)])

        LB = 192
        va, vx = V_T, V_T + 1
        lb_loads = [f"buffer_load_dwordx4 v[{LB + 4 * e}:{LB + 4 * e + 3}], v{va}, s[{SRD_AG}:{SRD_AG + 3}], 0 offen offset:{e * 256} sc1" for e in range(8)]
        for pp in range(3):
            for b in range(4):
                o = own(pp, b)
                gelu([accF(0, 2 * pp + h, b) for h in range(2)], [accF(1, 2 * pp + h, b) for h in range(2)], o)
                A(f"buffer_store_dwordx4 v[{o}:{o + 3}], v{V_L16}, s[{SRD_A2}:{SRD_A2 + 3}], s{T} offen offset:{b * 1024} sc1"); vm.issue("act")
            if pp < 2:
                A(f"s_add_u32 s{T}, s{T}, 4096")
            if pp == 0:
                A(waitcnt(vm.need(("D2", 0), ("D2", 1), "res")))
                A("s_barrier")
                for e in range(8):
                    m, ld = self.dma2(2, e)
                    if m:
                        A(m); A("s_nop 0")
                    A(ld); vm.issue(("D2", 2))
                for x in self.dma2_adv(2):
                    A(x)
            if pp == self.opt.get("lb_after", 1):
                A(f"v_lshrrev_b32 v{va}, 4, v{V_LANE}")
                A(f"v_and_b32 v{vx}, 15, v{V_LANE}")
                A(f"v_lshlrev_b32 v{va}, 11, v{va}")
                A(f"v_lshl_add_u32 v{va}, v{vx}, 4, v{va}")
                A(f"s_sub_u32 s{T + 3}, 32, s{S_G}")
                A(f"s_lshl_b32 s{T + 3}, s{T + 3}, 8")
                A(f"v_add_u32 v{va}, s{T + 3}, v{va}")
                for x in lb_loads:
                    A(x); vm.issue("lb")
        for b2 in range(2):
            o = 240 + 4 * b2
            gelu([accF(0, 6, 2 * b2 + h) for h in range(2)], [accF(1, 6, 2 * b2 + h) for h in range(2)], o)
            for h in range(2):
                A(f"buffer_store_dwordx2 v[{o + 2 * h}:{o + 2 * h + 1}], v{V_L16}, s[{SRD_A2}:{SRD_A2 + 3}], s{T + 2} offen offset:{(2 * b2 + h) * 1024} sc1"); vm.issue("act")
        A(self.st.stamp("gelu"))
        A(f"s_mov_b32 s{T + 4}, 0")
        A(waitcnt(vm.need("lb")))
        A("LF_lbchk:")
        A(f"v_max_u32 v{vx}, v{LB}, v{LB + 1}")
        for j in range(2, 32, 2):
            A(f"v_max3_u32 v{vx}, v{vx}, v{LB + j}, v{LB + j + 1}")
        A(f"v_cmp_eq_u32 vcc, -1, v{vx}")
        A(f"s_add_u32 s{T + 4}, s{T + 4}, 1")
        A("s_cbranch_vccnz LF_lbspin")
        A("LF_lbok:")
        self.lb_loads = lb_loads
        for e in range(6, -1, -1):
            A(interleave(*[cmul_add(LB + 4 * e + 2 * sb, par(sb, P_L64), LB + 4 * (e + 1) + 2 * sb, LB + 4 * e + 2 * sb) for sb in range(2)]))
        Sx, St = LB + 4, LB + 8
        A(interleave(*[cmul(Sx + 2 * sb, par(sb, P_L512Q), LB + 2 * sb) for sb in range(2)]))
        for swp in ["v_permlane32_swap_b32", "v_permlane16_swap_b32"]:
            A([f"v_mov_b64 v[{St + j}:{St + j + 1}], v[{Sx + j}:{Sx + j + 1}]" for j in (0, 2)])
            A("s_nop 1")
            A([f"{swp} v{Sx + j}, v{St + j}" for j in range(4)])
            A([f"v_pk_add_f32 v[{Sx + j}:{Sx + j + 1}], v[{Sx + j}:{Sx + j + 1}], v[{St + j}:{St + j + 1}]" for j in (0, 2)])
        A(interleave(*[cmul_add(PQ + 2 * sb, par(sb, P_L16Q), Sx + 2 * sb, PQ + 2 * sb) for sb in range(2)]))
        cur = [PQ, PQ + 2]
        for tau in range(16):
            A(interleave(*[cmul_add(uu(sb, tau), par(sb, P_L1), cur[sb], uu(sb, tau)) for sb in range(2)]))
            cur = [uu(0, tau), uu(1, tau)]
        vw, vrd, q, i = V_T + 2, V_T + 3, V_T2, V_T2 + 1
        A(f"s_lshl_b32 s{S_FA}, s{S_G}, 2")
        A(f"s_add_u32 s{S_FA}, s{S_FA}, s{S_sp}")
        A(f"s_lshl_b32 s{S_FA}, s{S_FA}, 7")
        A(f"s_add_u32 s{S_FA}, s{S_FA}, {FL_A}")
        A(f"s_lshl_b32 s{T}, s{S_nt}, 2")
        A(f"v_mov_b32 v{V_T2 + 2}, s{T}")
        A(f"v_mov_b32 v{V_T2 + 3}, 1")
        A(self.st.stamp("ssmfin"))
        A(waitcnt(vm.need("act")))
        A("s_mov_b64 exec, 1")
        A(f"buffer_store_dword v{V_T2 + 3}, v{V_T2 + 2}, s[{SRD_FL}:{SRD_FL + 3}], s{S_FA} offen sc1"); vm.issue("fa")
        A("s_mov_b64 exec, -1")
        A(self.st.stamp("faflag"))
        A(f"v_and_b32 v{i}, 15, v{V_LANE}")
        A(f"v_lshrrev_b32 v{q}, 4, v{V_LANE}")
        A(f"s_add_u32 s{T + 3}, s{S_DB}, {L_H}")
        t0, t1 = V_T, V_T + 1
        A(f"v_lshrrev_b32 v{t0}, 2, v{i}")
        A(f"v_xor_b32 v{t0}, v{t0}, v{q}")
        A(f"v_lshl_add_u32 v{vw}, v{i}, 5, s{T + 3}")
        A(f"v_lshl_add_u32 v{vw}, v{t0}, 3, v{vw}")
        k = 0
        for ri in range(2):
            ng = "-" if ri else ""
            cv, wr = [], []
            for b in range(4):
                for sb in range(2):
                    d = V_FR + 2 * k; k += 1
                    cv.append(f"v_cvt_pk_bf16_f32 v{d}, {ng}v{uu(sb, b) + ri}, {ng}v{uu(sb, 4 + b) + ri}")
                    cv.append(f"v_cvt_pk_bf16_f32 v{d + 1}, {ng}v{uu(sb, 8 + b) + ri}, {ng}v{uu(sb, 12 + b) + ri}")
                    wr.append(f"ds_write_b64 v{vw}, v[{d}:{d + 1}] offset:{(ri * 4 + b) * 1024 + sb * 512}")
            A(cv); A(wr)
            for x in wr:
                self.lg.issue("hwr")
        A(f"v_lshlrev_b32 v{t0}, 1, v{q}")
        A(f"v_and_b32 v{t0}, 2, v{t0}")
        A(f"v_xor_b32 v{t0}, v{t0}, v{i}")
        A(f"v_lshl_add_u32 v{vrd}, v{t0}, 3, s{T + 3}")
        A(f"v_lshl_add_u32 v{vrd}, v{q}, 8, v{vrd}")
        A(f"v_xor_b32 v{vw}, 8, v{vrd}")
        for ri in range(2):
            for b in range(4):
                for h in range(2):
                    d = V_FR + (ri * 4 + b) * 4 + 2 * h
                    A(f"ds_read_b64_tr_b16 v[{d}:{d + 1}], v{vw if h else vrd} offset:{(ri * 4 + b) * 1024 + h * 128}")
                    self.lg.issue(("hrd", ri, b))
        A(f"v_lshrrev_b32 v{t0}, 2, v{V_LANE}")
        A(f"v_and_b32 v{t1}, 7, v{t0}")
        A(f"v_lshlrev_b32 v{t0}, 8, v{t0}")
        A(f"v_lshl_add_u32 v{t0}, v{t1}, 5, v{t0}")
        A(f"v_and_b32 v{t1}, 3, v{V_LANE}")
        A(f"v_lshl_add_u32 v{V_RF}, v{t1}, 3, v{t0}")
        for jl in range(1, 8):
            A(f"v_xor_b32 v{V_RF + jl}, {jl * 32}, v{V_RF}")
        A(f"v_and_b32 v{V_FLG + 1}, 7, v{V_LANE}")
        A(f"v_lshlrev_b32 v{V_FLG + 1}, 2, v{V_FLG + 1}")
        A(f"s_lshl_b32 s{S_HO}, s{S_nt}, 13")
        A(f"s_add_u32 s{S_HO}, s{S_HO}, s{S_ASSM}")
        A(f"s_add_u32 s{S_U4}, s{S_HO}, 4096")

    def gemm2(self):
        A, PD, opt = self.A, self.PD, self.opt
        T = S_T
        TK, PM = opt.get("TK", 3), opt.get("PM", 1)
        assert PM <= TK <= 3
        G = []
        for s in range(NSTEP - PM):
            G += [(s, kb, jl) for kb in range(4) for jl in range(0 if s < NSTEP - TK else 2, 8)]
        pair_end = {}
        for d in (1, 2, 3):
            G += [(s, kb, jl) for s in range(NSTEP - PM, NSTEP) for kb in range(4) for jl in (2 * d, 2 * d + 1)]
            pair_end[d] = len(G)
        G += [(s, kb, jl) for s in range(NSTEP - TK, NSTEP) for kb in range(4) for jl in (0, 1)]
        first_s, first_a, last_a = {}, {}, {}
        for idx, (s, kb, jl) in enumerate(G):
            first_s.setdefault(s, idx); first_a.setdefault((s, kb), idx); last_a[(s, kb)] = idx
        bar_at = {first_s[t] - PD: t for t in range(1, NSTEP)}
        S = Stream(self.vm, self.lg)
        for idx, (s, kb, jl) in enumerate(G):
            needs = [("lg", ("W2", idx))]
            if first_a[(s, kb)] == idx and not (s == 0 and kb < 3):
                needs.append(("vm", ("A", s, kb)))
            if idx in bar_at:
                needs.append(("vm", ("D2", bar_at[idx])))
            w = A_W2 + 4 * (idx % 8)
            for b in range(4):
                c = acc2(jl, b)
                sc = "0" if (s == 0 and kb == 0) else f"v[{c}:{c + 3}]"
                S.mfma(f"v_mfma_f32_16x16x32_bf16 v[{c}:{c + 3}], a[{w}:{w + 3}], {self.areg(s, kb, b).r(4)}, {sc}", needs if b == 0 else (), idx in bar_at and b == 0)
        NG = len(G)
        RXr = lambda k, b: V_OWN + 16 * k + 4 * b
        rx_m = {}
        for k in range(3):
            for b in range(4):
                for jl in range(2):
                    c, sel = acc2(jl, b), V_SEL + (2 if jl == 0 else 0)
                    n = S.mfma(f"v_mfma_f32_16x16x32_bf16 v[{c}:{c + 3}], v[{sel}:{sel + 3}], v[{RXr(k, b)}:{RXr(k, b) + 3}], v[{c}:{c + 3}]",
                               [("vm", ("RX", k, b))] if jl == 0 else ())
                    rx_m.setdefault(k, n)
        for idx in range(PD):
            for ins in self.rd2(idx, *G[idx]):
                A(ins); self.lg.issue(("W2", idx))
        last_rf = {}
        for idx in range(NG - PD):
            s, kb, jl = G[idx + PD]
            for i, ins in enumerate(self.rd2(idx + PD, s, kb, jl)):
                n = S.force(It(ins, "lg", ("W2", idx + PD)), 4 * idx + i)
            last_rf[(s, jl)] = n
        for s in (1, 3, 5):
            for jl in range(8):
                S.place(f"v_xor_b32 v{V_RF + jl}, 0x10000, v{V_RF + jl}", last_rf[(s, jl)], last_rf[(s, jl)] + 3)
        n = 0
        for ri in range(2):
            for b in range(4):
                d = V_FR + (ri * 4 + b) * 4
                x = It(f"buffer_store_dwordx4 v[{d}:{d + 3}], v{V_L16}, s[{SRD_A2}:{SRD_A2 + 3}], s{S_U4 if ri else S_HO} offen offset:{b * 1024} sc1",
                       "vm", "hst", needs=[("lg", ("hrd", ri, b))], cost=1)
                n = S.place(x, n) + opt.get("hst_gap", 2)
        ld, chk = self.poll_items("LF_fa", f"buffer_load_dword v{V_FLG}, v{V_FLG + 1}, s[{SRD_FL}:{SRD_FL + 3}], s{S_FA} offen sc1", V_FLG)
        n = S.place(ld, max(n, opt.get("fa_ld", 30)))
        p_fa = S.seq(chk, max(n + 1, opt.get("fa_chk", 60)))
        x = self.st.stamp("fapoll")
        if x:
            S.place(It(x), p_fa + 1)
        for t in range(1, NSTEP):
            x = self.st.stamp(f"s{t}")
            if x:
                S.place(It(x), 4 * first_s[t])
        fs_ld, fs_chk = self.poll_items("LF_fs", f"buffer_load_dword v{V_FLG}, v{V_FLG + 1}, s[{SRD_FL}:{SRD_FL + 3}], s{S_FA} offen offset:32 sc1", V_FLG)
        Q = []
        for s in range(NSTEP):
            for kb in range(4):
                if s == 0 and kb < 3:
                    continue
                early = 4 * last_a[(s - 3, kb)] + 4 if s >= 3 else 0
                Q.append((4 * first_a[(s, kb)], "A", s, kb, early))
        for t in range(3, NSTEP):
            early = 4 * (first_s[t - 2] - PD)
            Q.append((4 * (first_s[t] - PD), "D", t, 0, early))
        Q.sort(key=lambda x: x[0])
        rate, burst = opt.get("rate", 5), opt.get("burst", 4)
        n = p_fa + 1
        slack = []
        q, i = V_T2, V_T2 + 1
        pos = {}
        for need, kind, a, b_, early in Q:
            step = rate if need - n > opt.get("ahead", 128) else (burst if need - n > 80 else opt.get("burst0", 2))
            n = max(n, early)
            if kind == "A":
                if (a, b_) == (NF, 0):
                    n = S.seq(fs_chk, n) + 1
                for b in range(4):
                    n = S.place(It(self.a_load(a, b_, b), "vm", ("A", a, b_)), n)
                    last = n
                    n += step
                slack.append((kind, a, b_, need - last))
                n = max(n, S.seq(self.a_adv(a, b_), last + 1))
                pos[(a, b_)] = n
                if (a, b_) == tuple(opt.get("fs_at", (2, 3))):
                    p_fs = S.place(It([f"buffer_store_dword v{V_T2 + 3}, v{V_T2 + 2}, s[{SRD_FL}:{SRD_FL + 3}], s{S_FA} offen offset:32 sc1"], "vm", "fs", needs=[("vm", "hst")]), n)
                    n = p_fs + 1
                if (a, b_) == (NF - 1, opt.get("fs_kb", 0)):
                    n = S.place(fs_ld, n) + 1
            else:
                for e in range(8):
                    m, ldi = self.dma2(a, e)
                    n = self.put_dma(S, m, ldi, ("D2", a), n)
                    last = n
                    n += step
                slack.append((kind, a, 0, need - last))
                n = max(n, S.seq(self.dma2_adv(a), last + 1))
                pos[("D", a)] = n
        self.slack = slack
        assert min(x[3] for x in slack) > 1, slack
        t0, t1, t2, t3 = V_T2 + 4, V_T2 + 5, V_T2 + 6, V_T2 + 7
        o = [f"s_and_b32 s{T}, s{S_W}, 1", f"s_lshl_b32 s{T}, s{T}, 1", f"s_add_u32 s{T}, s{T}, s{S_sp}", f"s_lshl_b32 s{T}, s{T}, 5",
             f"v_lshrrev_b32 v{t0}, 3, v{V_LANE}", f"v_and_b32 v{t1}, 7, v{V_LANE}"]
        for e in range(8):
            o += [f"v_add_u32 v{t2}, {8 * e}, v{t0}",
                  f"v_bfe_u32 v{t3}, v{t2}, 1, 3",
                  f"v_xor_b32 v{t3}, v{t3}, v{t1}",
                  f"v_lshlrev_b32 v{t3}, 4, v{t3}",
                  f"v_add_u32 v{t2}, s{T}, v{t2}",
                  f"v_and_b32 v{t2}, 127, v{t2}",
                  f"v_lshl_add_u32 v{V_SO2 + e}, v{t2}, 11, v{t3}"]
            if e & 3:
                o.append(f"v_subrev_u32 v{V_SO2 + e}, {(e & 3) * 1024}, v{V_SO2 + e}")
        o += [f"v_lshrrev_b32 v{t0}, 1, v{i}", f"v_xor_b32 v{t0}, v{t0}, v{q}", f"v_lshlrev_b32 v{t0}, 4, v{t0}",
              f"v_lshl_add_u32 v{V_RS}, v{i}, 7, v{t0}", f"v_xor_b32 v{V_RS + 1}, 64, v{V_RS}",
              f"v_add_u32 v{V_RS + 2}, 0x10000, v{V_RS}", f"v_add_u32 v{V_RS + 3}, 0x10000, v{V_RS + 1}"]
        o += [f"v_mov_b32 v{V_SEL + j}, 0" for j in (0, 1, 4, 5)]
        o += [f"v_lshlrev_b32 v{t0}, 2, v{q}", f"v_sub_u32 v{t0}, v{i}, v{t0}",
              f"v_and_b32 v{t1}, 1, v{t0}", f"v_lshlrev_b32 v{t1}, 4, v{t1}", f"v_mov_b32 v{t2}, 0x3f80", f"v_lshlrev_b32 v{t1}, v{t1}, v{t2}",
              f"v_lshrrev_b32 v{t0}, 1, v{t0}",
              f"v_cmp_eq_u32 s[{T + 2}:{T + 3}], 0, v{t0}", f"v_cmp_eq_u32 s[{T + 4}:{T + 5}], 1, v{t0}", f"v_mov_b32 v{t2}, 0", f"v_mov_b32 v{t3}, 0",
              f"v_cndmask_b32 v{V_SEL + 2}, v{t2}, v{t1}, s[{T + 2}:{T + 3}]", f"v_cndmask_b32 v{V_SEL + 3}, v{t2}, v{t1}, s[{T + 4}:{T + 5}]"]
        n = S.seq(o, p_fa + 2)
        assert n < pos[("D", NF - 1)] - 64
        ST, DKr, XR, DK, NM, XT = V_OWN, V_OWN + 8, V_OWN + 12, V_OWN + 28, V_OWN + 36, V_OWN + 40
        n = max(n + 1, 4 * first_s[1], p_fs + 1)
        o = [f"v_accvgpr_read_b32 v{ST + j}, a{A_RES + j}" for j in range(12)]
        o += [f"v_lshl_add_u32 v{t3}, v{i}, 6, s{S_U1}", f"v_lshl_add_u32 v{t3}, v{q}, 3, v{t3}"]
        n = S.seq(o, n) + 1
        first = True
        for b in range(4):
            for jl in range(2):
                d = XR + (b * 2 + jl) * 2
                n = S.place(It(f"ds_read_b64 v[{d}:{d + 1}], v{t3} offset:{b * 1024 + jl * 32}", "lg", "xr"), n) + 2
                first = False
        o = []
        for j in range(4):
            o += [f"v_lshlrev_b32 v{DK + 2 * j}, 16, v{DKr + j}", f"v_and_b32 v{DK + 2 * j + 1}, 0xffff0000, v{DKr + j}"]
        o += [f"v_mul_f32 v{NM + b}, v{ST + 2 * b}, v{ST + 2 * b + 1}" for b in range(4)]
        Rr = lambda jl, b: V_FR + (jl * 4 + b) * 4
        first = True
        for b in range(4):
            for jl in range(2):
                d = XR + (b * 2 + jl) * 2
                for r in range(4):
                    un = f"v_and_b32 v{XT}, 0xffff0000, v{d + (r >> 1)}" if r & 1 else f"v_lshlrev_b32 v{XT}, 16, v{d + (r >> 1)}"
                    o += [It(un, needs=[("lg", "xr")] if first else ()),
                          f"v_fma_f32 v{XT + 1}, v{XT}, v{ST + 2 * b + 1}, -v{NM + b}",
                          f"v_fma_f32 v{Rr(jl, b) + r}, v{XT + 1}, v{DK + 4 * jl + r}, v{XT}"]
                    first = False
        vo, fz = t0, t1
        o += [f"v_lshlrev_b32 v{vo}, 14, v{i}", f"v_lshl_add_u32 v{vo}, v{q}, 4, v{vo}", f"v_mov_b32 v{fz}, 0",
              f"s_lshl_b32 s{S_U0}, s{S_U0}, 7", f"s_lshl_b32 s{T}, s{S_G}, 18", f"s_add_u32 s{S_U0}, s{S_U0}, s{T}",
              f"s_lshl_b32 s{S_U1}, s{S_tile}, 11", f"s_lshl_b32 s{T}, s{S_W}, 7", f"s_add_u32 s{S_U1}, s{S_U1}, s{T}",
              f"s_mul_i32 s{S_U2}, s{S_tile}, {12 * 16384}", f"s_lshl_b32 s{T}, s{S_W}, 12", f"s_add_u32 s{S_U2}, s{S_U2}, s{T}"]
        n = S.seq(o, n + 8)
        o = []
        for d in (1, 2, 3):
            sd, sf = T + 2 * (d - 1), T + 2 * (d - 1) + 1
            o += [f"s_add_u32 s{sf}, s{S_sp}, {d}", f"s_and_b32 s{sf}, s{sf}, 3",
                  f"s_mul_i32 s{sd}, s{sf}, {3 * 16384}", f"s_add_u32 s{sd}, s{sd}, {(d - 1) * 16384}", f"s_add_u32 s{sd}, s{sd}, s{S_U2}",
                  f"s_lshl_b32 s{sf}, s{sf}, 9", f"s_add_u32 s{sf}, s{sf}, s{S_U1}"]
        o += [f"s_lshl_b32 s{S_U3}, s{S_sp}, 9", f"s_add_u32 s{S_U1}, s{S_U1}, s{S_U3}",
              f"s_mul_i32 s{S_U3}, s{S_sp}, {3 * 16384}", f"s_add_u32 s{S_U2}, s{S_U2}, s{S_U3}",
              f"s_add_u32 s{S_U3}, s{S_U2}, 16384", f"s_add_u32 s{S_U4}, s{S_U2}, 32768"]
        n = S.seq(o, n + 1)
        assert n < 4 * pair_end[1], (n, pair_end)
        end_keep = 4 * NG - 1
        for nm, at in [("send1", 4 * pair_end[1]), ("send2", 4 * pair_end[2]), ("send3", 4 * pair_end[3]), ("keepend", end_keep - 2)]:
            x = self.st.stamp(nm)
            if x:
                S.place(It(x), at)
        sent = {}
        for d in (1, 2, 3):
            n = 4 * pair_end[d] + 2
            for b in range(4):
                c0, c1 = acc2(2 * d, b), acc2(2 * d + 1, b)
                n = S.seq([f"v_cvt_pk_bf16_f32 v{c0}, v{c0}, v{c0 + 1}", f"v_cvt_pk_bf16_f32 v{c0 + 1}, v{c0 + 2}, v{c0 + 3}",
                           f"v_cvt_pk_bf16_f32 v{c0 + 2}, v{c1}, v{c1 + 1}", f"v_cvt_pk_bf16_f32 v{c0 + 3}, v{c1 + 2}, v{c1 + 3}",
                           It(f"buffer_store_dwordx4 v[{c0}:{c0 + 3}], v{V_L16}, s[{SRD_P}:{SRD_P + 3}], s{T + 2 * (d - 1)} offen offset:{b * 1024} sc1", "vm", ("S", d))], n)
            sent[d] = n
        fd = opt.get("flag_delay", 64)
        lim = rx_m[0] - 1
        for d in (1, 2, 3):
            x = It(f"buffer_store_dword v{V_T2 + 3}, v{fz}, s[{SRD_FL}:{SRD_FL + 3}], s{T + 2 * (d - 1) + 1} offen offset:{4 * (d - 1)} sc1", "vm", ("F", d), needs=[("vm", ("S", d))])
            S.place(x, min(sent[d] + fd, lim - 3), lim - 1)
        rx_pos = opt.get("rx", [[40, 0], [40, 0], [0, 0]])
        tail = []
        for k in range(3):
            fr = [V_FLG, V_FLG + 1, t2][k]
            ld, chk = self.poll_items(f"LF_rx{k}", f"buffer_load_dword v{fr}, v{fz}, s[{SRD_FL}:{SRD_FL + 3}], s{S_U1} offen offset:{4 * k} sc1", fr)
            rxl = [It(f"buffer_load_dwordx4 v[{RXr(k, b)}:{RXr(k, b) + 3}], v{V_L16}, s[{SRD_P}:{SRD_P + 3}], s{[S_U2, S_U3, S_U4][k]} offen offset:{b * 1024} sc1", "vm", ("RX", k, b)) for b in range(4)]
            a, c = rx_pos[k]
            if a:
                n = S.place(ld, lim - a, lim - 1)
            else:
                tail.insert(0, ld)
            if c:
                assert a > c
                n = S.seq(chk + rxl, max(n + 1, lim - c))
                assert n < lim
            else:
                tail += [chk[0], It(["s_nop 0"] + chk[1].text)] + rxl
        for x in tail:
            x.scalar = False
            S.g[lim]["V"].append(x)
        pre, segs = S.emit()
        A(pre)
        for s in segs:
            A(s)
        self.over2 = S.over
        for k in range(3):
            f = [j for j, l in enumerate(A.l) if l.startswith(f"buffer_store_dword v{V_T2 + 3}, v{fz},") and f"offset:{4 * k} " in l]
            assert len(f) == 1 and f[0] < A.l.index(f"LF_rx{k}_back:")
        A(self.st.stamp("rxdone"))
        A("s_nop 6")
        aux = opt.get("out_st", "sc1")
        for b in range(4):
            for jl in range(2):
                c, r = acc2(jl, b), Rr(jl, b)
                A([f"v_pk_add_f32 v[{c + j}:{c + j + 1}], v[{c + j}:{c + j + 1}], v[{r + j}:{r + j + 1}]" for j in (0, 2)])
                A(f"buffer_store_dwordx4 v[{c}:{c + 3}], v{vo}, s[{SRD_O}:{SRD_O + 3}], s{S_U0} offen offset:{jl * 64} {aux}")
            if b < 3:
                A(f"s_add_u32 s{S_U0}, s{S_U0}, 4096")

    def gen(self):
        A = self.A
        self.prologue()
        self.gemm1()
        self.transition()
        self.gemm2()
        self.st.dump(A, S_WSP, S_W, V_OWN, SRD_T)
        A("s_endpgm")
        A("LF_lbspin:")
        A(f"s_cmp_gt_u32 s{S_T + 4}, 0x40000")
        A("s_cbranch_scc1 LF_lbok")
        A(self.lb_loads)
        A("s_waitcnt vmcnt(0)")
        A("s_branch LF_lbchk")
        self.emit_spins()
        A("LF_end:")
        A("s_endpgm")
        bad = hazard.check(A.l)
        assert not bad, "\n".join(bad)
        import re
        fresh, prev = False, None
        for l in A.l:
            if re.match(r"s_\w+ m0,", l):
                assert not fresh, l
                fresh = True
            elif l.startswith("buffer_load") and l.endswith(" lds"):
                off = int(re.search(r"offset:(\d+)", l).group(1))
                srdn = re.search(r"s\[(\d+):", l).group(1)
                assert fresh == (off == 0), l
                assert off == 0 or prev == (srdn, off - 1024), l
                fresh, prev = False, (srdn, off)
        if self.opt.get("verbose"):
            print("over1", self.over1, "over2", self.over2)
            print("slack", self.slack)
        return dict(text=kernel_head(self.name) + A.text(), desc=kernel_desc(self.name, 512, 256), lds=ST1 * NST + 16384, grid=256, block=256, stamps=self.st.names)


def gen_f(name, opt):
    return F(name, opt).gen()
```

```python
from gen_common import *


def wave_sum2(A, a, b):
    for ctl in ["row_shr:1", "row_shr:2", "row_shr:4", "row_shr:8"]:
        A("s_nop 0")
        A(f"v_add_f32_dpp v{a}, v{a}, v{a} {ctl} row_mask:0xf bank_mask:0xf bound_ctrl:1")
        A(f"v_add_f32_dpp v{b}, v{b}, v{b} {ctl} row_mask:0xf bank_mask:0xf bound_ctrl:1")
    for ctl in ["row_bcast:15 row_mask:0xa", "row_bcast:31 row_mask:0xc"]:
        A("s_nop 0")
        A(f"v_add_f32_dpp v{a}, v{a}, v{a} {ctl} bank_mask:0xf")
        A(f"v_add_f32_dpp v{b}, v{b}, v{b} {ctl} bank_mask:0xf")


def gen_k0(name, opt):
    A = Asm()
    st = Stamps(opt.get("diag"), 0)
    PITCH = 2048 + 32
    A("s_cmp_ge_u32 s2, 256")
    A("s_cbranch_scc1 L0_end")
    st.start(A)
    A(f"s_load_dwordx2 s[4:5], s[0:1], {KA['x']}")
    A(f"s_load_dwordx2 s[6:7], s[0:1], {KA['ws']}")
    A("v_and_b32 v1, 63, v0")
    A("v_lshrrev_b32 v2, 6, v0")
    A("v_lshlrev_b32 v3, 4, v1")
    A("v_readfirstlane_b32 s24, v2")
    A("s_lshr_b32 s25, s2, 3")
    A("s_bfe_u32 s26, s2, 0x20001")
    A("s_and_b32 s27, s2, 1")
    A("s_lshl_b32 s28, s25, 6")
    A("s_lshl_b32 s29, s27, 5")
    A("s_add_u32 s28, s28, s29")
    A("s_lshl_b32 s29, s24, 3")
    A("s_add_u32 s28, s28, s29")
    A("s_add_u32 s28, s28, s26")
    A("s_lshl_b32 s29, s28, 11")
    A("s_add_u32 s30, s29, 8192")
    A("s_waitcnt lgkmcnt(0)")
    srd(A, 8, 4, 0, 2048 * 2048)
    A("buffer_load_dwordx4 v[8:11], v3, s[8:11], s29 offen")
    A("buffer_load_dwordx4 v[12:15], v3, s[8:11], s29 offen offset:1024")
    A("buffer_load_dwordx4 v[16:19], v3, s[8:11], s30 offen")
    A("buffer_load_dwordx4 v[20:23], v3, s[8:11], s30 offen offset:1024")
    srd(A, 12, 6, WS_XN, 0x400000)
    srd(A, 16, 6, WS_STATS, 0x4000)
    srd(A, 20, 6, WS_AGG, 0x80000)
    assert WS_FLAG == WS_AGG + 0x40000
    A("v_lshlrev_b32 v4, 2, v0")
    A("s_lshl_b32 s31, s2, 10")
    A("v_mov_b32 v5, -1")
    aux = opt.get("k0_st", "sc1")
    A(f"buffer_store_dword v5, v4, s[20:23], s31 offen {aux}")
    A("s_add_u32 s31, s31, 0x40000")
    A("v_mov_b32 v7, 0")
    A(f"buffer_store_dword v7, v4, s[20:23], s31 offen {aux}")
    X = [32, 48]
    A("s_waitcnt vmcnt(4)")
    for d in range(8):
        A(f"v_lshlrev_b32 v{X[0] + 2 * d}, 16, v{8 + d}")
        A(f"v_and_b32 v{X[0] + 2 * d + 1}, 0xffff0000, v{8 + d}")
    A("s_waitcnt vmcnt(2)")
    for d in range(8):
        A(f"v_lshlrev_b32 v{X[1] + 2 * d}, 16, v{16 + d}")
        A(f"v_and_b32 v{X[1] + 2 * d + 1}, 0xffff0000, v{16 + d}")
    for r in range(2):
        A(f"v_pk_add_f32 v[{24 + 2 * r}:{25 + 2 * r}], v[{X[r]}:{X[r] + 1}], v[{X[r] + 2}:{X[r] + 3}]")
    for d in range(2, 8):
        for r in range(2):
            A(f"v_pk_add_f32 v[{24 + 2 * r}:{25 + 2 * r}], v[{24 + 2 * r}:{25 + 2 * r}], v[{X[r] + 2 * d}:{X[r] + 2 * d + 1}]")
    A("v_add_f32 v24, v24, v25")
    A("v_add_f32 v26, v26, v27")
    wave_sum2(A, 24, 26)
    A("s_nop 0")
    A("v_readlane_b32 s32, v24, 63")
    A("v_readlane_b32 s33, v26, 63")
    A(f"v_mov_b32 v28, {hx(f2u(1.0 / 1024))}")
    A("s_nop 0")
    A("v_mul_f32 v24, s32, v28")
    A("v_mul_f32 v26, s33, v28")
    for r in range(2):
        A(f"v_mov_b32 v{64 + 2 * r}, 0")
        A(f"v_mov_b32 v{65 + 2 * r}, 0")
    for d in range(8):
        for r in range(2):
            A(f"v_pk_add_f32 v[{68 + 2 * r}:{69 + 2 * r}], v[{X[r] + 2 * d}:{X[r] + 2 * d + 1}], v[{24 + 2 * r}:{25 + 2 * r}] op_sel_hi:[1,0] neg_lo:[0,1] neg_hi:[0,1]")
        for r in range(2):
            A(f"v_pk_fma_f32 v[{64 + 2 * r}:{65 + 2 * r}], v[{68 + 2 * r}:{69 + 2 * r}], v[{68 + 2 * r}:{69 + 2 * r}], v[{64 + 2 * r}:{65 + 2 * r}]")
    A("v_add_f32 v64, v64, v65")
    A("v_add_f32 v66, v66, v67")
    wave_sum2(A, 64, 66)
    A("s_nop 0")
    A("v_readlane_b32 s32, v64, 63")
    A("v_readlane_b32 s33, v66, 63")
    A("v_cvt_pk_bf16_f32 v25, v24, v26")
    A("s_nop 0")
    A("v_mul_f32 v64, s32, v28")
    A("v_mul_f32 v66, s33, v28")
    A("v_cvt_pk_bf16_f32 v64, v64, v66")
    A("v_lshlrev_b32 v24, 16, v25")
    A("v_and_b32 v26, 0xffff0000, v25")
    A("v_lshlrev_b32 v65, 16, v64")
    A("v_and_b32 v66, 0xffff0000, v64")
    A(f"v_add_f32 v65, {hx(f2u(1e-5))}, v65")
    A(f"v_add_f32 v66, {hx(f2u(1e-5))}, v66")
    A("v_cvt_pk_bf16_f32 v64, v65, v66")
    A("v_lshlrev_b32 v65, 16, v64")
    A("v_and_b32 v66, 0xffff0000, v64")
    A("v_sqrt_f32 v65, v65")
    A("v_sqrt_f32 v66, v66")
    A("s_nop 0")
    A("v_cvt_pk_bf16_f32 v64, v65, v66")
    A("v_lshlrev_b32 v65, 16, v64")
    A("v_and_b32 v66, 0xffff0000, v64")
    A("v_rcp_f32 v25, v65")
    A("v_rcp_f32 v27, v66")
    A("s_lshl_b32 s31, s28, 3")
    A("v_mov_b32 v29, 0")
    A("s_mov_b64 exec, 1")
    A(f"buffer_store_dwordx2 v[24:25], v29, s[16:19], s31 offen {aux}")
    A(f"buffer_store_dwordx2 v[26:27], v29, s[16:19], s31 offen offset:32 {aux}")
    A("s_mov_b64 exec, -1")
    for r in range(2):
        for d in range(8):
            x = X[r] + 2 * d
            A(f"v_pk_add_f32 v[{x}:{x + 1}], v[{x}:{x + 1}], v[{24 + 2 * r}:{25 + 2 * r}] op_sel_hi:[1,0] neg_lo:[0,1] neg_hi:[0,1]")
        for d in range(8):
            x = X[r] + 2 * d
            A(f"v_cvt_pk_bf16_f32 v{8 + 8 * r + d}, v{x}, v{x + 1}")
        for d in range(8):
            x = X[r] + 2 * d
            A(f"v_lshlrev_b32 v{x}, 16, v{8 + 8 * r + d}")
            A(f"v_and_b32 v{x + 1}, 0xffff0000, v{8 + 8 * r + d}")
        for d in range(8):
            x = X[r] + 2 * d
            A(f"v_pk_mul_f32 v[{x}:{x + 1}], v[{x}:{x + 1}], v[{24 + 2 * r}:{25 + 2 * r}] op_sel:[0,1]")
        for d in range(8):
            x = X[r] + 2 * d
            A(f"v_cvt_pk_bf16_f32 v{8 + 8 * r + d}, v{x}, v{x + 1}")
    A(f"s_mul_i32 s31, s24, {2 * PITCH}")
    A("v_add_u32 v4, s31, v3")
    A("ds_write_b128 v4, v[8:11]")
    A("ds_write_b128 v4, v[12:15] offset:1024")
    A(f"ds_write_b128 v4, v[16:19] offset:{PITCH}")
    A(f"ds_write_b128 v4, v[20:23] offset:{PITCH + 1024}")
    A("v_and_b32 v5, 7, v1")
    A("v_lshrrev_b32 v6, 3, v1")
    A(f"v_mul_u32_u24 v7, {PITCH}, v5")
    A("v_lshl_add_u32 v7, v6, 4, v7")
    A("s_lshl_b32 s31, s24, 9")
    A("v_add_u32 v7, s31, v7")
    A("v_lshrrev_b32 v29, 2, v6")
    A("v_and_b32 v6, 3, v6")
    A("v_lshlrev_b32 v29, 12, v29")
    A("v_lshl_add_u32 v29, v6, 8, v29")
    A("v_lshl_add_u32 v29, v5, 4, v29")
    A("s_lshl_b32 s31, s25, 17")
    A("s_lshl_b32 s32, s26, 10")
    A("s_add_u32 s31, s31, s32")
    A("s_lshl_b32 s32, s27, 7")
    A("s_add_u32 s31, s31, s32")
    A("s_lshl_b32 s32, s24, 15")
    A("s_add_u32 s31, s31, s32")
    A("s_waitcnt lgkmcnt(0)")
    A("s_barrier")
    for j in range(4):
        A(f"ds_read_b128 v[{8 + 4 * j}:{11 + 4 * j}], v7 offset:{128 * j}")
    aux = opt.get("k0_st", "sc1")
    for j in range(4):
        A(f"s_waitcnt lgkmcnt({3 - j})")
        A(f"buffer_store_dwordx4 v[{8 + 4 * j}:{11 + 4 * j}], v29, s[12:15], s31 offen {aux}")
        if j < 3:
            A("s_add_u32 s31, s31, 8192")
    if opt.get("diag"):
        A("s_waitcnt vmcnt(0)")
    st.dump(A, 6, 24, 32, 40)
    A("L0_end:")
    A("s_endpgm")
    return dict(text=kernel_head(name) + A.text(), desc=kernel_desc(name, 72, 72), lds=8 * PITCH, grid=256, block=256, stamps=st.names)
```

```python
import math
from gen_common import *

STAGE = 36864
NST = 4
T_UP = 14336
T_SSM = 28672
LOG2E = 1.4426950408889634

S_WSP = 80
SRD_F = 4
SRD_S = 8
SRD_X = 12
SRD_A2 = 16
SRD_AG = 20
S_W, S_G, S_g, S_m, S_odd = 24, 25, 26, 27, 28
S_FOFF, S_SOFF, S_XOFF0, S_XOFF1 = 29, 30, 31, 32
S_DF, S_DS = 33, 34
S_DST = 35
S_DFS, S_DSS = 36, 37
S_RST = 38
S_IT = 39
S_T = 40

V_LANE = 1
V_L16 = 2
V_FO = 3
V_SO = 10
V_RB = 12
V_RD = 16
V_PAR = 20
V_C = 44
V_T = 46
V_SACC = 64
V_X = 128
V_W = 192
V_E = 216


def accF(t, jb, b):
    return R("a", ((t * 7 + jb) * 4 + b) * 4)


def accS(ri, sb, b):
    return R("v", V_SACC + ((ri * 2 + sb) * 4 + b) * 4)


def par(sb, k):
    return V_PAR + sb * 12 + 2 * k


P_L1, P_L16, P_L64, P_L16Q, P_L512Q, P_CF = range(6)


def cmul_add(dst, lam, h, add):
    return [
        f"v_pk_fma_f32 v[{dst}:{dst + 1}], v[{lam}:{lam + 1}], v[{h}:{h + 1}], v[{add}:{add + 1}] op_sel_hi:[1,0,1]",
        f"v_pk_fma_f32 v[{dst}:{dst + 1}], v[{lam}:{lam + 1}], v[{h}:{h + 1}], v[{dst}:{dst + 1}] op_sel:[1,1,0] op_sel_hi:[0,1,1] neg_lo:[1,0,0]",
    ]


def cmul(dst, lam, h):
    return [
        f"v_pk_mul_f32 v[{dst}:{dst + 1}], v[{lam}:{lam + 1}], v[{h}:{h + 1}] op_sel_hi:[1,0]",
        f"v_pk_fma_f32 v[{dst}:{dst + 1}], v[{lam}:{lam + 1}], v[{h}:{h + 1}], v[{dst}:{dst + 1}] op_sel:[1,1,0] op_sel_hi:[0,1,1] neg_lo:[1,0,0]",
    ]


def interleave(*lists):
    out = []
    n = max(len(x) for x in lists)
    for i in range(n):
        for x in lists:
            if i < len(x):
                out.append(x[i])
    return out


class K1:
    def __init__(self, name, opt):
        self.name = name
        self.opt = opt
        self.A = Asm()
        self.vm = Cnt("vm", 63)
        self.lg = Cnt("lgkm", 15)
        self.PD = opt.get("k1_pd", 4)
        self.NR = 6
        self.st = Stamps(opt.get("diag"), 1)
        self.order = [("S", 0, 0), ("S", 1, 0), ("S", 0, 1), ("S", 1, 1)] + [("F", t, jb) for jb in range(7) for t in range(2)]

    def frag(self, f):
        return (f // 18,) + self.order[f % 18]

    def wreg(self, f):
        return V_W + 4 * (f % self.NR)

    def rd_instrs(self, f):
        kk, kind, p, q = self.frag(f)
        w = self.wreg(f)
        if kind == "S":
            off = T_SSM + p * 4096 + q * 2048
            return [f"ds_read_b128 v[{w}:{w + 3}], v{V_RD + 2 + kk} offset:{off}"]
        off = p * T_UP + kk * 7168 + (q * 32 if q < 6 else 0)
        a = V_RD + (0 if q < 6 else 1)
        return [f"ds_read_b64_tr_b16 v[{w + 2 * h}:{w + 2 * h + 1}], v{a} offset:{off + h * 1792}" for h in range(2)]

    def xreg(self, par_, kk, b):
        return V_X + ((par_ * 2 + kk) * 4 + b) * 4

    def x_load(self, par_, kk, b):
        x = self.xreg(par_, kk, b)
        return f"buffer_load_dwordx4 v[{x}:{x + 3}], v{V_L16}, s[{SRD_X}:{SRD_X + 3}], s{S_XOFF0 + kk} offen offset:{b * 1024}"

    def dma(self, n):
        aux = self.opt.get("k1_w_aux", "")
        if n < 7:
            return (f"s_add_u32 m0, s{S_DFS}, {n * 1024}",
                    f"buffer_load_dwordx4 v{V_FO + n}, s[{SRD_F}:{SRD_F + 3}], s{S_FOFF} offen {aux} lds")
        e = n - 7
        return (f"s_add_u32 m0, s{S_DSS}, {e * 1024}",
                f"buffer_load_dwordx4 v{V_SO + e}, s[{SRD_S}:{SRD_S + 3}], s{S_SOFF} offen {aux} lds")

    def dma_advance(self):
        return [f"s_add_u32 s{S_FOFF}, s{S_FOFF}, {64 * 7168}",
                f"s_add_u32 s{S_SOFF}, s{S_SOFF}, 128",
                f"s_add_u32 s{S_DST}, s{S_DST}, {STAGE}",
                f"s_cmp_eq_u32 s{S_DST}, {STAGE * NST}",
                f"s_cselect_b32 s{S_DST}, 0, s{S_DST}",
                f"s_add_u32 s{S_DFS}, s{S_DF}, s{S_DST}",
                f"s_add_u32 s{S_DSS}, s{S_DS}, s{S_DST}"]

    def x_advance(self):
        return [f"s_add_u32 s{S_XOFF0}, s{S_XOFF0}, 8192", f"s_add_u32 s{S_XOFF1}, s{S_XOFF1}, 8192"]

    def rd_advance_s(self):
        return [f"s_add_u32 s{S_RST}, s{S_RST}, {STAGE}",
                f"s_cmp_eq_u32 s{S_RST}, {STAGE * NST}",
                f"s_cselect_b32 s{S_RST}, 0, s{S_RST}"]

    def mfma(self, f, b, par_):
        kk, kind, p, q = self.frag(f)
        w = self.wreg(f)
        x = self.xreg(par_, kk, b)
        if kind == "S":
            c = accS(p, q, b).r(4)
            return f"v_mfma_f32_16x16x32_bf16 {c}, v[{x}:{x + 3}], v[{w}:{w + 3}], {c}"
        c = accF(p, q, b).r(4)
        return f"v_mfma_f32_16x16x32_bf16 {c}, v[{w}:{w + 3}], v[{x}:{x + 3}], {c}"

    def step(self, s, do_x, do_dma, do_next):
        A, PD = self.A, self.PD
        par_ = s & 1
        vops = []
        if do_x:
            for kk in range(2):
                for b in range(4):
                    vops.append((None, self.x_load(par_ ^ 1, kk, b), ("X", s + 1, kk)))
        if do_dma:
            for n in range(9):
                m, ld = self.dma(n)
                vops.append((m, ld, ("D", s + 2)))
        vslot = {2 * i: op for i, op in enumerate(vops)}
        misc = {}
        if do_x:
            misc.setdefault(17, []).extend(self.x_advance())
        if do_dma:
            adv = self.dma_advance()
            misc.setdefault(33, []).extend(adv[:2])
            misc.setdefault(34, []).extend(adv[2:5])
            misc.setdefault(35, []).extend(adv[5:])
        if do_next:
            misc.setdefault(29, []).extend(self.rd_advance_s())
        for f in range(36):
            vmw = None
            if f == 0:
                vmw = self.vm.need(("X", s, 0))
            if f == 18:
                vmw = self.vm.need(("X", s, 1))
            nxt = f + PD
            bar = do_next and nxt == 36
            if bar:
                w2 = self.vm.need(("D", s + 1))
                vmw = w2 if w2 is not None else vmw
            lw = self.lg.need(("W", s, f))
            A(waitcnt(vmw, lw))
            if bar:
                A("s_barrier")
            rds = []
            if nxt < 36:
                rds = [(i, ("W", s, nxt)) for i in self.rd_instrs(nxt)]
            elif do_next:
                rds = [(i, ("W", s + 1, nxt - 36)) for i in self.rd_instrs(nxt - 36)]
            fill = [[], [], [], []]
            if do_next:
                if f == 30:
                    fill[3].append(f"v_add_u32 v{V_RD + 2}, s{S_RST}, v{V_RB + 2}")
                    fill[2].append(f"v_add_u32 v{V_RD + 3}, s{S_RST}, v{V_RB + 3}")
                if f == 36 - PD:
                    fill[2].append(f"v_add_u32 v{V_RD + 0}, s{S_RST}, v{V_RB + 0}")
                    fill[3].append(f"v_add_u32 v{V_RD + 1}, s{S_RST}, v{V_RB + 1}")
            for i, (ins, tag) in enumerate(rds):
                fill[i].insert(0, (ins, "lg", tag))
            if f in vslot:
                pre, ins, tag = vslot[f]
                if pre:
                    fill[1].append(pre)
                fill[2].append((ins, "vm", tag))
            for i, ins in enumerate(misc.get(f, [])):
                fill[min(1 + i, 3)].append(ins)
            for b in range(4):
                A(self.mfma(f, b, par_))
                for it in fill[b]:
                    if isinstance(it, tuple):
                        abl = self.opt.get("abl", "")
                        A("s_nop 0" if it[2][0] in abl else it[0])
                        (self.lg if it[1] == "lg" else self.vm).issue(it[2])
                    else:
                        A(it)

    def prologue(self):
        A, PD = self.A, self.PD
        T = S_T
        A("s_cmp_ge_u32 s2, 256")
        A("s_cbranch_scc1 L1_end")
        self.st.start(A)
        A(f"s_load_dwordx4 s[{T}:{T + 3}], s[0:1], {KA['wg']}")
        A(f"s_load_dwordx4 s[{T + 4}:{T + 7}], s[0:1], {KA['Bre']}")
        A(f"s_load_dwordx4 s[{T + 8}:{T + 11}], s[0:1], {KA['Lre']}")
        A(f"s_load_dwordx2 s[{T + 12}:{T + 13}], s[0:1], {KA['ldt']}")
        A(f"s_load_dwordx2 s[{S_WSP}:{S_WSP + 1}], s[0:1], {KA['ws']}")
        A(f"v_lshrrev_b32 v{V_T}, 6, v0")
        A(f"v_and_b32 v{V_LANE}, 63, v0")
        A(f"v_readfirstlane_b32 s{S_W}, v{V_T}")
        A(f"v_lshlrev_b32 v{V_L16}, 4, v{V_LANE}")
        A(f"s_and_b32 s{S_g}, s2, 7")
        A(f"s_lshl_b32 s{S_g}, s{S_g}, 2")
        A(f"s_bfe_u32 s{S_m}, s2, 0x20003")
        A(f"s_add_u32 s{S_g}, s{S_g}, s{S_m}")
        A(f"s_lshr_b32 s{S_m}, s2, 5")
        A(f"s_and_b32 s{S_odd}, s{S_g}, 1")
        A(f"s_lshl_b32 s{S_G}, s{S_m}, 2")
        A(f"s_add_u32 s{S_G}, s{S_G}, s{S_W}")
        t0, t1, t2 = V_T, V_T + 1, V_T + 2
        for n in range(7):
            A(f"v_add_u32 v{t0}, {64 * n}, v{V_LANE}")
            A(f"v_mul_u32_u24 v{t1}, 4682, v{t0}")
            A(f"v_lshrrev_b32 v{t1}, 16, v{t1}")
            A(f"v_mul_u32_u24 v{t2}, 14, v{t1}")
            A(f"v_sub_u32 v{t0}, v{t0}, v{t2}")
            A(f"v_lshlrev_b32 v{t0}, 4, v{t0}")
            A(f"v_lshrrev_b32 v{t2}, 1, v{t1}")
            A(f"v_xor_b32 v{t2}, v{t2}, v{t1}")
            A(f"v_and_b32 v{t2}, 4, v{t2}")
            A(f"v_mul_u32_u24 v{t2}, 3, v{t2}")
            A(f"v_xor_b32 v{t1}, v{t1}, v{t2}")
            A(f"v_mul_u32_u24 v{t1}, 7168, v{t1}")
            A(f"v_add_u32 v{V_FO + n}, v{t0}, v{t1}")
        for x in range(448):
            assert (x * 4682) >> 16 == x // 14
        A(f"v_lshrrev_b32 v{t0}, 3, v{V_LANE}")
        A(f"v_and_b32 v{t1}, 7, v{V_LANE}")
        for e in range(2):
            A(f"v_add_u32 v{t2}, {8 * e}, v{t0}")
            A(f"v_lshrrev_b32 v{V_SO + e}, 1, v{t2}")
            A(f"v_xor_b32 v{V_SO + e}, v{V_SO + e}, v{t1}")
            A(f"v_lshlrev_b32 v{V_SO + e}, 4, v{V_SO + e}")
            A(f"v_lshl_add_u32 v{V_SO + e}, v{t2}, 11, v{V_SO + e}")
        A(f"s_and_b32 s{T + 14}, s{S_W}, 1")
        A(f"s_lshr_b32 s{T + 15}, s{S_W}, 1")
        A(f"s_mul_i32 s{S_FOFF}, s{T + 14}, {32 * 7168}")
        A(f"s_mul_i32 s{T + 16}, s{S_g}, 224")
        A(f"s_add_u32 s{S_FOFF}, s{S_FOFF}, s{T + 16}")
        A(f"s_lshl_b32 s{S_SOFF}, s{S_g}, 16")
        A(f"s_lshl_b32 s{T + 16}, s{T + 14}, 15")
        A(f"s_add_u32 s{S_SOFF}, s{S_SOFF}, s{T + 16}")
        A(f"s_lshl_b32 s{S_XOFF0}, s{S_G}, 17")
        A(f"s_add_u32 s{S_XOFF1}, s{S_XOFF0}, 4096")
        A(f"s_mul_i32 s{S_DF}, s{S_W}, 7168")
        A(f"s_lshl_b32 s{S_DS}, s{S_W}, 11")
        A(f"s_add_u32 s{S_DS}, s{S_DS}, {T_SSM}")
        A(f"s_mov_b32 s{S_DST}, 0")
        A(f"s_mov_b32 s{S_DFS}, s{S_DF}")
        A(f"s_mov_b32 s{S_DSS}, s{S_DS}")
        A(f"s_mov_b32 s{S_RST}, 0")
        A("s_waitcnt lgkmcnt(0)")
        A(f"s_cmp_eq_u32 s{T + 15}, 0")
        A(f"s_cselect_b32 s{SRD_F}, s{T}, s{T + 2}")
        A(f"s_cselect_b32 s{SRD_F + 1}, s{T + 1}, s{T + 3}")
        A(f"s_cselect_b32 s{SRD_S}, s{T + 4}, s{T + 6}")
        A(f"s_cselect_b32 s{SRD_S + 1}, s{T + 5}, s{T + 7}")
        A(f"s_mov_b32 s{SRD_F + 2}, {1024 * 7168}")
        A(f"s_mov_b32 s{SRD_F + 3}, 0x20000")
        A(f"s_mov_b32 s{SRD_S + 2}, {1024 * 2048}")
        A(f"s_mov_b32 s{SRD_S + 3}, 0x20000")
        srd(A, SRD_X, S_WSP, WS_XN, 0x400000)
        for n in range(9):
            m, ld = self.dma(n)
            A(m); A("s_nop 0"); A(ld); self.vm.issue(("D", 0))
        A(self.dma_advance())
        PL = V_E
        A(f"v_and_b32 v{t0}, 15, v{V_LANE}")
        A(f"v_lshlrev_b32 v{t0}, 1, v{t0}")
        A(f"s_lshl_b32 s{T + 16}, s{S_g}, 6")
        for j, p in enumerate([T + 8, T + 10, T + 12]):
            srd(A, SRD_AG, p, 0, 2048)
            for sb in range(2):
                A(f"buffer_load_ushort v{PL + 2 * j + sb}, v{t0}, s[{SRD_AG}:{SRD_AG + 3}], s{T + 16} offen offset:{32 * sb}")
                self.vm.issue("par")
        for kk in range(2):
            for b in range(4):
                A(self.x_load(0, kk, b)); self.vm.issue(("X", 0, kk))
        A(self.x_advance())
        for n in range(9):
            m, ld = self.dma(n)
            A(m); A("s_nop 0"); A(ld); self.vm.issue(("D", 1))
        A(self.dma_advance())
        srd(A, SRD_A2, S_WSP, WS_A2, A2_SIZE)
        A(f"s_lshl_b32 s{T + 16}, s{S_g}, 13")
        A(f"s_add_u32 s{T + 16}, s{T + 16}, {hx(WS_AGG)}")
        A(f"s_add_u32 s{SRD_AG}, s{S_WSP}, s{T + 16}")
        A(f"s_addc_u32 s{SRD_AG + 1}, s{S_WSP + 1}, 0")
        A(f"s_mov_b32 s{SRD_AG + 2}, 8192")
        A(f"s_mov_b32 s{SRD_AG + 3}, 0x20000")
        q, r, c, i = V_T, V_T + 1, V_T + 2, V_T + 3
        u = V_T + 4
        A(f"v_lshrrev_b32 v{q}, 4, v{V_LANE}")
        A(f"v_bfe_u32 v{r}, v{V_LANE}, 2, 2")
        A(f"v_and_b32 v{c}, 3, v{V_LANE}")
        A(f"v_and_b32 v{i}, 15, v{V_LANE}")
        A(f"v_lshrrev_b32 v{u}, 1, v{q}")
        A(f"v_lshl_add_u32 v{u}, v{u}, 4, v{r}")
        A(f"v_and_b32 v{u + 1}, 1, v{q}")
        A(f"v_lshl_add_u32 v{u}, v{u + 1}, 2, v{u}")
        A(f"v_mul_u32_u24 v{u}, 224, v{u}")
        A(f"v_lshl_add_u32 v{u}, v{c}, 3, v{u}")
        A(f"s_lshl_b32 s{T + 16}, s{S_odd}, 5")
        A(f"s_mul_i32 s{T + 17}, s{S_odd}, 192")
        A(f"s_sub_u32 s{T + 17}, 192, s{T + 17}")
        A(f"v_add_u32 v{V_RB}, s{T + 16}, v{u}")
        A(f"v_add_u32 v{V_RB + 1}, s{T + 17}, v{u}")
        A(f"v_lshrrev_b32 v{u}, 1, v{i}")
        A(f"v_xor_b32 v{u}, v{u}, v{q}")
        A(f"v_lshlrev_b32 v{u}, 4, v{u}")
        A(f"v_lshl_add_u32 v{V_RB + 2}, v{i}, 7, v{u}")
        A(f"v_xor_b32 v{V_RB + 3}, 64, v{V_RB + 2}")
        for j in range(4):
            A(f"v_mov_b32 v{V_RD + j}, v{V_RB + j}")
        for j in range(224):
            A(f"v_accvgpr_write_b32 a{j}, 0")
        for j in range(0, 64, 2):
            A(f"v_mov_b64 v[{V_SACC + j}:{V_SACC + j + 1}], 0")
        c0 = -2.0 * LOG2E * math.sqrt(2.0 / math.pi)
        A(f"v_mov_b32 v{V_C}, {hx(f2u(c0 * 0.044715))}")
        A(f"v_mov_b32 v{V_C + 1}, {hx(f2u(c0))}")
        A(waitcnt(self.vm.need("par")))
        lre, lim, dt = PL, PL + 2, PL + 4
        zr, zi = PL + 6, PL + 8
        nq = PL + 10
        tm = PL + 12
        A(f"v_cvt_f32_u32 v{nq}, v{q}")
        for j in range(6):
            A(f"v_lshlrev_b32 v{PL + j}, 16, v{PL + j}")
        for sb in range(2):
            A(f"v_mul_f32 v{dt + sb}, {hx(f2u(LOG2E))}, v{dt + sb}")
        for sb in range(2):
            A(f"v_exp_f32 v{dt + sb}, v{dt + sb}")
        A("s_nop 0")
        A(f"v_cvt_pk_bf16_f32 v{tm}, v{dt}, v{dt + 1}")
        A(f"v_lshlrev_b32 v{dt}, 16, v{tm}")
        A(f"v_and_b32 v{dt + 1}, 0xffff0000, v{tm}")
        for sb in range(2):
            A(f"v_mul_f32 v{zr + sb}, v{dt + sb}, v{lre + sb}")
            A(f"v_mul_f32 v{zi + sb}, v{dt + sb}, v{lim + sb}")
        for sb in range(2):
            A(f"v_mul_f32 v{zr + sb}, {hx(f2u(LOG2E))}, v{zr + sb}")
            A(f"v_mul_f32 v{zi + sb}, {hx(f2u(1.0 / (2 * math.pi)))}, v{zi + sb}")
        for k, (n, byq) in {P_L1: (1, False), P_L16: (16, False), P_L64: (64, False), P_L16Q: (16, True), P_L512Q: (512, True)}.items():
            if byq:
                A(f"v_mul_f32 v{tm + 6}, {hx(f2u(float(n)))}, v{nq}")
            else:
                A(f"v_mov_b32 v{tm + 6}, {hx(f2u(float(n)))}")
            for sb in range(2):
                A(f"v_mul_f32 v{tm + sb}, v{tm + 6}, v{zr + sb}")
                A(f"v_mul_f32 v{tm + 2 + sb}, v{tm + 6}, v{zi + sb}")
            for sb in range(2):
                A(f"v_rndne_f32 v{tm + 4 + sb}, v{tm + 2 + sb}")
            for sb in range(2):
                A(f"v_sub_f32 v{tm + 2 + sb}, v{tm + 2 + sb}, v{tm + 4 + sb}")
            for sb in range(2):
                A(f"v_exp_f32 v{tm + sb}, v{tm + sb}")
            for sb in range(2):
                A(f"v_cos_f32 v{par(sb, k)}, v{tm + 2 + sb}")
                A(f"v_sin_f32 v{par(sb, k) + 1}, v{tm + 2 + sb}")
            A("s_nop 0")
            for sb in range(2):
                p = par(sb, k)
                A(f"v_mul_f32 v{p}, v{p}, v{tm + sb}")
                A(f"v_mul_f32 v{p + 1}, v{p + 1}, v{tm + sb}")
        for sb in range(2):
            l1, cf = par(sb, P_L1), par(sb, P_CF)
            A(f"v_mul_f32 v{tm}, v{lre + sb}, v{lre + sb}")
            A(f"v_fma_f32 v{tm}, v{lim + sb}, v{lim + sb}, v{tm}")
            A(f"v_rcp_f32 v{tm}, v{tm}")
            A(f"v_add_f32 v{tm + 1}, -1.0, v{l1}")
            A(f"v_mul_f32 v{cf}, v{tm + 1}, v{lre + sb}")
            A(f"v_fma_f32 v{cf}, v{l1 + 1}, v{lim + sb}, v{cf}")
            A(f"v_mul_f32 v{cf + 1}, v{l1 + 1}, v{lre + sb}")
            A(f"v_fma_f32 v{cf + 1}, -v{tm + 1}, v{lim + sb}, v{cf + 1}")
            A(f"v_add_f32 v{tm}, v{tm}, v{tm}")
            A(f"v_mul_f32 v{cf}, v{cf}, v{tm}")
            A(f"v_mul_f32 v{cf + 1}, v{cf + 1}, v{tm}")
        A(waitcnt(self.vm.need(("D", 0))))
        A("s_barrier")
        A(self.st.stamp("tile0"))
        for f in range(PD):
            for ins in self.rd_instrs(f):
                A(ins); self.lg.issue(("W", 0, f))

    def epilogue(self):
        A = self.A
        T = S_T
        U = V_X
        u = lambda sb, tau: U + (sb * 16 + tau) * 2
        A(self.st.stamp("loopend"))
        for sb in range(2):
            cf = par(sb, P_CF)
            l1, l2 = [], []
            for r in range(4):
                for b in range(4):
                    d = u(sb, 4 * r + b)
                    a_re = accS(0, sb, b).i + r
                    a_im = accS(1, sb, b).i + r
                    s = r & 1
                    l1.append(f"v_pk_mul_f32 v[{d}:{d + 1}], v[{cf}:{cf + 1}], v[{a_re - s}:{a_re - s + 1}] op_sel:[0,{s}] op_sel_hi:[1,{s}]")
                    l2.append(f"v_pk_fma_f32 v[{d}:{d + 1}], v[{cf}:{cf + 1}], v[{a_im - s}:{a_im - s + 1}], v[{d}:{d + 1}] op_sel:[1,{s},0] op_sel_hi:[0,{s},1] neg_lo:[1,0,0]")
            A(l1); A(l2)
        Q0, Q1 = V_SACC, V_SACC + 4
        cur = [u(0, 0), u(1, 0)]
        for tau in range(1, 16):
            dst = Q0 if tau & 1 else Q1
            A(interleave(*[cmul_add(dst + 2 * sb, par(sb, P_L1), cur[sb], u(sb, tau)) for sb in range(2)]))
            cur = [dst, dst + 2]
        a = Q0
        g0, g1, g2, g3 = a, V_SACC + 8, V_SACC + 12, V_SACC + 16
        for j in range(4):
            A(f"v_mov_b32 v{g2 + j}, v{g0 + j}")
        A("s_nop 1")
        for j in range(4):
            A(f"v_permlane32_swap_b32 v{g0 + j}, v{g2 + j}")
        for j in range(4):
            A(f"v_mov_b32 v{g1 + j}, v{g0 + j}")
        for j in range(4):
            A(f"v_mov_b32 v{g3 + j}, v{g2 + j}")
        for j in range(4):
            A(f"v_permlane16_swap_b32 v{g0 + j}, v{g1 + j}")
        for j in range(4):
            A(f"v_permlane16_swap_b32 v{g2 + j}, v{g3 + j}")
        for prev, nx in [(g0, g1), (g1, g2), (g2, g3)]:
            A(interleave(*[cmul_add(nx + 2 * sb, par(sb, P_L16), prev + 2 * sb, nx + 2 * sb) for sb in range(2)]))
        A(f"s_sub_u32 s{T}, 31, s{S_G}")
        A(f"s_lshl_b32 s{T}, s{T}, 8")
        A("s_mov_b64 exec, 0xffff")
        A(f"buffer_store_dwordx4 v[{g3}:{g3 + 3}], v{V_L16}, s[{SRD_AG}:{SRD_AG + 3}], s{T} offen sc1")
        PQ = V_SACC + 20
        A(f"v_mov_b64 v[{PQ}:{PQ + 1}], 0")
        A(f"v_mov_b64 v[{PQ + 2}:{PQ + 3}], 0")
        for qq, src in [(1, g0), (2, g1), (3, g2)]:
            A("s_lshl_b64 exec, exec, 16")
            A(f"v_mov_b64 v[{PQ}:{PQ + 1}], v[{src}:{src + 1}]")
            A(f"v_mov_b64 v[{PQ + 2}:{PQ + 3}], v[{src + 2}:{src + 3}]")
        A("s_mov_b64 exec, -1")
        A(self.st.stamp("publish"))
        aux = self.opt.get("k1_st", "")
        A(f"s_mul_i32 s{T}, s{S_g}, 7")
        A(f"s_add_u32 s{T}, s{T}, s{S_odd}")
        A(f"s_lshl_b32 s{T}, s{T}, 11")
        A(f"s_mul_i32 s{T + 1}, s{S_G}, {A2_G}")
        A(f"s_add_u32 s{T}, s{T}, s{T + 1}")
        A(f"s_mul_i32 s{T + 2}, s{S_odd}, {4 * 4096 - 8}")
        A(f"s_sub_u32 s{T + 2}, {3 * 4096}, s{T + 2}")
        A(f"s_add_u32 s{T + 2}, s{T + 2}, s{T}")
        Gt, Ut, Zt = V_W, V_W + 8, V_W + 16
        OUT = [V_E, V_E + 4]
        nb = 0

        def gelu8(srcs, out):
            n = len(srcs)
            for j, (ga, ua) in enumerate(srcs):
                A(f"v_accvgpr_read_b32 v{Gt + j}, a{ga}")
            for j in range(0, n, 2):
                A(f"v_pk_mul_f32 v[{Zt + j}:{Zt + j + 1}], v[{Gt + j}:{Gt + j + 1}], v[{Gt + j}:{Gt + j + 1}]")
            for j in range(0, n, 2):
                A(f"v_pk_fma_f32 v[{Zt + j}:{Zt + j + 1}], v[{Zt + j}:{Zt + j + 1}], v[{V_C}:{V_C + 1}], v[{V_C}:{V_C + 1}] op_sel:[0,0,1] op_sel_hi:[1,0,1]")
            for j in range(0, n, 2):
                A(f"v_pk_mul_f32 v[{Zt + j}:{Zt + j + 1}], v[{Zt + j}:{Zt + j + 1}], v[{Gt + j}:{Gt + j + 1}]")
            for j in range(n):
                A(f"v_exp_f32 v{Zt + j}, v{Zt + j}")
            for j, (ga, ua) in enumerate(srcs):
                A(f"v_accvgpr_read_b32 v{Ut + j}, a{ua}")
            for j in range(0, n, 2):
                A(f"v_pk_add_f32 v[{Zt + j}:{Zt + j + 1}], v[{Zt + j}:{Zt + j + 1}], 1.0 op_sel_hi:[1,0]")
            for j in range(n):
                A(f"v_rcp_f32 v{Zt + j}, v{Zt + j}")
            for j in range(0, n, 2):
                A(f"v_pk_mul_f32 v[{Ut + j}:{Ut + j + 1}], v[{Ut + j}:{Ut + j + 1}], v[{Gt + j}:{Gt + j + 1}]")
            for j in range(0, n, 2):
                A(f"v_pk_mul_f32 v[{Ut + j}:{Ut + j + 1}], v[{Ut + j}:{Ut + j + 1}], v[{Zt + j}:{Zt + j + 1}]")
            for j in range(0, n, 2):
                A(f"v_cvt_pk_bf16_f32 v{out + j // 2}, v{Ut + j}, v{Ut + j + 1}")

        for pp in range(3):
            for b in range(4):
                srcs = [(accF(0, 2 * pp + hb, b).i + r, accF(1, 2 * pp + hb, b).i + r) for hb in range(2) for r in range(4)]
                o = OUT[nb & 1]; nb += 1
                gelu8(srcs, o)
                A(f"buffer_store_dwordx4 v[{o}:{o + 3}], v{V_L16}, s[{SRD_A2}:{SRD_A2 + 3}], s{T} offen offset:{b * 1024} {aux}")
            if pp < 2:
                A(f"s_add_u32 s{T}, s{T}, 4096")
        for b2 in range(2):
            srcs = [(accF(0, 6, 2 * b2 + hb).i + r, accF(1, 6, 2 * b2 + hb).i + r) for hb in range(2) for r in range(4)]
            o = OUT[nb & 1]; nb += 1
            gelu8(srcs, o)
            for hb in range(2):
                A(f"buffer_store_dwordx2 v[{o + 2 * hb}:{o + 2 * hb + 1}], v{V_L16}, s[{SRD_A2}:{SRD_A2 + 3}], s{T + 2} offen offset:{(2 * b2 + hb) * 1024} {aux}")
        A(self.st.stamp("gelu"))
        LB = V_SACC + 24
        va, vm_ = V_T, V_T + 1
        A(f"v_lshrrev_b32 v{va}, 4, v{V_LANE}")
        A(f"v_and_b32 v{vm_}, 15, v{V_LANE}")
        A(f"v_lshlrev_b32 v{va}, 11, v{va}")
        A(f"v_lshl_add_u32 v{va}, v{vm_}, 4, v{va}")
        A(f"s_sub_u32 s{T + 3}, 32, s{S_G}")
        A(f"s_lshl_b32 s{T + 3}, s{T + 3}, 8")
        A(f"v_add_u32 v{va}, s{T + 3}, v{va}")
        A(f"s_mov_b32 s{T + 4}, 0")
        A("L1_poll:")
        for e in range(8):
            A(f"buffer_load_dwordx4 v[{LB + 4 * e}:{LB + 4 * e + 3}], v{va}, s[{SRD_AG}:{SRD_AG + 3}], 0 offen offset:{e * 256} sc1")
        A(f"s_add_u32 s{T + 4}, s{T + 4}, 1")
        A("s_waitcnt vmcnt(0)")
        A(f"v_max_u32 v{vm_}, v{LB}, v{LB + 1}")
        for j in range(2, 32, 2):
            A(f"v_max3_u32 v{vm_}, v{vm_}, v{LB + j}, v{LB + j + 1}")
        A(f"v_cmp_eq_u32 vcc, -1, v{vm_}")
        A(f"s_cmp_gt_u32 s{T + 4}, 0x40000")
        A("s_cbranch_scc1 L1_polldone")
        A("s_cbranch_vccnz L1_poll")
        A("L1_polldone:")
        for e in range(6, -1, -1):
            A(interleave(*[cmul_add(LB + 4 * e + 2 * sb, par(sb, P_L64), LB + 4 * (e + 1) + 2 * sb, LB + 4 * e + 2 * sb) for sb in range(2)]))
        Sx, St = LB + 4, LB + 8
        A(interleave(*[cmul(Sx + 2 * sb, par(sb, P_L512Q), LB + 2 * sb) for sb in range(2)]))
        for swp in ["v_permlane32_swap_b32", "v_permlane16_swap_b32"]:
            for j in range(4):
                A(f"v_mov_b32 v{St + j}, v{Sx + j}")
            A("s_nop 1")
            for j in range(4):
                A(f"{swp} v{Sx + j}, v{St + j}")
            for j in range(0, 4, 2):
                A(f"v_pk_add_f32 v[{Sx + j}:{Sx + j + 1}], v[{Sx + j}:{Sx + j + 1}], v[{St + j}:{St + j + 1}]")
        A(interleave(*[cmul_add(PQ + 2 * sb, par(sb, P_L16Q), Sx + 2 * sb, PQ + 2 * sb) for sb in range(2)]))
        cur = [PQ, PQ + 2]
        for tau in range(16):
            A(interleave(*[cmul_add(u(sb, tau), par(sb, P_L1), cur[sb], u(sb, tau)) for sb in range(2)]))
            cur = [u(0, tau), u(1, tau)]
        vw, vrd = V_T + 2, V_T + 3
        A(f"v_and_b32 v{vw}, 15, v{V_LANE}")
        A(f"v_lshrrev_b32 v{vrd}, 4, v{V_LANE}")
        A(f"v_lshlrev_b32 v{vw}, 5, v{vw}")
        A(f"v_lshl_add_u32 v{vw}, v{vrd}, 3, v{vw}")
        A(f"s_lshl_b32 s{T + 3}, s{S_W}, 13")
        A(f"v_add_u32 v{vw}, s{T + 3}, v{vw}")
        A(f"v_lshlrev_b32 v{vrd}, 8, v{vrd}")
        A(f"v_and_b32 v{va}, 15, v{V_LANE}")
        A(f"v_lshl_add_u32 v{vrd}, v{va}, 3, v{vrd}")
        A(f"v_add_u32 v{vrd}, s{T + 3}, v{vrd}")
        PK = V_SACC
        k = 0
        for ri in range(2):
            ng = "-" if ri else ""
            for b in range(4):
                for sb in range(2):
                    d = PK + 2 * k; k += 1
                    A(f"v_cvt_pk_bf16_f32 v{d}, {ng}v{u(sb, b) + ri}, {ng}v{u(sb, 4 + b) + ri}")
                    A(f"v_cvt_pk_bf16_f32 v{d + 1}, {ng}v{u(sb, 8 + b) + ri}, {ng}v{u(sb, 12 + b) + ri}")
                    A(f"ds_write_b64 v{vw}, v[{d}:{d + 1}] offset:{(ri * 4 + b) * 1024 + sb * 512}")
        A(f"s_lshl_b32 s{T}, s{S_g}, 13")
        A(f"s_add_u32 s{T}, s{T}, {112 * 4096}")
        A(f"s_add_u32 s{T}, s{T}, s{T + 1}")
        A(f"s_add_u32 s{T + 2}, s{T}, 4096")
        FR = V_SACC + 32
        A("s_waitcnt lgkmcnt(0)")
        for ri in range(2):
            for b in range(4):
                d = FR + (ri * 4 + b) * 4
                for h in range(2):
                    A(f"ds_read_b64_tr_b16 v[{d + 2 * h}:{d + 2 * h + 1}], v{vrd} offset:{(ri * 4 + b) * 1024 + h * 128}")
        for ri in range(2):
            for b in range(4):
                d = FR + (ri * 4 + b) * 4
                A(f"s_waitcnt lgkmcnt({14 - 2 * (ri * 4 + b)})")
                A(f"buffer_store_dwordx4 v[{d}:{d + 3}], v{V_L16}, s[{SRD_A2}:{SRD_A2 + 3}], s{T + 2 * ri} offen offset:{b * 1024} {aux}")
        if self.opt.get("diag"):
            A("s_waitcnt vmcnt(0)")
        self.st.dump(A, S_WSP, S_W, V_E, 84)

    def gen(self):
        A = self.A
        self.prologue()
        texts = []
        for it in range(3):
            sub = Asm(); self.A = sub
            self.step(2 * it, True, True, True)
            self.step(2 * it + 1, True, True, True)
            texts.append(sub.l)
        self.A = A
        assert texts[1] == texts[2], "loop not in steady state"
        assert texts[0] == texts[1], "first iteration differs from steady state"
        A(f"s_mov_b32 s{S_IT}, 0")
        A(".p2align 6")
        A("L1_loop:")
        A(texts[1])
        A(f"s_add_u32 s{S_IT}, s{S_IT}, 1")
        A(f"s_cmp_lt_u32 s{S_IT}, 7")
        A("s_cbranch_scc1 L1_loop")
        self.step(6, True, False, True)
        self.step(7, False, False, False)
        A("s_nop 7")
        self.epilogue()
        A("L1_end:")
        A("s_endpgm")
        return dict(text=kernel_head(self.name) + A.text(), desc=kernel_desc(self.name, 512, 256), lds=STAGE * NST, grid=256, block=256, stamps=self.st.names)


def gen_k1(name, opt):
    return K1(name, opt).gen()
```

```python
from gen_common import *

STAGE = 32768
NST = 4
L_X = STAGE * NST
NF, NS = 7, 4
NSTEP = NF + NS

S_WSP = 80
SRD_D = 4
SRD_C = 8
SRD_A = 12
SRD_P = 16
SRD_FL = 20
SRD_O = 24
SRD_T = 28
S_W, S_G, S_mt, S_nt, S_s, S_tile = 32, 33, 34, 35, 36, 37
S_AOFF = 38
S_DOFF = 39
S_DB = 40
S_T = 44

V_LANE = 1
V_L16 = 2
V_FO = 3
V_SO = 11
V_RF = 20
V_RS = 28
V_T = 30
V_W = 40
V_ST = 72
V_DK = 80
V_E = 84
V_ACC = 128


def acc(jl, b):
    return V_ACC + (jl * 4 + b) * 4


class K2:
    def __init__(self, name, opt):
        self.name = name
        self.opt = opt
        self.A = Asm()
        self.vm = Cnt("vm", 63)
        self.lg = Cnt("lgkm", 15)
        self.PD = opt.get("k2_pd", 4)
        self.NR = 8
        self.st = Stamps(opt.get("diag"), 2)

    def wreg(self, f):
        return V_W + 4 * (f % self.NR)

    def areg(self, s, kb, b):
        return (((s & 1) * 4 + kb) * 4 + b) * 4

    def rd_instrs(self, s, f):
        kb, jl = f // 8, f % 8
        w = self.wreg(f)
        so = (s & 1) * STAGE
        if s < NF:
            return [f"ds_read_b64_tr_b16 v[{w + 2 * h}:{w + 2 * h + 1}], v{V_RF + jl} offset:{so + kb * 8192 + h * 4096}" for h in range(2)]
        ri, half = kb & 1, kb >> 1
        return [f"ds_read_b128 v[{w}:{w + 3}], v{V_RS + half} offset:{so + ri * 16384 + jl * 2048}"]

    def a_load(self, s, kb, b):
        a = self.areg(s, kb, b)
        aux = self.opt.get("k2_a_aux", "")
        return f"buffer_load_dwordx4 a[{a}:{a + 3}], v{V_L16}, s[{SRD_A}:{SRD_A + 3}], s{S_AOFF} offen offset:{b * 1024} {aux}"

    def a_adv(self, s, kb):
        if s == NF - 1 and kb == 3:
            return f"s_mov_b32 s{S_AOFF}, s{S_T + 12}"
        return f"s_add_u32 s{S_AOFF}, s{S_AOFF}, 4096"

    def dma(self, t, e):
        aux = self.opt.get("k2_w_aux", "")
        m = f"s_add_u32 m0, s{S_DB}, {(t % NST) * STAGE + e * 1024}"
        if t < NF:
            return m, f"buffer_load_dwordx4 v{V_FO + e}, s[{SRD_D}:{SRD_D + 3}], s{S_DOFF} offen {aux} lds"
        return m, f"buffer_load_dwordx4 v{V_SO + e}, s[{SRD_C}:{SRD_C + 3}], s{S_DOFF} offen {aux} lds"

    def d_adv(self, t):
        if t == NF - 1:
            return f"s_mov_b32 s{S_DOFF}, s{S_T + 13}"
        return f"s_add_u32 s{S_DOFF}, s{S_DOFF}, {128 * 2048 if t < NF else 128}"

    def step(self, s):
        A, PD = self.A, self.PD
        do_a = s + 1 < NSTEP
        do_dma = s + 2 < NSTEP
        do_next = s + 1 < NSTEP
        vops = []
        if do_a:
            for kb in range(4):
                for b in range(4):
                    vops.append((None, self.a_load(s + 1, kb, b), ("A", s + 1, kb), self.a_adv(s + 1, kb) if b == 3 else None))
        if do_dma:
            for e in range(8):
                m, ld = self.dma(s + 2, e)
                vops.append((m, ld, ("D", s + 2), self.d_adv(s + 2) if e == 7 else None))
        slots = [g for g in range(32) if g % 4 != 3]
        vslot = {slots[i]: op for i, op in enumerate(vops)}
        for f in range(32):
            kb, jl = f // 8, f % 8
            vmw = None
            if jl == 0:
                vmw = self.vm.need(("A", s, kb))
            nxt = f + PD
            bar = do_next and nxt == 32
            if bar:
                w2 = self.vm.need(("D", s + 1))
                vmw = w2 if w2 is not None else vmw
            lw = self.lg.need(("W", s, f))
            A(waitcnt(vmw, lw))
            if bar:
                A("s_barrier")
            fill = [[], [], [], []]
            rds = []
            if nxt < 32:
                rds = [(i, ("W", s, nxt)) for i in self.rd_instrs(s, nxt)]
            elif do_next:
                rds = [(i, ("W", s + 1, nxt - 32)) for i in self.rd_instrs(s + 1, nxt - 32)]
            if do_next and (s & 1) == 1:
                if s + 1 < NF:
                    j = f + PD - 24
                    if 0 <= j < 8:
                        fill[2].append(f"v_xor_b32 v{V_RF + j}, 0x10000, v{V_RF + j}")
                elif s >= NF:
                    if f + PD == 24:
                        fill[2].append(f"v_xor_b32 v{V_RS}, 0x10000, v{V_RS}")
                    if f + PD == 31:
                        fill[2].append(f"v_xor_b32 v{V_RS + 1}, 0x10000, v{V_RS + 1}")
            for i, (ins, tag) in enumerate(rds):
                fill[i].insert(0, (ins, "lg", tag))
            if f in vslot:
                pre, ins, tag, post = vslot[f]
                if pre:
                    fill[1].append(pre)
                fill[2].append((ins, "vm", tag))
                if post:
                    fill[3].append(post)
            w = self.wreg(f)
            for b in range(4):
                a = self.areg(s, kb, b)
                c = acc(jl, b)
                src_c = "0" if (s == 0 and kb == 0) else f"v[{c}:{c + 3}]"
                A(f"v_mfma_f32_16x16x32_bf16 v[{c}:{c + 3}], v[{w}:{w + 3}], a[{a}:{a + 3}], {src_c}")
                for it in fill[b]:
                    if isinstance(it, tuple):
                        abl = self.opt.get("abl2", "")
                        A("s_nop 0" if it[2][0] in abl else it[0])
                        (self.lg if it[1] == "lg" else self.vm).issue(it[2])
                    else:
                        A(it)

    def prologue(self):
        A, PD = self.A, self.PD
        T = S_T
        A("s_cmp_ge_u32 s2, 256")
        A("s_cbranch_scc1 L2_end")
        self.st.start(A)
        A(f"s_load_dwordx4 s[{T}:{T + 3}], s[0:1], {KA['wd']}")
        A(f"s_load_dwordx4 s[{T + 4}:{T + 7}], s[0:1], {KA['Cre']}")
        A(f"s_load_dwordx2 s[{T + 8}:{T + 9}], s[0:1], {KA['x']}")
        A(f"s_load_dwordx2 s[{T + 10}:{T + 11}], s[0:1], {KA['Dskip']}")
        A(f"s_load_dwordx2 s[{S_WSP}:{S_WSP + 1}], s[0:1], {KA['ws']}")
        A(f"v_lshrrev_b32 v{V_T}, 6, v0")
        A(f"v_and_b32 v{V_LANE}, 63, v0")
        A(f"v_readfirstlane_b32 s{S_W}, v{V_T}")
        A(f"v_lshlrev_b32 v{V_L16}, 4, v{V_LANE}")
        mp = self.opt.get("k2_map", "ksplit")
        if mp == "ksplit":
            A(f"s_and_b32 s{S_s}, s2, 3")
            A(f"s_and_b32 s{S_mt}, s2, 4")
            A(f"s_lshr_b32 s{S_nt}, s2, 6")
            A(f"s_add_u32 s{S_mt}, s{S_mt}, s{S_nt}")
            A(f"s_bfe_u32 s{S_nt}, s2, 0x30003")
        else:
            A(f"s_bfe_u32 s{S_s}, s2, 0x20003")
            A(f"s_and_b32 s{S_mt}, s2, 6")
            A(f"s_bfe_u32 s{S_nt}, s2, 0x10005")
            A(f"s_add_u32 s{S_mt}, s{S_mt}, s{S_nt}")
            A(f"s_and_b32 s{S_nt}, s2, 1")
            A(f"s_lshl_b32 s{S_nt}, s{S_nt}, 2")
            A(f"s_lshr_b32 s{S_tile}, s2, 6")
            A(f"s_add_u32 s{S_nt}, s{S_nt}, s{S_tile}")
        A(f"s_lshl_b32 s{S_tile}, s{S_mt}, 3")
        A(f"s_add_u32 s{S_tile}, s{S_tile}, s{S_nt}")
        A(f"s_lshl_b32 s{S_G}, s{S_mt}, 2")
        A(f"s_add_u32 s{S_G}, s{S_G}, s{S_W}")
        t0, t1, t2, t3 = V_T, V_T + 1, V_T + 2, V_T + 3
        A(f"v_lshrrev_b32 v{t0}, 4, v{V_LANE}")
        A(f"v_and_b32 v{t1}, 15, v{V_LANE}")
        A(f"s_lshl_b32 s{T + 14}, s{S_s}, 2")
        for e in range(2):
            A(f"v_add_u32 v{t2}, {4 * e}, v{t0}")
            A(f"v_lshlrev_b32 v{t3}, 1, v{t2}")
            A(f"v_xor_b32 v{t3}, v{t3}, v{t1}")
            A(f"v_add_u32 v{t3}, s{T + 14}, v{t3}")
            A(f"v_and_b32 v{t3}, 15, v{t3}")
            A(f"v_lshlrev_b32 v{t3}, 4, v{t3}")
            A(f"v_lshl_add_u32 v{V_FO + e}, v{t2}, 11, v{t3}")
        for e in range(2, 8):
            A(f"v_add_u32 v{V_FO + e}, {(e // 2) * 8 * 2048}, v{V_FO + (e & 1)}")
        A(f"v_lshrrev_b32 v{t0}, 3, v{V_LANE}")
        A(f"v_and_b32 v{t1}, 7, v{V_LANE}")
        A(f"s_and_b32 s{T + 14}, s{S_W}, 1")
        A(f"s_lshl_b32 s{T + 14}, s{T + 14}, 1")
        A(f"s_add_u32 s{T + 14}, s{T + 14}, s{S_s}")
        A(f"s_lshl_b32 s{T + 14}, s{T + 14}, 5")
        for e in range(8):
            A(f"v_add_u32 v{t2}, {8 * e}, v{t0}")
            A(f"v_bfe_u32 v{t3}, v{t2}, 1, 3")
            A(f"v_xor_b32 v{t3}, v{t3}, v{t1}")
            A(f"v_lshlrev_b32 v{t3}, 4, v{t3}")
            A(f"v_add_u32 v{t2}, s{T + 14}, v{t2}")
            A(f"v_and_b32 v{t2}, 127, v{t2}")
            A(f"v_lshl_add_u32 v{V_SO + e}, v{t2}, 11, v{t3}")
        A(f"s_mul_i32 s{S_AOFF}, s{S_G}, {A2_G}")
        A(f"s_lshl_b32 s{T + 14}, s{S_s}, 16")
        A(f"s_add_u32 s{T + 12}, s{S_AOFF}, s{T + 14}")
        A(f"s_add_u32 s{T + 12}, s{T + 12}, {112 * 4096}")
        A(f"s_mul_i32 s{T + 14}, s{S_s}, {28 * 4096}")
        A(f"s_add_u32 s{S_AOFF}, s{S_AOFF}, s{T + 14}")
        A(f"s_mul_i32 s{S_DOFF}, s{S_s}, {896 * 2048}")
        A(f"s_lshl_b32 s{T + 14}, s{S_W}, 16")
        A(f"s_add_u32 s{S_DOFF}, s{S_DOFF}, s{T + 14}")
        A(f"s_lshl_b32 s{T + 14}, s{S_nt}, 8")
        A(f"s_add_u32 s{S_DOFF}, s{S_DOFF}, s{T + 14}")
        A(f"s_lshl_b32 s{T + 13}, s{S_nt}, 18")
        A(f"s_lshl_b32 s{T + 14}, s{S_s}, 9")
        A(f"s_add_u32 s{T + 13}, s{T + 13}, s{T + 14}")
        A(f"s_lshl_b32 s{S_DB}, s{S_W}, 13")
        A("s_waitcnt lgkmcnt(0)")
        srd(A, SRD_D, T, 0, 3584 * 2048)
        srd(A, SRD_A, S_WSP, WS_A2, A2_SIZE)
        for e in range(8):
            m, ld = self.dma(0, e)
            A(m); A("s_nop 0"); A(ld); self.vm.issue(("D", 0))
        A(self.d_adv(0))
        for kb in range(4):
            for b in range(4):
                A(self.a_load(0, kb, b)); self.vm.issue(("A", 0, kb))
            A(self.a_adv(0, kb))
        for e in range(8):
            m, ld = self.dma(1, e)
            A(m); A("s_nop 0"); A(ld); self.vm.issue(("D", 1))
        A(self.d_adv(1))
        A(f"s_cmp_lt_u32 s{S_W}, 2")
        A(f"s_cselect_b32 s{SRD_C}, s{T + 4}, s{T + 6}")
        A(f"s_cselect_b32 s{SRD_C + 1}, s{T + 5}, s{T + 7}")
        A(f"s_mov_b32 s{SRD_C + 2}, {1024 * 2048}")
        A(f"s_mov_b32 s{SRD_C + 3}, 0x20000")
        srd(A, SRD_P, S_WSP, WS_PART, PART_SIZE)
        srd(A, SRD_FL, S_WSP, WS_FLAG, 0x20000)
        srd(A, SRD_O, T + 2, 0, 2048 * 4096)
        srd(A, SRD_T, T + 8, 0, 2048 * 2048)
        A(f"v_lshrrev_b32 v{t0}, 2, v{V_LANE}")
        A(f"v_and_b32 v{t1}, 3, v{V_LANE}")
        A(f"v_lshlrev_b32 v{t1}, 4, v{t1}")
        A(f"v_lshl_add_u32 v{t0}, v{t0}, 13, v{t1}")
        A(f"s_lshl_b32 s{T + 14}, s{S_nt}, 2")
        A(f"s_add_u32 s{T + 14}, s{T + 14}, s{S_s}")
        A(f"s_lshl_b32 s{T + 15}, s{T + 14}, 6")
        A(f"s_lshl_b32 s{T + 4}, s{S_G}, 17")
        A(f"s_add_u32 s{T + 4}, s{T + 4}, s{T + 15}")
        A(f"s_lshl_b32 s{T + 5}, s{S_W}, 12")
        for b in range(4):
            A(f"s_add_u32 m0, s{T + 5}, {L_X + b * 1024}")
            A("s_nop 0")
            A(f"buffer_load_dwordx4 v{t0}, s[{SRD_T}:{SRD_T + 3}], s{T + 4} offen lds"); self.vm.issue("res")
            A(f"s_add_u32 s{T + 4}, s{T + 4}, 2048")
        q, i = V_T + 4, V_T + 5
        A(f"v_lshrrev_b32 v{q}, 4, v{V_LANE}")
        A(f"v_and_b32 v{i}, 15, v{V_LANE}")
        srd(A, SRD_T, T + 10, 0, 2048)
        A(f"v_lshlrev_b32 v{t1}, 3, v{q}")
        for jl in range(2):
            A(f"buffer_load_dwordx2 v[{V_DK + 2 * jl}:{V_DK + 2 * jl + 1}], v{t1}, s[{SRD_T}:{SRD_T + 3}], s{T + 15} offen offset:{32 * jl}"); self.vm.issue("res")
        srd(A, SRD_T, S_WSP, WS_STATS, 0x4000)
        A(f"v_lshlrev_b32 v{t2}, 5, v{i}")
        A(f"s_lshl_b32 s{T + 4}, s{S_G}, 9")
        for j in range(2):
            A(f"buffer_load_dwordx4 v[{V_ST + 4 * j}:{V_ST + 4 * j + 3}], v{t2}, s[{SRD_T}:{SRD_T + 3}], s{T + 4} offen offset:{16 * j}"); self.vm.issue("res")
        r, c = V_T + 6, V_T + 7
        A(f"v_bfe_u32 v{r}, v{V_LANE}, 2, 4")
        A(f"v_and_b32 v{c}, 3, v{V_LANE}")
        A(f"v_lshlrev_b32 v{t0}, 8, v{r}")
        A(f"v_lshl_add_u32 v{t0}, v{c}, 3, v{t0}")
        A(f"v_and_b32 v{t3}, 7, v{r}")
        A(f"v_lshl_add_u32 v{t0}, v{t3}, 5, v{t0}")
        for jl in range(8):
            A(f"v_xor_b32 v{V_RF + jl}, {jl * 32}, v{t0}")
        A(f"v_lshrrev_b32 v{t0}, 1, v{i}")
        A(f"v_xor_b32 v{t0}, v{t0}, v{q}")
        A(f"v_lshlrev_b32 v{t0}, 4, v{t0}")
        A(f"v_lshl_add_u32 v{t0}, v{i}, 7, v{t0}")
        assert (NF % NST) >> 1 == 1
        A(f"v_add_u32 v{V_RS}, 0x10000, v{t0}")
        A(f"v_xor_b32 v{V_RS + 1}, 64, v{V_RS}")
        A(waitcnt(self.vm.need(("D", 0))))
        A("s_barrier")
        A(self.st.stamp("tile0"))
        for f in range(PD):
            for ins in self.rd_instrs(0, f):
                A(ins); self.lg.issue(("W", 0, f))

    def epilogue(self):
        A = self.A
        T = S_T
        A(self.st.stamp("loopend"))
        q, i = V_T + 4, V_T + 5
        A("s_nop 7")
        nb = 0
        for d in range(1, 4):
            A(f"s_add_u32 s{T}, s{S_s}, {d}")
            A(f"s_and_b32 s{T}, s{T}, 3")
            A(f"s_lshl_b32 s{T + 1}, s{S_tile}, 2")
            A(f"s_add_u32 s{T}, s{T}, s{T + 1}")
            A(f"s_mul_i32 s{T}, s{T}, 3")
            A(f"s_add_u32 s{T}, s{T}, {d - 1}")
            A(f"s_lshl_b32 s{T}, s{T}, 2")
            A(f"s_add_u32 s{T}, s{T}, s{S_W}")
            A(f"s_lshl_b32 s{T}, s{T}, 12")
            for b in range(4):
                o = V_W + 4 * (nb % 8); nb += 1
                for hb in range(2):
                    c = acc(2 * d + hb, b)
                    A(f"v_cvt_pk_bf16_f32 v{o + 2 * hb}, v{c}, v{c + 1}")
                    A(f"v_cvt_pk_bf16_f32 v{o + 2 * hb + 1}, v{c + 2}, v{c + 3}")
                A(f"buffer_store_dwordx4 v[{o}:{o + 3}], v{V_L16}, s[{SRD_P}:{SRD_P + 3}], s{T} offen offset:{b * 1024} sc1")
        xr = V_T
        A(f"v_lshlrev_b32 v{xr}, 6, v{i}")
        A(f"v_lshl_add_u32 v{xr}, v{q}, 3, v{xr}")
        A(f"s_lshl_b32 s{T + 5}, s{S_W}, 12")
        A(f"s_add_u32 s{T + 5}, s{T + 5}, {L_X}")
        A(f"v_add_u32 v{xr}, s{T + 5}, v{xr}")
        XR = V_E
        for b in range(4):
            for jl in range(2):
                d = XR + (b * 2 + jl) * 2
                A(f"ds_read_b64 v[{d}:{d + 1}], v{xr} offset:{b * 1024 + jl * 32}")
        DK = V_E + 16
        for j in range(4):
            A(f"v_lshlrev_b32 v{DK + 2 * j}, 16, v{V_DK + j}")
            A(f"v_and_b32 v{DK + 2 * j + 1}, 0xffff0000, v{V_DK + j}")
        XF, XD = V_E + 24, V_E + 28
        A("s_waitcnt lgkmcnt(0)")
        for b in range(4):
            st = V_ST + 2 * b
            for jl in range(2):
                d = XR + (b * 2 + jl) * 2
                c = acc(jl, b)
                for j in range(2):
                    A(f"v_lshlrev_b32 v{XF + 2 * j}, 16, v{d + j}")
                    A(f"v_and_b32 v{XF + 2 * j + 1}, 0xffff0000, v{d + j}")
                for j in range(2):
                    A(f"v_pk_add_f32 v[{XD + 2 * j}:{XD + 2 * j + 1}], v[{XF + 2 * j}:{XF + 2 * j + 1}], v[{st}:{st + 1}] op_sel_hi:[1,0] neg_lo:[0,1] neg_hi:[0,1]")
                for j in range(2):
                    A(f"v_pk_mul_f32 v[{XD + 2 * j}:{XD + 2 * j + 1}], v[{XD + 2 * j}:{XD + 2 * j + 1}], v[{st}:{st + 1}] op_sel:[0,1]")
                for j in range(2):
                    k = DK + 4 * jl + 2 * j
                    A(f"v_pk_fma_f32 v[{XF + 2 * j}:{XF + 2 * j + 1}], v[{XD + 2 * j}:{XD + 2 * j + 1}], v[{k}:{k + 1}], v[{XF + 2 * j}:{XF + 2 * j + 1}]")
                for j in range(2):
                    A(f"v_pk_add_f32 v[{c + 2 * j}:{c + 2 * j + 1}], v[{c + 2 * j}:{c + 2 * j + 1}], v[{XF + 2 * j}:{XF + 2 * j + 1}]")
        fo, one = V_T + 1, V_T + 2
        A(f"s_add_u32 s{T}, s{S_s}, 1")
        A(f"v_add_u32 v{fo}, s{T}, v{V_LANE}")
        A(f"v_and_b32 v{fo}, 3, v{fo}")
        A(f"v_lshlrev_b32 v{fo}, 9, v{fo}")
        A(f"v_lshl_add_u32 v{fo}, v{V_LANE}, 2, v{fo}")
        A(f"v_mov_b32 v{one}, 1")
        A(f"s_lshl_b32 s{T}, s{S_tile}, 11")
        A(f"s_lshl_b32 s{T + 1}, s{S_W}, 7")
        A(f"s_add_u32 s{T}, s{T}, s{T + 1}")
        A("s_waitcnt vmcnt(0)")
        A("s_mov_b64 exec, 7")
        A(f"buffer_store_dword v{one}, v{fo}, s[{SRD_FL}:{SRD_FL + 3}], s{T} offen sc1")
        A("s_mov_b64 exec, -1")
        A(self.st.stamp("sent"))
        A(f"s_lshl_b32 s{T + 1}, s{S_s}, 9")
        A(f"s_add_u32 s{T}, s{T}, s{T + 1}")
        A(f"v_mov_b32 v{fo}, 0")
        A(f"s_mov_b32 s{T + 4}, 0")
        FL = V_E
        A("L2_poll:")
        A(f"buffer_load_dwordx3 v[{FL}:{FL + 2}], v{fo}, s[{SRD_FL}:{SRD_FL + 3}], s{T} offen sc1")
        A(f"s_add_u32 s{T + 4}, s{T + 4}, 1")
        A("s_waitcnt vmcnt(0)")
        A(f"v_min3_u32 v{FL}, v{FL}, v{FL + 1}, v{FL + 2}")
        A(f"v_cmp_eq_u32 vcc, 0, v{FL}")
        A(f"s_cmp_gt_u32 s{T + 4}, 0x40000")
        A("s_cbranch_scc1 L2_polldone")
        A("s_cbranch_vccnz L2_poll")
        A("L2_polldone:")
        A(self.st.stamp("polled"))
        A(f"s_lshl_b32 s{T}, s{S_tile}, 2")
        A(f"s_add_u32 s{T}, s{T}, s{S_s}")
        A(f"s_mul_i32 s{T}, s{T}, {3 * 16384}")
        A(f"s_lshl_b32 s{T + 1}, s{S_W}, 12")
        A(f"s_add_u32 s{T}, s{T}, s{T + 1}")
        A(f"s_add_u32 s{T + 1}, s{T}, 16384")
        A(f"s_add_u32 s{T + 2}, s{T}, 32768")
        RX = acc(2, 0)
        for b in range(4):
            for sc in range(3):
                d = RX + (b * 3 + sc) * 4
                A(f"buffer_load_dwordx4 v[{d}:{d + 3}], v{V_L16}, s[{SRD_P}:{SRD_P + 3}], s{T + sc} offen offset:{b * 1024} sc1")
        vo = V_T
        A(f"v_lshlrev_b32 v{vo}, 14, v{i}")
        A(f"v_lshl_add_u32 v{vo}, v{q}, 4, v{vo}")
        A(f"s_lshl_b32 s{T + 4}, s{S_G}, 18")
        A(f"s_lshl_b32 s{T + 5}, s{T + 14}, 7")
        A(f"s_add_u32 s{T + 4}, s{T + 4}, s{T + 5}")
        aux = self.opt.get("k2_st", "")
        TM = V_E
        for b in range(4):
            A(f"s_waitcnt vmcnt({9 - 3 * b + 2 * b})")
            for sc in range(3):
                d = RX + (b * 3 + sc) * 4
                for j in range(4):
                    A(f"v_lshlrev_b32 v{TM + 2 * j}, 16, v{d + j}")
                    A(f"v_and_b32 v{TM + 2 * j + 1}, 0xffff0000, v{d + j}")
                for j in range(4):
                    c = acc(j >> 1, b) + 2 * (j & 1)
                    A(f"v_pk_add_f32 v[{c}:{c + 1}], v[{c}:{c + 1}], v[{TM + 2 * j}:{TM + 2 * j + 1}]")
            for jl in range(2):
                c = acc(jl, b)
                A(f"buffer_store_dwordx4 v[{c}:{c + 3}], v{vo}, s[{SRD_O}:{SRD_O + 3}], s{T + 4} offen offset:{jl * 64} {aux}")
            if b < 3:
                A(f"s_add_u32 s{T + 4}, s{T + 4}, 4096")
        if self.opt.get("diag"):
            A("s_waitcnt vmcnt(0)")
        self.st.dump(A, S_WSP, S_W, V_E, 84)

    def gen(self):
        A = self.A
        self.prologue()
        for s in range(NSTEP):
            self.step(s)
        self.epilogue()
        A("L2_end:")
        A("s_endpgm")
        return dict(text=kernel_head(self.name) + A.text(), desc=kernel_desc(self.name, 384, 256), lds=L_X + 16384, grid=256, block=256, stamps=self.st.names)


def gen_k2(name, opt):
    return K2(name, opt).gen()
```

```python
import re

REG = re.compile(r"\b([vas])(\d+)\b|\b([vas])\[(\d+):(\d+)\]|\b(vcc|exec|m0)\b")
TRANS = ("v_exp_f32", "v_log_f32", "v_rcp_f32", "v_rsq_f32", "v_sqrt_f32", "v_sin_f32", "v_cos_f32")


def regs(op):
    out = set()
    for m in REG.finditer(op):
        if m.group(1):
            out.add((m.group(1), int(m.group(2))))
        elif m.group(3):
            out.update((m.group(3), i) for i in range(int(m.group(4)), int(m.group(5)) + 1))
        else:
            out.add((m.group(6), 0))
    return out


class I:
    def __init__(self, text):
        self.text = text
        t = text.split(";")[0].strip()
        p = t.split(None, 1)
        self.op = p[0]
        rest = p[1] if len(p) > 1 else ""
        ops, depth, cur = [], 0, ""
        for ch in rest:
            if ch == "[":
                depth += 1
            if ch == "]":
                depth -= 1
            if ch == "," and depth == 0:
                ops.append(cur.strip()); cur = ""
            else:
                cur += ch
        if cur.strip():
            ops.append(cur.strip())
        if ops:
            ops[-1] = ops[-1].split()[0] if not self.op.startswith("s_waitcnt") else ops[-1]
        self.ops = ops
        op = self.op
        self.mfma = op.startswith("v_mfma")
        self.valu = op.startswith("v_") and not self.mfma
        self.trans = op.replace("_e32", "").replace("_e64", "") in TRANS
        self.dpp = "_dpp" in op
        self.perm = op.startswith("v_permlane")
        self.rdlane = op.startswith("v_readlane") or op.startswith("v_readfirstlane")
        self.vmem = op.startswith("buffer_") or op.startswith("global_")
        self.ds = op.startswith("ds_")
        self.salu = op.startswith("s_")
        self.lds_dma = self.vmem and re.search(r"\blds\b", t) is not None
        self.w, self.r = set(), set()
        self.store_data = set()
        self.srcC = set()
        R = [regs(o) for o in ops]
        if self.mfma:
            self.w = R[0]; self.ab = R[1] | R[2]; self.srcC = R[3]; self.r = self.ab | self.srcC
        elif self.valu:
            self.w = set(R[0])
            for x in R[1:]:
                self.r |= x
            if self.perm:
                self.w |= R[1]; self.r |= R[0]
            if op.startswith(("v_fmac", "v_dot2c")) or self.dpp:
                self.r |= R[0]
            if op.startswith(("v_add_co", "v_addc_co", "v_sub_co")):
                self.w |= R[1]
        elif self.vmem:
            if op in ("buffer_wbl2", "buffer_inv"):
                pass
            elif self.lds_dma:
                for x in R:
                    self.r |= x
                self.r.add(("m0", 0))
            elif "load" in op:
                self.w = R[0]
                for x in R[1:]:
                    self.r |= x
            else:
                for x in R:
                    self.r |= x
                if op.endswith(("x3", "x4")):
                    self.store_data = R[0] if op.startswith("buffer_") else R[1]
        elif self.ds:
            if "read" in op or "permute" in op or "swizzle" in op:
                self.w = R[0]
                for x in R[1:]:
                    self.r |= x
            else:
                for x in R:
                    self.r |= x
        elif self.salu:
            if op.startswith(("s_cmp", "s_cbranch", "s_branch", "s_waitcnt", "s_nop", "s_barrier", "s_endpgm", "s_sleep", "s_setprio", "s_bitcmp")):
                for x in R:
                    self.r |= x
            else:
                if R:
                    self.w = R[0]
                for x in R[1:]:
                    self.r |= x
        self.states = 1
        if op == "s_nop":
            self.states = int(ops[0], 0) + 1


def isv(s):
    return {x for x in s if x[0] in "va" and len(x[0]) == 1}


def iss(s):
    return {x for x in s if x[0] in ("s", "vcc")}


def need(p, c):
    n = 0
    if p.valu:
        wv = isv(p.w)
        if c.mfma and wv & c.r:
            n = max(n, 2)
        if (c.dpp or c.perm) and wv & c.r:
            n = max(n, 2)
        if c.rdlane and wv & c.r:
            n = max(n, 1)
        if p.trans and c.valu and not c.trans and wv & c.r:
            n = max(n, 1)
        ws = iss(p.w)
        if ws:
            if c.valu and ws & c.r:
                n = max(n, 4 if c.rdlane else 2)
            if c.vmem and ws & c.r:
                n = max(n, 5)
    if p.mfma:
        if c.mfma:
            if p.w & c.ab:
                n = max(n, 8)
            if p.w & c.srcC and p.w != c.srcC:
                n = max(n, 6)
            if p.w & c.w and p.w != c.srcC:
                n = max(n, 8)
        elif (c.valu or c.vmem or c.ds) and p.w & (c.r | c.w):
            n = max(n, 8)
        if c.valu and p.srcC & c.w:
            n = max(n, 3)
    if p.salu and ("m0", 0) in p.w and c.lds_dma:
        n = max(n, 1)
    if p.store_data and p.store_data & c.w:
        n = max(n, 2 if c.valu else 1)
    return n


def check(lines, label=""):
    ins = [I(l) for l in lines if l.strip() and not l.endswith(":") and not l.startswith(".") and not l.strip().startswith(";")]
    bad = []
    for j, c in enumerate(ins):
        d = 0
        for i in range(j - 1, max(-1, j - 10), -1):
            p = ins[i]
            n = need(p, c)
            if n > d:
                bad.append(f"{label} need {n} have {d}: [{p.text}] -> [{c.text}]")
            d += p.states
            if d >= 8:
                break
    return bad


if __name__ == "__main__":
    import sys
    txt = open(sys.argv[1]).read().split("\n")
    body = [l.strip() for l in txt]
    i0 = body.index(".text")
    i1 = [i for i, l in enumerate(body) if l.startswith(".section .rodata")][0]
    b = check(body[i0:i1])
    print("\n".join(b) if b else "no hazards found")
```

```python
from gen_common import *

TRANS = ("v_exp_f32", "v_log_f32", "v_rcp_f32", "v_rsq_f32", "v_sqrt_f32", "v_sin_f32", "v_cos_f32")


class It:
    def __init__(self, text, cnt=None, tag=None, needs=(), cost=None):
        self.text = text if isinstance(text, list) else [text]
        self.cnt = cnt
        self.tag = tag
        self.needs = list(needs)
        first = self.text[0]
        self.mem = first.startswith(("ds_", "buffer_", "global_"))
        self.scalar = all(t.startswith("s_") or t.endswith(":") for t in self.text)
        if cost is None:
            cost = sum(0 if t.endswith(":") else (2 if t.split()[0] in TRANS else 1) for t in self.text)
            if self.needs:
                cost += 1
        self.cost = cost


class Stream:
    def __init__(self, vm, lg):
        self.g = []
        self.vm, self.lg = vm, lg
        self.over = 0

    def mfma(self, text, needs=(), bar=False):
        self.g.append(dict(m=text, needs=list(needs), bar=bar, S=[], V=[]))
        return len(self.g) - 1

    def used(self, n):
        g = self.g[n]
        s = sum(i.cost for i in g["S"])
        if n + 1 < len(self.g):
            nx = self.g[n + 1]
            s += (1 if nx["needs"] else 0) + (1 if nx["bar"] else 0)
        v = sum(i.cost for i in g["V"])
        return s, v

    def fits(self, n, it):
        s, v = self.used(n)
        if it.scalar:
            return s + it.cost + v <= 3
        if it.mem and any(not x.mem for x in self.g[n]["V"]):
            return False
        return v + it.cost <= 2 and s + v + it.cost <= 3

    def place(self, it, at, last=None):
        if isinstance(it, (str, list)):
            it = It(it)
        end = len(self.g) - 1 if last is None else last
        n = at
        while n <= end and not self.fits(n, it):
            n += 1
        if n > end:
            n = end
            self.over += it.cost
        (self.g[n]["S"] if it.scalar else self.g[n]["V"]).append(it)
        return n

    def force(self, it, n):
        if isinstance(it, (str, list)):
            it = It(it)
        if not self.fits(n, it):
            self.over += it.cost
        (self.g[n]["S"] if it.scalar else self.g[n]["V"]).append(it)
        return n

    def seq(self, items, at, stride=0):
        n = at
        prev = None
        for it in items:
            if isinstance(it, (str, list)):
                it = It(it)
            lo = n
            if prev is not None:
                if it.scalar and not prev.scalar:
                    lo = n + 1
                elif prev.text[-1].split()[0] in TRANS:
                    lo = n + 1
                lo = max(lo, n + stride)
            assert lo < len(self.g), "sequence ran off the stream"
            n = self.place(it, lo)
            prev = it
        return n

    def dma(self, m0set, load, tag, at):
        ld, ms = It(load, "vm", tag), It(m0set)
        n = max(at, 1)
        while True:
            prev_has_dma = any("lds" in x.text[-1].split() for x in self.g[n - 1]["V"] + self.g[n]["V"])
            m0_here = any("m0" in t for x in self.g[n]["S"] + self.g[n - 1]["S"] for t in x.text)
            if self.fits(n, ld) and self.fits(n - 1, ms) and not prev_has_dma and not m0_here:
                break
            n += 1
        self.g[n - 1]["S"].append(ms)
        self.g[n]["V"].append(ld)
        return n

    def _wait(self, needs):
        vmw = self.vm.need(*[t for c, t in needs if c == "vm"]) if any(c == "vm" for c, t in needs) else None
        lgw = self.lg.need(*[t for c, t in needs if c == "lg"]) if any(c == "lg" for c, t in needs) else None
        return waitcnt(vmw, lgw)

    def _emit_item(self, out, it):
        out.extend(self._wait(it.needs))
        out.extend(it.text)
        if it.cnt:
            (self.vm if it.cnt == "vm" else self.lg).issue(it.tag)

    def emit(self):
        pre = self._wait(self.g[0]["needs"]) + (["s_barrier"] if self.g[0]["bar"] else [])
        segs = []
        for n, g in enumerate(self.g):
            out = [g["m"]]
            nx = self.g[n + 1] if n + 1 < len(self.g) else None
            late = False
            if nx:
                tags = {(c, t) for c, t in nx["needs"]}
                late = any((x.cnt, x.tag) in tags for x in g["V"])
            for it in g["S"]:
                self._emit_item(out, it)
            if nx and not late:
                out.extend(self._wait(nx["needs"]))
                if nx["bar"]:
                    out.append("s_barrier")
            for it in g["V"]:
                self._emit_item(out, it)
            if nx and late:
                out.extend(self._wait(nx["needs"]))
                if nx["bar"]:
                    out.append("s_barrier")
            segs.append(out)
        return pre, segs
```

```python
import sys, json
from gen_common import *
import gen_k0, gen_k1, gen_k2, gen_f

NAME = "parallel_sum__ssm_conv_s5__geglu_ffn__prompt"

def build(opt):
    ks = [("ln_kernel", gen_k0.gen_k0), ("gemm1_kernel", gen_k1.gen_k1), (NAME + "_kernel", gen_k2.gen_k2)]
    if opt.get("arch", "f") == "f":
        ks = [("ln_kernel", gen_k0.gen_k0), (NAME + "_kernel", gen_f.gen_f)]
    parts = [(n, f(n, opt)) for n, f in ks]
    hdr = [l for l in open("cdna_kernels/" + NAME + ".s.ref").read().split("\n") if l.startswith(";") and "@launch" not in l and "Override launch" not in l and "grid=ceil" not in l]
    out = "\n".join(hdr) + "\n"
    for n, p in parts:
        out += f"; @launch kernel={n} grid=({p['grid']},1,1) block=({p['block']},1,1) lds={p['lds']}\n"
    out += '.amdgcn_target "amdgcn-amd-amdhsa--gfx950"\n.text\n'
    for n, p in parts:
        out += p["text"]
    out += '.section .rodata,"a"\n'
    for n, p in parts:
        out += ".p2align 6\n" + p["desc"]
    return out, {n: p["stamps"] for n, p in parts}

if __name__ == "__main__":
    opt = json.loads(sys.argv[2]) if len(sys.argv) > 2 else {}
    txt, names = build(opt)
    if sys.argv[1].endswith(".json"):
        txt = json.dumps(dict(txt=txt, names=names))
    open(sys.argv[1], "w").write(txt)
    print("wrote", sys.argv[1], len(txt), "bytes")
```

```python
import math
from gen_common import *
from sched import *
import hazard, post

LOG2E = 1.4426950408889634
ST1, NST = 36864, 4
T_UP, T_SSM = 14336, 28672
ST2 = 32768
L_X = ST1 * NST
L_H = 3 * ST2
NF, NS = 7, 4
NSTEP = NF + NS
M_STATS, M_EPOCH, M_AGG = 0, 0x8000, WS_AGG - WS_STATS
FL_P = WS_FLAG - WS_STATS
FL_A = FL_P + 0x20000
FL_X = FL_P + 0x28000
M_SIZE = FL_P + 0x40000
L_LN = 3 * ST1
LN_PITCH = 2048 + 32

SRD_F, SRD_S, SRD_X, SRD_A2, SRD_AG, SRD_D, SRD_C, SRD_P, SRD_FL, SRD_O, SRD_T = 4, 8, 12, 16, 20, 24, 28, 32, 36, 40, 44
S_W, S_G, S_g, S_m, S_odd, S_sp, S_nt, S_tile = range(48, 56)
S_FOFF, S_SOFF, S_XOFF0, S_XOFF1, S_DF, S_DS, S_DST, S_DFS, S_DSS, S_RST, S_IT = range(56, 67)
S_AOFF, S_AEND, S_AOWN, S_ASSM, S_DOFF, S_DOWN, S_DSSM = range(67, 74)
S_DP = 3
S_TAG = 80
S_DBASE = 89
S_GC = 74
S_WSP, S_XP, S_KP = 76, 78, 0
S_T = 81
S_DB, S_FA, S_HO, S_U0, S_U1, S_U2, S_U3, S_U4 = S_DF, S_DS, S_DST, S_FOFF, S_SOFF, S_XOFF0, S_XOFF1, S_DFS

V_LANE, V_L16 = 1, 2
V_FO, V_SO, V_RB, V_RD = 3, 10, 12, 16
V_PAR = 20
V_T = 44
V_RAW = 56
V_SACC = 64
V_FACC = 128
A_FACC, A_X, A_W = 0, 96, 160
V_L8 = 11
V_FO2, V_RF, V_SO2, V_RS, V_SEL, V_FLG, V_T2 = 3, 12, 20, 28, 32, 38, 40
V_OWN, V_PK, V_FR = 128, 176, 208
A_BUF, A_W2, A_RES = 0, 192, 224
ACC2 = [48 + 4 * i for i in range(20)] + [176 + 4 * i for i in range(8)] + [240 + 4 * i for i in range(4)]

P_L1, P_L16, P_L64, P_L16Q, P_L512Q, P_CF = range(6)


def accF(t, jb, b):
    if jb < 4:
        return R("v", V_FACC + (t * 4 + jb) * 16 + b * 4)
    return R("a", A_FACC + (t * 3 + jb - 4) * 16 + b * 4)


def accS(ri, sb, b):
    return R("v", V_SACC + (sb * 4 + b) * 8 + ri * 4)


def uu(sb, tau):
    r, b = tau >> 2, tau & 3
    return V_SACC - 8 + (sb * 4 + b) * 8 + 2 * r


def par(sb, k):
    return V_PAR + sb * 12 + 2 * k


def acc2(jl, b):
    return ACC2[jl * 4 + b]


def own(p, b):
    return V_OWN + [0, 32, 16][p] + 4 * b


def cmul_add(dst, lam, h, add):
    return [
        f"v_pk_fma_f32 v[{dst}:{dst + 1}], v[{lam}:{lam + 1}], v[{h}:{h + 1}], v[{add}:{add + 1}] op_sel_hi:[1,0,1]",
        f"v_pk_fma_f32 v[{dst}:{dst + 1}], v[{lam}:{lam + 1}], v[{h}:{h + 1}], v[{dst}:{dst + 1}] op_sel:[1,1,0] op_sel_hi:[0,1,1] neg_lo:[1,0,0]",
    ]


def cmul(dst, lam, h):
    return [
        f"v_pk_mul_f32 v[{dst}:{dst + 1}], v[{lam}:{lam + 1}], v[{h}:{h + 1}] op_sel_hi:[1,0]",
        f"v_pk_fma_f32 v[{dst}:{dst + 1}], v[{lam}:{lam + 1}], v[{h}:{h + 1}], v[{dst}:{dst + 1}] op_sel:[1,1,0] op_sel_hi:[0,1,1] neg_lo:[1,0,0]",
    ]


def interleave(*lists):
    out = []
    for i in range(max(len(x) for x in lists)):
        for x in lists:
            if i < len(x):
                out.append(x[i])
    return out


def srd_items(d, ptr, off, size):
    A = Asm()
    srd(A, d, ptr, off, size)
    return [It(A.l[:2]), It(A.l[2]), It(A.l[3])]


class F:
    def __init__(self, name, opt):
        self.name, self.opt = name, opt
        self.A = Asm()
        self.vm, self.lg = Cnt("vm", 63), Cnt("lgkm", 15)
        self.PD = 4
        self.st = Stamps(opt.get("diag"), opt.get("kidx", 0), opt.get("stamps", "tile0 loopend gelu g2start s1 s8 keepend rxdone").split())
        self.order = [("S", 0, 0), ("S", 1, 0), ("S", 0, 1), ("S", 1, 1)] + [("F", t, jb) for jb in range(7) for t in range(2)]
        self.spins = []

    def frag(self, f):
        return (f // 18,) + self.order[f % 18]

    def rd1(self, f):
        kk, kind, p, q = self.frag(f)
        w = A_W + 4 * (f % 6)
        if kind == "S":
            return [f"ds_read_b128 a[{w}:{w + 3}], v{V_RD + 2 + kk} offset:{T_SSM + p * 4096 + q * 2048}"]
        off = p * T_UP + kk * 7168 + (q * 32 if q < 6 else 0)
        a = V_RD + (0 if q < 6 else 1)
        return [f"ds_read_b64_tr_b16 a[{w + 2 * h}:{w + 2 * h + 1}], v{a} offset:{off + h * 1792}" for h in range(2)]

    def xreg(self, par_, kk, b):
        return A_X + ((par_ * 2 + kk) * 4 + b) * 4

    def x_load(self, par_, kk, b):
        x = self.xreg(par_, kk, b)
        return f"buffer_load_dwordx4 a[{x}:{x + 3}], v{V_L16}, s[{SRD_X}:{SRD_X + 3}], s{S_XOFF0 + kk} offen offset:{b * 1024} sc1"

    def dma1(self, n):
        if n < 7:
            m = None if n & 3 else (f"s_add_u32 m0, s{S_DFS}, 4096" if n else f"s_mov_b32 m0, s{S_DFS}")
            return m, f"buffer_load_dwordx4 v{V_FO + n}, s[{SRD_F}:{SRD_F + 3}], s{S_FOFF} offen offset:{(n & 3) * 1024} lds"
        e = n - 7
        return (None if e else f"s_mov_b32 m0, s{S_DSS}"), f"buffer_load_dwordx4 v{V_SO + e}, s[{SRD_S}:{SRD_S + 3}], s{S_SOFF} offen offset:{e * 1024} lds"

    def dma1_adv(self):
        return [f"s_add_u32 s{S_FOFF}, s{S_FOFF}, {64 * 7168}",
                f"s_add_u32 s{S_SOFF}, s{S_SOFF}, 128",
                f"s_add_u32 s{S_DST}, s{S_DST}, {ST1}",
                [f"s_cmp_eq_u32 s{S_DST}, {ST1 * NST}", f"s_cselect_b32 s{S_DST}, 0, s{S_DST}"],
                f"s_add_u32 s{S_DFS}, s{S_DF}, s{S_DST}",
                f"s_add_u32 s{S_DSS}, s{S_DS}, s{S_DST}"]

    def x_adv(self):
        return [f"s_add_u32 s{S_XOFF0}, s{S_XOFF0}, 8192", f"s_add_u32 s{S_XOFF1}, s{S_XOFF1}, 8192"]

    def mfma1(self, s, f, b):
        kk, kind, p, q = self.frag(f)
        w = A_W + 4 * (f % 6)
        x = self.xreg(s & 1, kk, b)
        c = (accS(p, q, b) if kind == "S" else accF(p, q, b)).r(4)
        sc = "0" if (s == 0 and kk == 0) else c
        if kind == "S":
            return f"v_mfma_f32_16x16x32_bf16 {c}, a[{x}:{x + 3}], a[{w}:{w + 3}], {sc}"
        return f"v_mfma_f32_16x16x32_bf16 {c}, a[{w}:{w + 3}], a[{x}:{x + 3}], {sc}"

    def put_dma(self, S, m, ld, tag, at):
        if m:
            return S.dma(m, ld, tag, at)
        return S.place(It(ld, "vm", tag), at)

    def dma2(self, t, e):
        m = None if e & 3 else f"s_add_u32 m0, s{S_DB}, {(t % 4) * ST2 + e * 1024}"
        if t < NF:
            return m, f"buffer_load_dwordx4 v{V_FO2 + e}, s[{SRD_D}:{SRD_D + 3}], s{S_DOFF} offen offset:{(e & 3) * 1024} lds"
        return m, f"buffer_load_dwordx4 v{V_SO2 + e}, s[{SRD_C}:{SRD_C + 3}], s{S_DOFF} offen offset:{(e & 3) * 1024} lds"

    def dma2_adv(self, t):
        if t == NF - 1:
            return [f"s_mov_b32 s{S_DOFF}, s{S_DSSM}"]
        if t >= NF:
            return [f"s_add_u32 s{S_DOFF}, s{S_DOFF}, 128"]
        if t == NF - 2:
            return [f"s_mul_i32 s{S_DOFF}, s{S_W}, {7 * 65536}", f"s_add_u32 s{S_DOFF}, s{S_DOFF}, {3 * 65536}", f"s_add_u32 s{S_DOFF}, s{S_DOFF}, s{S_DBASE}"]
        return [f"s_add_u32 s{S_DP}, s{S_DP}, 4"] + self.dma2_row()

    def dma2_row(self):
        t = S_T + 7
        return [f"s_add_u32 s{t}, s{S_DP}, 3",
                [f"s_cmp_ge_u32 s{S_DP}, s{S_DOWN}", f"s_cselect_b32 s{S_DOFF}, s{t}, s{S_DP}"]] + self.dma2_row2()

    def dma2_row2(self):
        t = S_T + 7
        for j in range(24):
            assert ((j + 3) * 43) >> 8 == (j + 3) // 6
        return [f"s_add_u32 s{t}, s{S_DOFF}, 3", f"s_mul_i32 s{t}, s{t}, 43", f"s_lshr_b32 s{t}, s{t}, 8",
                f"s_add_u32 s{S_DOFF}, s{S_DOFF}, s{t}", f"s_lshl_b32 s{S_DOFF}, s{S_DOFF}, 16", f"s_add_u32 s{S_DOFF}, s{S_DOFF}, s{S_DBASE}"]

    def areg(self, s, kb, b):
        if s == 0 and kb < 3:
            return R("v", own(kb, b))
        return R("a", A_BUF + ((s % 3) * 16 + kb * 4 + b) * 4)

    def a_loads(self, s, kb):
        if s != NF - 1:
            return [self.a_load(s, kb, b) for b in range(4)]
        return [f"buffer_load_dwordx2 {(self.areg(s, kb, b) + 2 * h).r(2)}, v{V_L8}, s[{SRD_A2}:{SRD_A2 + 3}], s{S_AOFF} offen offset:{b * 1024 + h * 512} {self.opt.get('a_aux', 'sc1')}"
                for b in range(4) for h in range(2)]

    def a_load(self, s, kb, b):
        return f"buffer_load_dwordx4 {self.areg(s, kb, b).r(4)}, v{V_L16}, s[{SRD_A2}:{SRD_A2 + 3}], s{S_AOFF} offen offset:{b * 1024} {self.opt.get('a_aux', 'sc1')}"

    def a_adv(self, s, kb):
        if s == NF - 1 and kb == 3:
            return [f"s_mov_b32 s{S_AOFF}, s{S_ASSM}"]
        out = [f"s_add_u32 s{S_AOFF}, s{S_AOFF}, 4096"]
        if s < NF:
            out.append([f"s_cmp_eq_u32 s{S_AOFF}, s{S_AOWN}", f"s_cselect_b32 s{S_AOFF}, s{S_AEND}, s{S_AOFF}"])
        return out

    def rd2(self, idx, s, kb, jl):
        w = A_W2 + 4 * (idx % 8)
        so = (s & 1) * ST2
        if s < NF:
            return [f"ds_read_b64_tr_b16 a[{w + 2 * h}:{w + 2 * h + 1}], v{V_RF + jl} offset:{so + kb * 8192 + h * 4096}" for h in range(2)]
        ri, half = kb & 1, kb >> 1
        return [f"ds_read_b128 a[{w}:{w + 3}], v{V_RS + half + 2 * ((s >> 1) & 1)} offset:{so + ri * 16384 + jl * 2048}"]

    def poll_items(self, label, load, reg, red=()):
        cmp_ = list(red) + [f"v_cmp_ne_u32 vcc, s{S_TAG}, v{reg}"]
        self.spins.append((label, load, cmp_))
        return It(load, "vm", label), [It(cmp_, needs=[("vm", label)], cost=2),
                                       It([f"s_cbranch_vccnz {label}_spin", f"{label}_back:"])]

    def emit_spins(self):
        A = self.A
        for label, load, cmp_ in self.spins:
            A(f"{label}_spin:")
            A(f"s_mov_b32 s{S_T + 6}, 0")
            A(f"{label}_loop:")
            A(load)
            A(f"s_add_u32 s{S_T + 6}, s{S_T + 6}, 1")
            A("s_waitcnt vmcnt(0)")
            A(cmp_)
            A(f"s_cmp_gt_u32 s{S_T + 6}, 0x40000")
            A(f"s_cbranch_scc1 {label}_back")
            A(f"s_cbranch_vccnz {label}_loop")
            A(f"s_branch {label}_back")

    def prologue(self):
        A = self.A
        T = S_T
        A("s_cmp_ge_u32 s2, 256")
        A("s_cbranch_scc1 LF_end")
        self.st.start(A)
        vm = self.vm
        A(f"s_load_dwordx2 s[{S_XP}:{S_XP + 1}], s[0:1], {KA['x']}")
        A(f"s_load_dwordx2 s[{S_WSP}:{S_WSP + 1}], s[0:1], {KA['ws']}")
        A(f"s_load_dwordx4 s[{SRD_D}:{SRD_D + 3}], s[0:1], {KA['wg']}")
        A(f"s_load_dwordx4 s[{SRD_C}:{SRD_C + 3}], s[0:1], {KA['Bre']}")
        A(f"s_load_dwordx4 s[{SRD_P}:{SRD_P + 3}], s[0:1], {KA['Lre']}")
        A(f"s_load_dwordx4 s[{SRD_AG}:{SRD_AG + 3}], s[0:1], {KA['ldt']}")
        A(f"s_load_dwordx4 s[{SRD_O}:{SRD_O + 3}], s[0:1], {KA['wd']}")
        A(f"s_load_dwordx4 s[{SRD_A2}:{SRD_A2 + 3}], s[0:1], {KA['Cre']}")
        t0, t1, t2, t3 = V_T, V_T + 1, V_T + 2, V_T + 3
        A(f"v_lshrrev_b32 v{t0}, 6, v0")
        A(f"v_and_b32 v{V_LANE}, 63, v0")
        A(f"v_readfirstlane_b32 s{S_W}, v{t0}")
        A(f"v_lshlrev_b32 v{V_L16}, 4, v{V_LANE}")
        S_LG, S_Lb, S_Lh, S_L0 = S_AOFF, S_AEND, S_AOWN, S_ASSM
        A(f"s_lshr_b32 s{S_LG}, s2, 3")
        A(f"s_bfe_u32 s{S_Lb}, s2, 0x20001")
        A(f"s_and_b32 s{S_Lh}, s2, 1")
        A(f"s_lshl_b32 s{S_L0}, s{S_LG}, 1")
        A(f"s_add_u32 s{S_L0}, s{S_L0}, s{S_Lh}")
        A(f"s_lshl_b32 s{S_L0}, s{S_L0}, 2")
        A(f"s_add_u32 s{S_L0}, s{S_L0}, s{S_W}")
        A(f"s_lshl_b32 s{S_L0}, s{S_L0}, 3")
        A(f"s_add_u32 s{S_L0}, s{S_L0}, s{S_Lb}")
        A(f"s_lshl_b32 s{T}, s{S_L0}, 11")
        A(f"s_add_u32 s{T + 1}, s{T}, 8192")
        A(f"s_mov_b32 s{SRD_T + 2}, {2048 * 2048}")
        A(f"s_mov_b32 s{SRD_T + 3}, 0x20000")
        A(f"s_getpc_b64 s[{T + 3}:{T + 4}]")
        A("LF_pc0:")
        A("s_waitcnt lgkmcnt(0)")
        A(f"s_mov_b32 s{SRD_T}, s{S_XP}")
        A(f"s_mov_b32 s{SRD_T + 1}, s{S_XP + 1}")
        RAW = 64
        for r in range(2):
            for j in range(2):
                d = RAW + 8 * r + 4 * j
                A(f"buffer_load_dwordx4 v[{d}:{d + 3}], v{V_L16}, s[{SRD_T}:{SRD_T + 3}], s{T + r} offen offset:{1024 * j}"); vm.issue(("ln", r))
        A(self.st.stamp("karg"))
        srd(A, SRD_FL, S_WSP, WS_STATS, M_SIZE)
        A(f"s_load_dword s{S_TAG}, s[{SRD_FL}:{SRD_FL + 1}], {M_EPOCH}")
        A(f"s_lshl_b32 s{T}, s{S_LG}, 2")
        A(f"s_add_u32 s{T}, s{T}, s{S_W}")
        A(f"s_lshl_b32 s{T}, s{T}, 9")
        A(f"v_lshrrev_b32 v{t0}, 4, v{V_LANE}")
        A(f"v_lshl_add_u32 v{t0}, v{t0}, 7, s{T}")
        A(f"v_min_u32 v{t0}, LF_end-LF_pc0, v{t0}")
        A(f"v_add_co_u32 v{t0}, vcc, s{T + 3}, v{t0}")
        A(f"v_mov_b32 v{t1}, s{T + 4}")
        A(f"v_mov_b32 v{t2}, 0")
        A(f"v_addc_co_u32 v{t1}, vcc, 0, v{t1}, vcc")
        d0_at = self.opt.get("d0_at", "fl")
        A(f"global_load_dword v0, v[{t0}:{t1}], off"); vm.issue("pf")
        A(f"s_and_b32 s{S_sp}, s2, 3")
        A(f"s_bfe_u32 s{S_nt}, s2, 0x30003")
        A(f"s_and_b32 s{S_m}, s2, 4")
        A(f"s_lshr_b32 s{T}, s2, 6")
        A(f"s_add_u32 s{S_m}, s{S_m}, s{T}")
        A(f"s_lshl_b32 s{S_g}, s{S_sp}, 3")
        A(f"s_add_u32 s{S_g}, s{S_g}, s{S_nt}")
        A(f"s_lshl_b32 s{S_G}, s{S_m}, 2")
        A(f"s_add_u32 s{S_G}, s{S_G}, s{S_W}")
        A(f"s_movk_i32 s{T}, 6944")
        A(f"s_movk_i32 s{T + 1}, 28672")
        A(f"v_mul_u32_u24 v{t0}, 4682, v{V_LANE}")
        for n in range(7):
            if n:
                A(f"v_add_u32 v{t0}, {64 * 4682}, v{t0}")
            A(f"v_bfe_u32 v{t2}, v{t0}, 18, 1")
            A(f"v_bfe_u32 v{t3}, v{t0}, 19, 1")
            A(f"v_lshrrev_b32 v{t1}, 16, v{t0}")
            A(f"v_sub_u32 v{t2}, v{t2}, v{t3}")
            A(f"v_mad_u32_u24 v{t1}, v{t1}, s{T}, v{V_L16}")
            A(f"v_mad_i32_i24 v{V_FO + n}, v{t2}, s{T + 1}, v{t1}")
            if n >= 4:
                A(f"v_add_u32 v{V_FO + n}, 4096, v{V_FO + n}")
        for n in range(7):
            for lane in range(64):
                ci = 64 * n + lane
                p = ci // 14
                k = (p & ~12) | ((p & 4) << 1) | ((p & 8) >> 1)
                t = ci * 4682
                got = (t >> 16) * 6944 + lane * 16 + (((t >> 18) & 1) - ((t >> 19) & 1)) * 28672 + (4096 if n >= 4 else 0)
                assert got >= 0 and got + (n & 3) * 1024 == k * 7168 + (ci % 14) * 16
        A(f"v_lshrrev_b32 v{t0}, 3, v{V_LANE}")
        A(f"v_lshrrev_b32 v{t1}, 4, v{V_LANE}")
        A(f"v_and_b32 v{t2}, 7, v{V_LANE}")
        A(f"v_xor_b32 v{t1}, v{t1}, v{t2}")
        A(f"v_lshlrev_b32 v{t1}, 4, v{t1}")
        A(f"v_lshl_add_u32 v{V_SO}, v{t0}, 11, v{t1}")
        A(f"v_xor_b32 v{V_SO + 1}, 64, v{V_SO}")
        A(f"v_add_u32 v{V_SO + 1}, {8 * 2048 - 1024}, v{V_SO + 1}")
        A(f"s_and_b32 s{T}, s{S_W}, 1")
        A(f"s_mul_i32 s{S_FOFF}, s{T}, {32 * 7168}")
        A(f"s_mul_i32 s{T + 1}, s{S_g}, 224")
        A(f"s_add_u32 s{S_FOFF}, s{S_FOFF}, s{T + 1}")
        A(f"s_lshl_b32 s{S_SOFF}, s{S_g}, 16")
        A(f"s_lshl_b32 s{T}, s{T}, 15")
        A(f"s_add_u32 s{S_SOFF}, s{S_SOFF}, s{T}")
        A(f"s_lshl_b32 s{S_XOFF0}, s{S_G}, 17")
        A(f"s_add_u32 s{S_XOFF1}, s{S_XOFF0}, 4096")
        A(f"s_mul_i32 s{S_DF}, s{S_W}, 7168")
        A(f"s_lshl_b32 s{S_DS}, s{S_W}, 11")
        A(f"s_add_u32 s{S_DS}, s{S_DS}, {T_SSM}")
        A(f"s_mov_b32 s{S_DST}, 0")
        A(f"s_mov_b32 s{S_DFS}, s{S_DF}")
        A(f"s_mov_b32 s{S_DSS}, s{S_DS}")
        A(f"s_mov_b32 s{SRD_F + 2}, {1024 * 7168}")
        A(f"s_mov_b32 s{SRD_F + 3}, 0x20000")
        A(f"s_mov_b32 s{SRD_S + 2}, {1024 * 2048}")
        A(f"s_mov_b32 s{SRD_S + 3}, 0x20000")
        A(f"s_cmp_lt_u32 s{S_W}, 2")
        A(f"s_cselect_b32 s{SRD_F}, s{SRD_D}, s{SRD_D + 2}")
        A(f"s_cselect_b32 s{SRD_F + 1}, s{SRD_D + 1}, s{SRD_D + 3}")
        A(f"s_cselect_b32 s{SRD_S}, s{SRD_C}, s{SRD_C + 2}")
        A(f"s_cselect_b32 s{SRD_S + 1}, s{SRD_C + 1}, s{SRD_C + 3}")
        A(f"s_cselect_b32 s{SRD_C}, s{SRD_A2}, s{SRD_A2 + 2}")
        A(f"s_cselect_b32 s{SRD_C + 1}, s{SRD_A2 + 1}, s{SRD_A2 + 3}")

        def dmas(t):
            for n in range(9):
                m, ld = self.dma1(n)
                if m:
                    A(m); A("s_nop 0")
                A(ld); self.vm.issue(("D", t))
            for x in self.dma1_adv():
                A(x)
        vf = 95
        A(f"v_and_b32 v{vf}, 7, v{V_LANE}")
        A(f"v_lshlrev_b32 v{vf}, 2, v{vf}")
        A(f"s_lshl_b32 s{S_IT}, s{S_G}, 7")
        A(f"s_add_u32 s{S_IT}, s{S_IT}, {FL_X}")
        x_poll = f"buffer_load_dword v0, v{vf}, s[{SRD_FL}:{SRD_FL + 3}], s{S_IT} offen sc1"
        A(x_poll); vm.issue("pf")
        A(f"s_lshl_b32 s{T}, s{S_L0}, 3")
        A(f"buffer_load_dword v0, v{vf}, s[{SRD_FL}:{SRD_FL + 3}], s{T} offen sc1"); vm.issue("pf")
        srd(A, SRD_X, S_WSP, WS_XN, 0x400000)
        d0 = [self.dma1(n) for n in range(9)]

        def d0_next(k=1, where="ln"):
            for _ in range(k if where == d0_at else 0):
                if d0:
                    m, ld = d0.pop(0)
                    if m:
                        A(m); A("s_nop 0")
                    A(ld); vm.issue(("D", 0))
        d0_next(9, "early")
        d0_next(self.opt.get("d0_pre", 0))
        X, M, V2, K = [96, 112], [80, 82], [84, 86], 88

        def wsum(a, b, fill):
            for j, ctl in enumerate(["row_shr:1 row_mask:0xf bank_mask:0xf bound_ctrl:1", "row_shr:2 row_mask:0xf bank_mask:0xf bound_ctrl:1",
                                     "row_shr:4 row_mask:0xf bank_mask:0xf bound_ctrl:1", "row_shr:8 row_mask:0xf bank_mask:0xf bound_ctrl:1",
                                     "row_bcast:15 row_mask:0xa bank_mask:0xf", "row_bcast:31 row_mask:0xc bank_mask:0xf"]):
                A(fill.pop(0) if fill else "s_nop 0")
                A(f"v_add_f32_dpp v{a}, v{a}, v{a} {ctl}")
                A(f"v_add_f32_dpp v{b}, v{b}, v{b} {ctl}")
            A(fill.pop(0) if fill else "s_nop 0")
            A(f"v_readlane_b32 s{T}, v{a}, 63")
            A(f"v_readlane_b32 s{T + 1}, v{b}, 63")
            A(fill.pop(0) if fill else "s_nop 0")
            A(f"v_mul_f32 v{a}, s{T}, v{K}")
            A(f"v_mul_f32 v{b}, s{T + 1}, v{K}")
        p = lambda x: f"v[{x}:{x + 1}]"
        w4, r7, d29, i5, c6 = 89, 90, 91, 92, 93
        fill = [f"s_mul_i32 s{T + 2}, s{S_W}, {2 * LN_PITCH}", f"s_add_u32 s{T + 2}, s{T + 2}, {L_LN}", f"v_add_u32 v{w4}, s{T + 2}, v{V_L16}",
                f"v_and_b32 v{i5}, 7, v{V_LANE}", f"v_lshrrev_b32 v{c6}, 3, v{V_LANE}", f"v_mul_u32_u24 v{r7}, {LN_PITCH}, v{i5}",
                f"v_lshl_add_u32 v{r7}, v{c6}, 4, v{r7}", f"s_lshl_b32 s{T + 2}, s{S_W}, 9",
                f"s_add_u32 s{T + 2}, s{T + 2}, {L_LN}", f"v_add_u32 v{r7}, s{T + 2}, v{r7}",
                f"v_lshrrev_b32 v{d29}, 2, v{c6}", f"v_and_b32 v{c6}, 3, v{c6}", f"v_lshlrev_b32 v{d29}, 12, v{d29}",
                f"v_lshl_add_u32 v{d29}, v{c6}, 8, v{d29}", f"v_lshl_add_u32 v{d29}, v{i5}, 4, v{d29}", f"s_lshl_b32 s{T + 2}, s{S_LG}, 17"]
        A(f"v_mov_b32 v{K}, {hx(f2u(1.0 / 1024))}")
        for r in range(2):
            A(waitcnt(vm.need(("ln", r))))
            for d in range(8):
                A(f"v_lshlrev_b32 v{X[r] + 2 * d}, 16, v{RAW + 8 * r + d}")
            for d in range(8):
                A(f"v_and_b32 v{X[r] + 2 * d + 1}, 0xffff0000, v{RAW + 8 * r + d}")
            A(f"v_pk_add_f32 {p(M[r])}, {p(X[r])}, {p(X[r] + 2)}")
            for d in range(2, 8):
                A(f"v_pk_add_f32 {p(M[r])}, {p(M[r])}, {p(X[r] + 2 * d)}")
        A(self.st.stamp("xrows"))
        d0_next(2)
        A([f"v_add_f32 v{M[r]}, v{M[r]}, v{M[r] + 1}" for r in range(2)])
        wsum(M[0], M[1], fill)
        for r in range(2):
            d0_next(2)
            A([f"v_pk_add_f32 {p(X[r] + 2 * d)}, {p(X[r] + 2 * d)}, {p(M[r])} op_sel_hi:[1,0] neg_lo:[0,1] neg_hi:[0,1]" for d in range(8)])
            A(f"v_pk_mul_f32 {p(V2[r])}, {p(X[r])}, {p(X[r])}")
            A([f"v_pk_fma_f32 {p(V2[r])}, {p(X[r] + 2 * d)}, {p(X[r] + 2 * d)}, {p(V2[r])}" for d in range(1, 8)])
        d0_next(1)
        A([f"v_add_f32 v{V2[r]}, v{V2[r]}, v{V2[r] + 1}" for r in range(2)])
        wsum(V2[0], V2[1], fill)
        assert not fill
        d0_next(2)
        a, b_, c_ = V2[0], V2[1], V2[0] + 1

        def rbf():
            A(f"v_cvt_pk_bf16_f32 v{c_}, v{a}, v{b_}")
            A(f"v_lshlrev_b32 v{a}, 16, v{c_}")
            A(f"v_and_b32 v{b_}, 0xffff0000, v{c_}")
        rbf()
        A(f"v_add_f32 v{a}, {hx(f2u(1e-5))}, v{a}")
        A(f"v_add_f32 v{b_}, {hx(f2u(1e-5))}, v{b_}")
        rbf()
        A(f"v_sqrt_f32 v{a}, v{a}")
        A(f"v_sqrt_f32 v{b_}, v{b_}")
        A(f"v_cvt_pk_bf16_f32 v{K}, v{M[0]}, v{M[1]}")
        rbf()
        A(f"v_rcp_f32 v{M[0] + 1}, v{a}")
        A(f"v_rcp_f32 v{M[1] + 1}, v{b_}")
        A(f"v_lshlrev_b32 v{a}, 16, v{K}")
        A(f"v_and_b32 v{b_}, 0xffff0000, v{K}")
        A(f"v_sub_f32 v{M[0]}, v{M[0]}, v{a}")
        A(f"v_sub_f32 v{M[1]}, v{M[1]}, v{b_}")
        A(f"v_mul_f32 v{M[0]}, v{M[0]}, v{M[0] + 1}")
        A(f"v_mul_f32 v{M[1]}, v{M[1]}, v{M[1] + 1}")
        for r in range(2):
            A([f"v_pk_fma_f32 {p(X[r] + 2 * d)}, {p(X[r] + 2 * d)}, {p(M[r])}, {p(M[r])} op_sel:[0,1,0] op_sel_hi:[1,1,0]" for d in range(8)])
            A([f"v_cvt_pk_bf16_f32 v{RAW + 8 * r + d}, v{X[r] + 2 * d}, v{X[r] + 2 * d + 1}" for d in range(8)])
            A([f"ds_write_b128 v{w4}, v[{RAW + 8 * r + 4 * j}:{RAW + 8 * r + 4 * j + 3}] offset:{r * LN_PITCH + j * 1024}" for j in range(2)])
        A(f"v_mov_b32 v{a + 1}, v{M[0] + 1}")
        A(f"v_mov_b32 v{b_ + 1}, v{M[1] + 1}")
        A(f"s_lshl_b32 s{T}, s{S_Lb}, 10")
        A(f"s_add_u32 s{T + 2}, s{T + 2}, s{T}")
        A(f"s_lshl_b32 s{T}, s{S_Lh}, 7")
        A(f"s_add_u32 s{T + 2}, s{T + 2}, s{T}")
        A(f"s_lshl_b32 s{T}, s{S_W}, 15")
        A(f"s_add_u32 s{T + 2}, s{T + 2}, s{T}")
        A("s_waitcnt lgkmcnt(0)")
        A("s_barrier")
        A([f"ds_read_b128 v[{RAW + 4 * j}:{RAW + 4 * j + 3}], v{r7} offset:{128 * j}" for j in range(4)])
        A(f"s_mul_i32 s{S_TAG}, s{S_TAG}, 1664525")
        A(f"s_add_u32 s{S_TAG}, s{S_TAG}, 1013904223")
        A([f"v_mov_b32 v{X[0] + j}, -1" for j in range(4)])
        A(f"v_mov_b32 v{K}, 0")
        A(f"v_mov_b32 v{w4}, s{S_TAG}")
        for j in range(4):
            A(f"s_waitcnt lgkmcnt({3 - j})")
            A(f"buffer_store_dwordx4 v[{RAW + 4 * j}:{RAW + 4 * j + 3}], v{d29}, s[{SRD_X}:{SRD_X + 3}], s{T + 2} offen sc1"); vm.issue("lnst")
            if j < 3:
                A(f"s_add_u32 s{T + 2}, s{T + 2}, 8192")
        A(f"s_lshl_b32 s{T}, s{S_g}, 5")
        A(f"s_sub_u32 s{T}, s{T}, s{S_G}")
        A(f"s_lshl_b32 s{T}, s{T}, 8")
        A(f"s_add_u32 s{T}, s{T}, {M_AGG + 31 * 256}")
        A(f"s_lshl_b32 s{T + 1}, s{S_L0}, 3")
        A("s_mov_b64 exec, 0xffff")
        A(f"buffer_store_dwordx4 v[{X[0]}:{X[0] + 3}], v{V_L16}, s[{SRD_FL}:{SRD_FL + 3}], s{T} offen sc1"); vm.issue("lnst")
        A("s_mov_b64 exec, 1")
        A(f"buffer_store_dwordx2 {p(a)}, v{K}, s[{SRD_FL}:{SRD_FL + 3}], s{T + 1} offen sc1"); vm.issue("lnst")
        A(f"buffer_store_dwordx2 {p(b_)}, v{K}, s[{SRD_FL}:{SRD_FL + 3}], s{T + 1} offen offset:32 sc1"); vm.issue("lnst")
        A("s_mov_b64 exec, -1")
        A(self.st.stamp("lnst"))
        d0_next(9, "st")
        q, r, c, i, u = V_T, V_T + 1, V_T + 2, V_T + 3, V_T + 4
        A(f"s_and_b32 s{S_odd}, s{S_g}, 1")
        A(f"v_lshrrev_b32 v{q}, 4, v{V_LANE}")
        A(f"v_bfe_u32 v{r}, v{V_LANE}, 2, 3")
        A(f"v_and_b32 v{c}, 3, v{V_LANE}")
        A(f"v_and_b32 v{i}, 15, v{V_LANE}")
        A(f"v_lshrrev_b32 v{u}, 5, v{V_LANE}")
        A(f"v_lshl_add_u32 v{u}, v{u}, 4, v{r}")
        A(f"v_mul_u32_u24 v{u}, 224, v{u}")
        A(f"v_lshl_add_u32 v{u}, v{c}, 3, v{u}")
        A(f"s_lshl_b32 s{T}, s{S_odd}, 5")
        A(f"s_mul_i32 s{T + 1}, s{S_odd}, 192")
        A(f"s_sub_u32 s{T + 1}, 192, s{T + 1}")
        A(f"v_add_u32 v{V_RB}, s{T}, v{u}")
        A(f"v_add_u32 v{V_RB + 1}, s{T + 1}, v{u}")
        A(f"v_lshrrev_b32 v{u}, 1, v{i}")
        A(f"v_xor_b32 v{u}, v{u}, v{q}")
        A(f"v_lshlrev_b32 v{u}, 4, v{u}")
        A(f"v_lshl_add_u32 v{V_RB + 2}, v{i}, 7, v{u}")
        A(f"v_xor_b32 v{V_RB + 3}, 64, v{V_RB + 2}")
        for j in range(4):
            A(f"v_mov_b32 v{V_RD + j}, v{V_RB + j}")
        A(f"s_mov_b32 s{S_RST}, 0")
        A(f"s_lshl_b32 s{T}, s{S_LG}, 7")
        A(f"s_and_b32 s{T + 1}, s2, 7")
        A(f"s_lshl_b32 s{T + 1}, s{T + 1}, 2")
        A(f"s_add_u32 s{T}, s{T}, s{T + 1}")
        A(f"s_add_u32 s{T}, s{T}, {FL_X}")
        A(f"s_cmp_lg_u32 s{S_W}, 0")
        A(waitcnt(vm.need("lnst")))
        A("s_barrier")
        A("s_cbranch_scc1 LF_noflag")
        A("s_mov_b64 exec, 1")
        A(f"buffer_store_dword v{w4}, v{K}, s[{SRD_FL}:{SRD_FL + 3}], s{T} offen sc1")
        A("s_mov_b64 exec, -1")
        A("LF_noflag:")
        A(self.st.stamp("xflag"))
        d0_next(9, "fl")
        for x in self.dma1_adv():
            A(x)
        if self.opt.get("walk", 1):
            A("s_mov_b64 exec, 0")
            for w in range(3):
                A(f"s_cmp_eq_u32 s{S_W}, {w}")
                A(f"s_cbranch_scc1 LF_pad{w}")
            A("s_branch LF_pad3")
        A("LF_walked:")
        A("s_mov_b64 exec, -1")
        A(self.st.stamp("walk"))
        A(f"s_mov_b32 s{T + 6}, 0")
        A("LF_xpoll:")
        if self.opt.get("xsleep"):
            A(f"s_sleep {self.opt['xsleep']}")
        A(x_poll)
        A(f"s_add_u32 s{T + 6}, s{T + 6}, 1")
        A("s_waitcnt vmcnt(0)"); vm.drain()
        A(f"v_cmp_ne_u32 vcc, s{S_TAG}, v0")
        A(f"s_cmp_gt_u32 s{T + 6}, 0x40000")
        A("s_cbranch_scc1 LF_xok")
        A("s_cbranch_vccnz LF_xpoll")
        A("LF_xok:")
        A(self.st.stamp("xpoll"))
        for kk in range(2):
            for b in range(4):
                A(self.x_load(0, kk, b)); vm.issue(("X", 0, kk))
        A("s_barrier")
        for f in range(self.PD):
            for ins in self.rd1(f):
                A(ins); self.lg.issue(("W", 0, f))
        A(self.x_adv())
        A(f"s_mov_b32 s{S_IT}, 0")
        A("s_branch LF_main")
        A(".p2align 12")
        A("LF_main:")

    def setup_items(self):
        T = S_T
        it = []
        it += [f"v_and_b32 v{V_T}, 15, v{V_LANE}", f"v_lshlrev_b32 v{V_T}, 1, v{V_T}", f"s_lshl_b32 s{T}, s{S_g}, 6"]
        for j, p in enumerate([SRD_P, SRD_P + 2, SRD_AG]):
            it += srd_items(SRD_T, p, 0, 2048)
            for sb in range(2):
                it.append(It(f"buffer_load_ushort v{V_RAW + 2 * j + sb}, v{V_T}, s[{SRD_T}:{SRD_T + 3}], s{T} offen offset:{32 * sb}", "vm", "par"))
        it += [[f"s_mov_b32 s{S_KP}, s{SRD_AG + 2}", f"s_mov_b32 s{S_KP + 1}, s{SRD_AG + 3}"]]
        it += srd_items(SRD_D, SRD_O, 0, 3584 * 2048)
        it += srd_items(SRD_O, SRD_O + 2, 0, 2048 * 4096)
        it += [f"s_mov_b32 s{SRD_C + 2}, {1024 * 2048}", f"s_mov_b32 s{SRD_C + 3}, 0x20000"]
        it += srd_items(SRD_A2, S_WSP, WS_A2, A2_SIZE)
        it += srd_items(SRD_P, S_WSP, WS_PART, PART_SIZE)
        it += [f"s_lshl_b32 s{T}, s{S_g}, 13", f"s_add_u32 s{T}, s{T}, {hx(WS_AGG)}",
               [f"s_add_u32 s{SRD_AG}, s{S_WSP}, s{T}", f"s_addc_u32 s{SRD_AG + 1}, s{S_WSP + 1}, 0"],
               f"s_mov_b32 s{SRD_AG + 2}, 8192", f"s_mov_b32 s{SRD_AG + 3}, 0x20000"]
        c0 = -2.0 * LOG2E * math.sqrt(2.0 / math.pi)
        it += [f"s_mov_b32 s{S_GC}, {hx(f2u(c0 * 0.044715))}", f"s_mov_b32 s{S_GC + 1}, {hx(f2u(c0))}"]
        it += [f"s_lshl_b32 s{S_tile}, s{S_m}, 3", f"s_add_u32 s{S_tile}, s{S_tile}, s{S_nt}"]
        it += [f"s_mul_i32 s{T}, s{S_G}, {A2_G}",
               f"s_lshl_b32 s{T + 1}, s{S_sp}, 16",
               f"s_add_u32 s{S_ASSM}, s{T}, s{T + 1}",
               f"s_add_u32 s{S_ASSM}, s{S_ASSM}, {112 * 4096}",
               f"s_mul_i32 s{T + 1}, s{S_sp}, {28 * 4096}",
               f"s_add_u32 s{S_AOFF}, s{T}, s{T + 1}",
               f"s_mul_i32 s{S_DOWN}, s{S_nt}, 3",
               f"s_lshl_b32 s{T + 1}, s{S_DOWN}, 12",
               f"s_add_u32 s{S_AOWN}, s{S_AOFF}, s{T + 1}",
               f"s_add_u32 s{S_AEND}, s{S_AOWN}, {3 * 4096}",
               [f"s_cmp_eq_u32 s{S_AOFF}, s{S_AOWN}", f"s_cselect_b32 s{S_AOFF}, s{S_AEND}, s{S_AOFF}"],
               f"s_mul_i32 s{T + 1}, s{S_sp}, {896 * 2048}",
               f"s_lshl_b32 s{T + 2}, s{S_nt}, 8",
               f"s_add_u32 s{S_DBASE}, s{T + 1}, s{T + 2}",
               f"s_sub_u32 s{S_DP}, s{S_W}, 3",
               f"s_add_u32 s{S_DOFF}, s{S_DOWN}, s{S_W}",
               [f"s_cmp_eq_u32 s{S_W}, 3", f"s_cselect_b32 s{T}, s{S_nt}, 0"],
               [f"s_cmp_lg_u32 s{T}, 0", f"s_cselect_b32 s{S_DOFF}, 0, s{S_DOFF}"]] + self.dma2_row2()
        it += [f"s_lshl_b32 s{S_DSSM}, s{S_nt}, 18",
               f"s_lshl_b32 s{T}, s{S_sp}, 9",
               f"s_add_u32 s{S_DSSM}, s{S_DSSM}, s{T}"]
        return it

    def param_items(self):
        PL = V_RAW
        lre, lim, dt = PL, PL + 2, PL + 4
        zr, zi, nq, tm = V_T, V_T + 2, V_T + 4, V_T + 5
        o = [It(f"v_lshlrev_b32 v{PL}, 16, v{PL}", needs=[("vm", "par")])]
        o += [f"v_lshlrev_b32 v{PL + j}, 16, v{PL + j}" for j in range(1, 6)]
        o += [f"v_lshrrev_b32 v{nq}, 4, v{V_LANE}", f"v_cvt_f32_u32 v{nq}, v{nq}"]
        o += [f"v_mul_f32 v{dt + sb}, {hx(f2u(LOG2E))}, v{dt + sb}" for sb in range(2)]
        o += [f"v_exp_f32 v{dt + sb}, v{dt + sb}" for sb in range(2)]
        o += [f"v_cvt_pk_bf16_f32 v{tm}, v{dt}, v{dt + 1}", f"v_lshlrev_b32 v{dt}, 16, v{tm}", f"v_and_b32 v{dt + 1}, 0xffff0000, v{tm}"]
        for sb in range(2):
            o += [f"v_mul_f32 v{zr + sb}, v{dt + sb}, v{lre + sb}", f"v_mul_f32 v{zi + sb}, v{dt + sb}, v{lim + sb}"]
        for sb in range(2):
            o += [f"v_mul_f32 v{zr + sb}, {hx(f2u(LOG2E))}, v{zr + sb}", f"v_mul_f32 v{zi + sb}, {hx(f2u(1.0 / (2 * math.pi)))}, v{zi + sb}"]
        for k, (n, byq) in {P_L1: (1, False), P_L16: (16, False), P_L64: (64, False), P_L16Q: (16, True), P_L512Q: (512, True)}.items():
            if byq:
                o.append(f"v_mul_f32 v{tm + 6}, {hx(f2u(float(n)))}, v{nq}")
                mul = f"v{tm + 6}"
            else:
                mul = hx(f2u(float(n)))
            for sb in range(2):
                o += [f"v_mul_f32 v{tm + sb}, {mul}, v{zr + sb}", f"v_mul_f32 v{tm + 2 + sb}, {mul}, v{zi + sb}"]
            o += [f"v_rndne_f32 v{tm + 4 + sb}, v{tm + 2 + sb}" for sb in range(2)]
            o += [f"v_sub_f32 v{tm + 2 + sb}, v{tm + 2 + sb}, v{tm + 4 + sb}" for sb in range(2)]
            o += [f"v_exp_f32 v{tm + sb}, v{tm + sb}" for sb in range(2)]
            for sb in range(2):
                o += [f"v_cos_f32 v{par(sb, k)}, v{tm + 2 + sb}", f"v_sin_f32 v{par(sb, k) + 1}, v{tm + 2 + sb}"]
            for sb in range(2):
                p = par(sb, k)
                o += [f"v_mul_f32 v{p}, v{p}, v{tm + sb}", f"v_mul_f32 v{p + 1}, v{p + 1}, v{tm + sb}"]
        for sb in range(2):
            l1, cf = par(sb, P_L1), par(sb, P_CF)
            o += [f"v_mul_f32 v{tm}, v{lre + sb}, v{lre + sb}",
                  f"v_fma_f32 v{tm}, v{lim + sb}, v{lim + sb}, v{tm}",
                  f"v_rcp_f32 v{tm}, v{tm}",
                  f"v_add_f32 v{tm + 1}, -1.0, v{l1}",
                  f"v_mul_f32 v{cf}, v{tm + 1}, v{lre + sb}",
                  f"v_fma_f32 v{cf}, v{l1 + 1}, v{lim + sb}, v{cf}",
                  f"v_mul_f32 v{cf + 1}, v{l1 + 1}, v{lre + sb}",
                  f"v_fma_f32 v{cf + 1}, -v{tm + 1}, v{lim + sb}, v{cf + 1}",
                  f"v_add_f32 v{tm}, v{tm}, v{tm}",
                  f"v_mul_f32 v{cf}, v{cf}, v{tm}",
                  f"v_mul_f32 v{cf + 1}, v{cf + 1}, v{tm}"]
        return o

    def fo2_items(self):
        T = S_T
        t0, t1, t2, t3 = V_RAW + 6, V_RAW + 7, V_SO + 1, 0
        o = [f"s_lshl_b32 s{T}, s{S_sp}, 2", f"s_lshl_b32 s{S_DB}, s{S_W}, 13",
             f"v_lshrrev_b32 v{t0}, 4, v{V_LANE}", f"v_and_b32 v{t1}, 15, v{V_LANE}"]
        for e in range(2):
            o += [f"v_add_u32 v{t2}, {4 * e}, v{t0}",
                  f"v_lshlrev_b32 v{t3}, 1, v{t2}",
                  f"v_xor_b32 v{t3}, v{t3}, v{t1}",
                  f"v_add_u32 v{t3}, s{T}, v{t3}",
                  f"v_and_b32 v{t3}, 15, v{t3}",
                  f"v_lshlrev_b32 v{t3}, 4, v{t3}",
                  f"v_lshl_add_u32 v{V_FO2 + e}, v{t2}, 11, v{t3}"]
        for e in range(7, 0, -1):
            d = (e // 2) * 8 * 2048 - (e & 3) * 1024
            o.append(f"v_add_u32 v{V_FO2 + e}, {hx(d)}, v{V_FO2 + (e & 1)}")
        return o

    def res_loads(self, S, n):
        T = S_T
        t0, t1 = V_RAW + 6, V_RAW + 7
        o = srd_items(SRD_T, S_XP, 0, 2048 * 2048)
        o += [f"v_lshrrev_b32 v{t0}, 2, v{V_LANE}", f"v_and_b32 v{t1}, 3, v{V_LANE}", f"v_lshlrev_b32 v{t1}, 4, v{t1}", f"v_lshl_add_u32 v{t0}, v{t0}, 13, v{t1}",
              f"s_lshl_b32 s{S_U0}, s{S_nt}, 2", f"s_add_u32 s{S_U0}, s{S_U0}, s{S_sp}",
              f"s_lshl_b32 s{T + 1}, s{S_U0}, 6", f"s_lshl_b32 s{T}, s{S_G}, 17", f"s_add_u32 s{T}, s{T}, s{T + 1}",
              f"s_lshl_b32 s{S_U1}, s{S_W}, 12", f"s_add_u32 s{S_U1}, s{S_U1}, {L_X}"]
        n = S.seq(o, n)
        for b in range(4):
            ldi = f"buffer_load_dwordx4 v{t0}, s[{SRD_T}:{SRD_T + 3}], s{T} offen offset:{b * 1024} lds"
            n = self.put_dma(S, f"s_mov_b32 m0, s{S_U1}" if b == 0 else None, ldi, "res", n + 2)
            n = S.place(f"s_add_u32 s{T}, s{T}, 1024", n + 1)
        o = srd_items(SRD_T, S_KP, 0, 2048) + [f"v_lshrrev_b32 v{t1}, 4, v{V_LANE}", f"v_lshlrev_b32 v{t1}, 3, v{t1}"]
        o += [It(f"buffer_load_dwordx2 a[{A_RES + 8 + 2 * jl}:{A_RES + 9 + 2 * jl}], v{t1}, s[{SRD_T}:{SRD_T + 3}], s{T + 1} offen offset:{32 * jl}", "vm", "res") for jl in range(2)]
        o += [f"v_and_b32 v{t0}, 15, v{V_LANE}", f"v_lshlrev_b32 v{t0}, 5, v{t0}", f"s_lshl_b32 s{T}, s{S_G}, 9"]
        o += [It(f"buffer_load_dwordx4 a[{A_RES + 4 * j}:{A_RES + 4 * j + 3}], v{t0}, s[{SRD_FL}:{SRD_FL + 3}], s{T} offen offset:{16 * j} sc1", "vm", "res") for j in range(2)]
        o += [f"s_lshl_b32 s{S_FA}, s{S_G}, 2", f"s_add_u32 s{S_FA}, s{S_FA}, s{S_sp}", f"s_lshl_b32 s{S_FA}, s{S_FA}, 7", f"s_add_u32 s{S_FA}, s{S_FA}, {FL_A}",
              f"s_lshl_b32 s{T}, s{S_tile}, 2", f"s_add_u32 s{T}, s{T}, s{S_sp}", f"s_lshl_b32 s{T}, s{T}, 2", f"s_add_u32 s{T}, s{T}, s{S_W}",
              f"s_lshl_b32 s{T}, s{T}, 7", f"s_add_u32 s{T}, s{T}, {FL_P}",
              It(f"buffer_load_dword v0, v{t1}, s[{SRD_FL}:{SRD_FL + 3}], s{S_FA} offen sc1", "vm", "pf"),
              It(f"buffer_load_dword v0, v{t1}, s[{SRD_FL}:{SRD_FL + 3}], s{T} offen sc1", "vm", "pf")]
        n = S.seq(o, n + 1)
        o = [f"v_and_b32 v{t0}, 3, v{V_LANE}", f"v_and_b32 v{t1}, 4, v{V_LANE}", f"v_lshlrev_b32 v{t0}, 10, v{t0}", f"v_lshl_add_u32 v{V_T}, v{t1}, 2, v{t0}",
             f"s_lshl_b32 s{T + 5}, s{S_nt}, 5", f"s_add_u32 s{T + 5}, s{T + 5}, s{S_sp}", f"s_lshl_b32 s{T + 5}, s{T + 5}, 2", f"s_add_u32 s{T + 5}, s{T + 5}, {FL_X}"]
        ld, chk = self.poll_items("LF_clr", f"buffer_load_dword v{V_T + 1}, v{V_T}, s[{SRD_FL}:{SRD_FL + 3}], s{T + 5} offen sc1", V_T + 1)
        n = S.seq(o + [ld], n + 1)
        S.seq(chk, 144 * 8 - 12)
        return n

    def prefetch_items(self):
        T = S_T
        t0, t1 = V_RAW + 6, V_RAW + 7
        o = []
        if self.opt.get("pf_w2", 0):
            o += [f"s_and_b32 s{T}, s{S_m}, 3",
                  f"s_lshl_b32 s{T + 1}, s{T}, 2", f"s_add_u32 s{T + 1}, s{T + 1}, s{S_W}",
                  f"s_mul_i32 s{T + 1}, s{T + 1}, {56 * 2048}",
                  f"s_mul_i32 s{T + 2}, s{S_sp}, {896 * 2048}", f"s_add_u32 s{T + 1}, s{T + 1}, s{T + 2}",
                  f"s_lshl_b32 s{T + 2}, s{S_nt}, 8", f"s_add_u32 s{T + 1}, s{T + 1}, s{T + 2}",
                  f"s_add_u32 s{T + 2}, s{T + 1}, {32 * 2048}",
                  f"v_lshrrev_b32 v{t0}, 1, v{V_LANE}", f"v_and_b32 v{t1}, 1, v{V_LANE}",
                  f"v_lshlrev_b32 v{t0}, 11, v{t0}", f"v_lshl_add_u32 v{t0}, v{t1}, 7, v{t0}",
                  It(f"buffer_load_dword v0, v{t0}, s[{SRD_D}:{SRD_D + 3}], s{T + 1} offen", "vm", "pf"),
                  It(f"buffer_load_dword v0, v{t0}, s[{SRD_D}:{SRD_D + 3}], s{T + 2} offen", "vm", "pf"),
                  f"s_lshl_b32 s{T}, s{T}, 1", f"s_and_b32 s{T + 1}, s{S_W}, 1", f"s_add_u32 s{T}, s{T}, s{T + 1}",
                  f"s_lshl_b32 s{T}, s{T}, 15", f"s_add_u32 s{T}, s{T}, s{S_DSSM}",
                  f"v_lshrrev_b32 v{t0}, 2, v{V_LANE}", f"v_and_b32 v{t1}, 3, v{V_LANE}",
                  f"v_lshlrev_b32 v{t0}, 11, v{t0}", f"v_lshl_add_u32 v{t0}, v{t1}, 7, v{t0}",
                  It(f"buffer_load_dword v0, v{t0}, s[{SRD_C}:{SRD_C + 3}], s{T} offen", "vm", "pf")]
        if self.opt.get("pf_code", 1):
            o += [[f"s_getpc_b64 s[{T + 3}:{T + 4}]", "LF_pc:"],
                  f"s_lshr_b32 s{T}, s2, 3", f"s_lshl_b32 s{T}, s{T}, 2", f"s_add_u32 s{T}, s{T}, s{S_W}",
                  f"s_lshl_b32 s{T}, s{T}, 9",
                  f"v_lshrrev_b32 v{t0}, 4, v{V_LANE}", f"v_lshl_add_u32 v{t0}, v{t0}, 7, s{T}",
                  f"v_min_u32 v{t0}, LF_end-LF_pc, v{t0}",
                  f"v_mov_b32 v{t1}, s{T + 4}",
                  f"v_add_co_u32 v{t0}, vcc, s{T + 3}, v{t0}",
                  "s_nop 0",
                  f"v_addc_co_u32 v{t1}, vcc, 0, v{t1}, vcc",
                  It(f"global_load_dword v0, v[{t0}:{t1}], off", "vm", "pf")]
        return o

    def gemm1(self):
        A, PD = self.A, self.PD
        S = Stream(self.vm, self.lg)
        NV = 8
        for s in range(NV):
            for f in range(36):
                needs = [("lg", ("W", s, f))]
                if f in (0, 18):
                    needs.append(("vm", ("X", s, f // 18)))
                bar = s + 1 < NV and f + PD == 36
                if bar:
                    needs.append(("vm", ("D", s + 1)))
                for b in range(4):
                    S.mfma(self.mfma1(s, f, b), needs if b == 0 else (), bar and b == 0)
        for s in range(NV):
            base = 144 * s
            do_x, do_dma, do_next = s + 1 < NV, s + 2 < NV, s + 1 < NV
            for f in range(36):
                nxt = f + PD
                if nxt < 36 or do_next:
                    tag = ("W", s, nxt) if nxt < 36 else ("W", s + 1, nxt - 36)
                    for i, ins in enumerate(self.rd1(nxt % 36)):
                        S.force(It(ins, "lg", tag), base + 4 * f + i)
            i, vs = 0, 8
            if s == 0 and not self.opt.get("d1_pro"):
                vs = 5
                for k in range(9):
                    m, ld = self.dma1(k)
                    n = self.put_dma(S, m, ld, ("D", 1), base + 4 * i + 2); i += 1
                S.seq(self.dma1_adv(), n + 1)
            if do_x:
                for kk in range(2):
                    for b in range(4):
                        n = S.place(It(self.x_load((s + 1) & 1, kk, b), "vm", ("X", s + 1, kk)), base + vs * i + 2); i += 1
                S.seq(self.x_adv(), n + 1)
            if do_dma:
                for k in range(9):
                    m, ld = self.dma1(k)
                    n = self.put_dma(S, m, ld, ("D", s + 2), base + vs * i + 2); i += 1
                n = S.seq(self.dma1_adv(), n + 1)
                assert n < base + 143
            if do_next:
                n = S.seq([f"s_add_u32 s{S_RST}, s{S_RST}, {ST1}",
                           [f"s_cmp_eq_u32 s{S_RST}, {ST1 * NST}", f"s_cselect_b32 s{S_RST}, 0, s{S_RST}"],
                           f"v_add_u32 v{V_RD + 2}, s{S_RST}, v{V_RB + 2}",
                           f"v_add_u32 v{V_RD + 3}, s{S_RST}, v{V_RB + 3}"], base + 4 * 24)
                assert n < base + 4 * (36 - PD)
                n = S.seq([f"v_add_u32 v{V_RD}, s{S_RST}, v{V_RB}",
                           f"v_add_u32 v{V_RD + 1}, s{S_RST}, v{V_RB + 1}"], base + 4 * (36 - PD))
                assert n < base + 144
            if s in (2, 4):
                S.place(f"s_add_u32 s{S_IT}, s{S_IT}, 1", base + 4)
        n = S.seq(self.setup_items(), 0)
        assert n < 140, n
        n = S.seq(self.param_items(), 144 * 5)
        n = S.seq(self.fo2_items(), max(n + 1, 144 * 6))
        n = S.seq(self.prefetch_items(), max(n + 1, 144 * 6 + 56))
        n = self.res_loads(S, n + 1)
        n = max(n + 1, 144 * 7)
        for t in range(2):
            for e in range(8):
                m, ld = self.dma2(t, e)
                n = self.put_dma(S, m, ld, ("D2", t), n + 6)
            n = S.seq(self.dma2_adv(t), n + 1)
        pre, segs = S.emit()
        flat = lambda a, b: [x for s in segs[a:b] for x in s]
        body, body2 = flat(144, 432), flat(432, 720)
        if body != body2:
            assert len(body) == len(body2)
            for x, y in zip(body, body2):
                if x != y:
                    import re
                    assert x.startswith("s_waitcnt") and y.startswith("s_waitcnt"), (x, y)
                    cx, cy = dict(re.findall(r"(\w+)\((\d+)\)", x)), dict(re.findall(r"(\w+)\((\d+)\)", y))
                    assert all(k in cy and int(cy[k]) <= int(v) for k, v in cx.items()), (x, y)
        A(pre)
        A(self.st.stamp("tile0"))
        A(flat(0, 144))
        A(self.st.stamp("step0"))
        A(".p2align 5")
        A("LF_loop:")
        A(body2)
        A(f"s_cmp_lt_u32 s{S_IT}, 6")
        A("s_cbranch_scc1 LF_loop")
        A(self.st.stamp("loop12"))
        A(flat(720, 864))
        A(self.st.stamp("step13"))
        A(flat(864, 1008))
        A(self.st.stamp("step14"))
        A(flat(1008, 144 * NV))
        bad = hazard.check(body2 + body2)
        assert not bad, bad
        self.over1 = S.over

    def transition(self):
        A = self.A
        T = S_T
        vm = self.vm
        A(self.st.stamp("loopend"))
        for sb in range(2):
            cf = par(sb, P_CF)
            for b in range(4):
                l1, l2 = [], []
                for r in range(4):
                    d = uu(sb, 4 * r + b)
                    a_re, a_im, s = accS(0, sb, b).i + r, accS(1, sb, b).i + r, r & 1
                    l1.append(f"v_pk_mul_f32 v[{d}:{d + 1}], v[{cf}:{cf + 1}], v[{a_re - s}:{a_re - s + 1}] op_sel:[0,{s}] op_sel_hi:[1,{s}]")
                    l2.append(f"v_pk_fma_f32 v[{d}:{d + 1}], v[{cf}:{cf + 1}], v[{a_im - s}:{a_im - s + 1}], v[{d}:{d + 1}] op_sel:[1,{s},0] op_sel_hi:[0,{s},1] neg_lo:[1,0,0]")
                A(l1); A(l2)
        Q0, Q1 = 120, 124
        cur = [uu(0, 0), uu(1, 0)]
        for tau in range(1, 16):
            dst = Q0 if tau & 1 else Q1
            A(interleave(*[cmul_add(dst + 2 * sb, par(sb, P_L1), cur[sb], uu(sb, tau)) for sb in range(2)]))
            cur = [dst, dst + 2]
        g0, g1, g2, g3, PQ = Q0, Q1, 12, 16, 52
        A([f"v_mov_b64 v[{g2 + j}:{g2 + j + 1}], v[{g0 + j}:{g0 + j + 1}]" for j in (0, 2)])
        A(f"s_sub_u32 s{T}, 31, s{S_G}")
        A(f"s_lshl_b32 s{T}, s{T}, 8")
        A([f"v_permlane32_swap_b32 v{g0 + j}, v{g2 + j}" for j in range(4)])
        A([f"v_mov_b64 v[{g1 + j}:{g1 + j + 1}], v[{g0 + j}:{g0 + j + 1}]" for j in (0, 2)])
        A([f"v_mov_b64 v[{g3 + j}:{g3 + j + 1}], v[{g2 + j}:{g2 + j + 1}]" for j in (0, 2)])
        A([f"v_permlane16_swap_b32 v{g0 + j}, v{g1 + j}" for j in range(4)])
        A([f"v_permlane16_swap_b32 v{g2 + j}, v{g3 + j}" for j in range(4)])
        for prev, nx in [(g0, g1), (g1, g2), (g2, g3)]:
            A(interleave(*[cmul_add(nx + 2 * sb, par(sb, P_L16), prev + 2 * sb, nx + 2 * sb) for sb in range(2)]))
        A("s_mov_b64 exec, 0xffff")
        A(f"buffer_store_dwordx4 v[{g3}:{g3 + 3}], v{V_L16}, s[{SRD_AG}:{SRD_AG + 3}], s{T} offen sc1"); vm.issue("agg")
        A(f"v_mov_b64 v[{PQ}:{PQ + 1}], 0")
        A(f"v_mov_b64 v[{PQ + 2}:{PQ + 3}], 0")
        for src in (g0, g1, g2):
            A("s_lshl_b64 exec, exec, 16")
            A(f"v_mov_b64 v[{PQ}:{PQ + 1}], v[{src}:{src + 1}]")
            A(f"v_mov_b64 v[{PQ + 2}:{PQ + 3}], v[{src + 2}:{src + 3}]")
        A("s_mov_b64 exec, -1")
        A(self.st.stamp("publish"))
        A(f"s_mov_b32 s{T}, s{S_AOWN}")
        A(f"s_lshr_b32 s{T + 2}, s{S_nt}, 1")
        A(f"s_sub_u32 s{T + 2}, s{T + 2}, s{S_DOWN}")
        A(f"s_add_u32 s{T + 2}, s{T + 2}, 24")
        A(f"s_lshl_b32 s{T + 2}, s{T + 2}, 3")
        A(f"s_add_u32 s{T + 2}, s{T + 2}, s{S_odd}")
        A(f"s_lshl_b32 s{T + 2}, s{T + 2}, 9")
        A(f"s_add_u32 s{T + 2}, s{T + 2}, s{T}")
        A(f"v_lshlrev_b32 v{V_L8}, 3, v{V_LANE}")
        Z = 120
        GT, UT = 224, 232

        def gelu(gq, uq, out):
            g, u = [], []
            for h in range(2):
                if gq[h].t == "a":
                    A([f"v_accvgpr_read_b32 v{GT + 4 * h + r}, a{gq[h].i + r}" for r in range(4)])
                    g += [GT + 4 * h, GT + 4 * h + 2]; u += [UT + 4 * h, UT + 4 * h + 2]
                else:
                    g += [gq[h].i, gq[h].i + 2]; u += [uq[h].i, uq[h].i + 2]
            p = lambda x: f"v[{x}:{x + 1}]"
            sc = f"s[{S_GC}:{S_GC + 1}]"
            A([f"v_pk_mul_f32 {p(Z + 2 * j)}, {p(g[j])}, {p(g[j])}" for j in range(4)])
            A([f"v_pk_fma_f32 {p(Z + 2 * j)}, {p(Z + 2 * j)}, {sc}, {sc} op_sel:[0,0,1] op_sel_hi:[1,0,1]" for j in range(4)])
            A([f"v_pk_mul_f32 {p(Z + 2 * j)}, {p(Z + 2 * j)}, {p(g[j])}" for j in range(4)])
            A([f"v_exp_f32 v{Z + j}, v{Z + j}" for j in range(8)])
            for h in range(2):
                if uq[h].t == "a":
                    A([f"v_accvgpr_read_b32 v{UT + 4 * h + r}, a{uq[h].i + r}" for r in range(4)])
            A([f"v_pk_add_f32 {p(Z + 2 * j)}, {p(Z + 2 * j)}, 1.0 op_sel_hi:[1,0]" for j in range(4)])
            A([f"v_rcp_f32 v{Z + j}, v{Z + j}" for j in range(8)])
            A([f"v_pk_mul_f32 {p(u[j])}, {p(u[j])}, {p(g[j])}" for j in range(4)])
            A([f"v_pk_mul_f32 {p(u[j])}, {p(u[j])}, {p(Z + 2 * j)}" for j in range(4)])
            A([f"v_cvt_pk_bf16_f32 v{out + j}, v{u[j]}, v{u[j] + 1}" for j in range(4)])

        A(f"s_lshl_b32 s{T + 3}, s{S_nt}, 2")
        assert V_T2 + 2 == par(1, P_CF)
        A(f"v_mov_b32 v{V_T2 + 2}, s{T + 3}")
        A(f"v_mov_b32 v{V_T2 + 3}, s{S_TAG}")

        def emit_fa(where):
            if where != self.opt.get("fa_at", "horner"):
                return
            A(self.st.stamp("prefa"))
            A(waitcnt(vm.need("act")))
            A("s_mov_b64 exec, 1")
            A(f"buffer_store_dword v{V_T2 + 3}, v{V_T2 + 2}, s[{SRD_FL}:{SRD_FL + 3}], s{S_FA} offen sc1"); vm.issue("fa")
            A("s_mov_b64 exec, -1")
            A(self.st.stamp("faflag"))

        LB = 192
        va, vx = V_T, V_T + 1
        lb_loads = [f"buffer_load_dwordx4 v[{LB + 4 * e}:{LB + 4 * e + 3}], v{va}, s[{SRD_AG}:{SRD_AG + 3}], 0 offen offset:{e * 256} sc1" for e in range(8)]
        for pp in range(3):
            for b in range(4):
                o = own(pp, b)
                gelu([accF(0, 2 * pp + h, b) for h in range(2)], [accF(1, 2 * pp + h, b) for h in range(2)], o)
                A(f"buffer_store_dwordx4 v[{o}:{o + 3}], v{V_L16}, s[{SRD_A2}:{SRD_A2 + 3}], s{T} offen offset:{b * 1024} sc1"); vm.issue("act")
            if pp < 2:
                A(f"s_add_u32 s{T}, s{T}, 4096")
            if pp == 0:
                A(waitcnt(vm.need(("D2", 0), ("D2", 1), "res")))
                A("s_barrier")
                for e in range(8):
                    m, ld = self.dma2(2, e)
                    if m:
                        A(m); A("s_nop 0")
                    A(ld); vm.issue(("D2", 2))
                for x in self.dma2_adv(2):
                    A(x)
            if pp == self.opt.get("lb_after", 1):
                A(f"v_lshrrev_b32 v{va}, 4, v{V_LANE}")
                A(f"v_and_b32 v{vx}, 15, v{V_LANE}")
                A(f"v_lshlrev_b32 v{va}, 11, v{va}")
                A(f"v_lshl_add_u32 v{va}, v{vx}, 4, v{va}")
                A(f"s_sub_u32 s{T + 3}, 32, s{S_G}")
                A(f"s_lshl_b32 s{T + 3}, s{T + 3}, 8")
                A(f"v_add_u32 v{va}, s{T + 3}, v{va}")
                for x in lb_loads:
                    A(x); vm.issue("lb")
        for b2 in range(2):
            o = 240 + 4 * b2
            gelu([accF(0, 6, 2 * b2 + h) for h in range(2)], [accF(1, 6, 2 * b2 + h) for h in range(2)], o)
            for h in range(2):
                A(f"buffer_store_dwordx2 v[{o + 2 * h}:{o + 2 * h + 1}], v{V_L8}, s[{SRD_A2}:{SRD_A2 + 3}], s{T + 2} offen offset:{(2 * b2 + h) * 1024} sc1"); vm.issue("hst")
        A(self.st.stamp("gelu"))
        emit_fa("gelu")
        A(f"s_mov_b32 s{T + 4}, 0")
        A(waitcnt(vm.need("lb")))
        A("LF_lbchk:")
        A(f"v_max_u32 v{vx}, v{LB}, v{LB + 1}")
        for j in range(2, 32, 2):
            A(f"v_max3_u32 v{vx}, v{vx}, v{LB + j}, v{LB + j + 1}")
        A(f"v_cmp_eq_u32 vcc, -1, v{vx}")
        A(f"s_add_u32 s{T + 4}, s{T + 4}, 1")
        A("s_cbranch_vccnz LF_lbspin")
        A("LF_lbok:")
        A(f"s_lshl_b32 s{T + 4}, s{S_g}, 5")
        A(f"s_add_u32 s{T + 4}, s{T + 4}, s{S_G}")
        A(f"s_cmp_eq_u32 s{T + 4}, 31")
        A("s_cbranch_scc1 LF_epoch")
        A("LF_epochok:")
        self.lb_loads = lb_loads
        for e in range(6, -1, -1):
            A(interleave(*[cmul_add(LB + 4 * e + 2 * sb, par(sb, P_L64), LB + 4 * (e + 1) + 2 * sb, LB + 4 * e + 2 * sb) for sb in range(2)]))
        Sx, St = LB + 4, LB + 8
        A(interleave(*[cmul(Sx + 2 * sb, par(sb, P_L512Q), LB + 2 * sb) for sb in range(2)]))
        for swp in ["v_permlane32_swap_b32", "v_permlane16_swap_b32"]:
            A([f"v_mov_b64 v[{St + j}:{St + j + 1}], v[{Sx + j}:{Sx + j + 1}]" for j in (0, 2)])
            A("s_nop 1")
            A([f"{swp} v{Sx + j}, v{St + j}" for j in range(4)])
            A([f"v_pk_add_f32 v[{Sx + j}:{Sx + j + 1}], v[{Sx + j}:{Sx + j + 1}], v[{St + j}:{St + j + 1}]" for j in (0, 2)])
        A(interleave(*[cmul_add(PQ + 2 * sb, par(sb, P_L16Q), Sx + 2 * sb, PQ + 2 * sb) for sb in range(2)]))
        emit_fa("horner")
        cur = [PQ, PQ + 2]
        for tau in range(16):
            A(interleave(*[cmul_add(uu(sb, tau), par(sb, P_L1), cur[sb], uu(sb, tau)) for sb in range(2)]))
            cur = [uu(0, tau), uu(1, tau)]
        vw, vrd, q, i = V_T + 2, V_T + 3, V_T2, V_T2 + 1
        emit_fa("p2")
        A(f"v_and_b32 v{i}, 15, v{V_LANE}")
        A(f"v_lshrrev_b32 v{q}, 4, v{V_LANE}")
        A(f"s_add_u32 s{T + 3}, s{S_DB}, {L_H}")
        t0, t1 = V_T, V_T + 1
        A(f"v_lshrrev_b32 v{t0}, 2, v{i}")
        A(f"v_xor_b32 v{t0}, v{t0}, v{q}")
        A(f"v_lshl_add_u32 v{vw}, v{i}, 5, s{T + 3}")
        A(f"v_lshl_add_u32 v{vw}, v{t0}, 3, v{vw}")
        k = 0
        for ri in range(2):
            ng = "-" if ri else ""
            cv, wr = [], []
            for b in range(4):
                for sb in range(2):
                    d = V_FR + 2 * k; k += 1
                    cv.append(f"v_cvt_pk_bf16_f32 v{d}, {ng}v{uu(sb, b) + ri}, {ng}v{uu(sb, 4 + b) + ri}")
                    cv.append(f"v_cvt_pk_bf16_f32 v{d + 1}, {ng}v{uu(sb, 8 + b) + ri}, {ng}v{uu(sb, 12 + b) + ri}")
                    wr.append(f"ds_write_b64 v{vw}, v[{d}:{d + 1}] offset:{(ri * 4 + b) * 1024 + sb * 512}")
            A(cv); A(wr)
            for x in wr:
                self.lg.issue("hwr")
        A(f"v_lshlrev_b32 v{t0}, 1, v{q}")
        A(f"v_and_b32 v{t0}, 2, v{t0}")
        A(f"v_xor_b32 v{t0}, v{t0}, v{i}")
        A(f"v_lshl_add_u32 v{vrd}, v{t0}, 3, s{T + 3}")
        A(f"v_lshl_add_u32 v{vrd}, v{q}, 8, v{vrd}")
        A(f"v_xor_b32 v{vw}, 8, v{vrd}")
        for ri in range(2):
            for b in range(4):
                for h in range(2):
                    d = V_FR + (ri * 4 + b) * 4 + 2 * h
                    A(f"ds_read_b64_tr_b16 v[{d}:{d + 1}], v{vw if h else vrd} offset:{(ri * 4 + b) * 1024 + h * 128}")
                    self.lg.issue(("hrd", ri, b))
        A(f"v_lshrrev_b32 v{t0}, 2, v{V_LANE}")
        A(f"v_and_b32 v{t1}, 7, v{t0}")
        A(f"v_lshlrev_b32 v{t0}, 8, v{t0}")
        A(f"v_lshl_add_u32 v{t0}, v{t1}, 5, v{t0}")
        A(f"v_and_b32 v{t1}, 3, v{V_LANE}")
        A(f"v_lshl_add_u32 v{V_RF}, v{t1}, 3, v{t0}")
        for jl in range(1, 8):
            A(f"v_xor_b32 v{V_RF + jl}, {jl * 32}, v{V_RF}")
        A(f"v_and_b32 v{V_FLG + 1}, 7, v{V_LANE}")
        A(f"v_lshlrev_b32 v{V_FLG + 1}, 2, v{V_FLG + 1}")
        A(f"s_lshl_b32 s{S_HO}, s{S_nt}, 13")
        A(f"s_add_u32 s{S_HO}, s{S_HO}, s{S_ASSM}")
        A(f"s_add_u32 s{S_U4}, s{S_HO}, 4096")

    def gemm2(self):
        A, PD, opt = self.A, self.PD, self.opt
        T = S_T
        TK, PM = opt.get("TK", 3), opt.get("PM", 2)
        assert PM <= TK <= 3
        G = []
        for s in range(NSTEP - PM):
            G += [(s, kb, jl) for kb in range(4) for jl in range(0 if s < NSTEP - TK else 2, 8)]
        pair_end = {}
        for d in (1, 2, 3):
            G += [(s, kb, jl) for s in range(NSTEP - PM, NSTEP) for kb in range(4) for jl in (2 * d, 2 * d + 1)]
            pair_end[d] = len(G)
        G += [(s, kb, jl) for s in range(NSTEP - TK, NSTEP) for kb in range(4) for jl in (0, 1)]
        first_s, first_a, last_a = {}, {}, {}
        for idx, (s, kb, jl) in enumerate(G):
            first_s.setdefault(s, idx); first_a.setdefault((s, kb), idx); last_a[(s, kb)] = idx
        bar_at = {first_s[t] - PD: t for t in range(1, NSTEP)}
        S = Stream(self.vm, self.lg)
        for idx, (s, kb, jl) in enumerate(G):
            needs = [("lg", ("W2", idx))]
            if first_a[(s, kb)] == idx and not (s == 0 and kb < 3):
                needs.append(("vm", ("A", s, kb)))
            if idx in bar_at:
                needs.append(("vm", ("D2", bar_at[idx])))
            w = A_W2 + 4 * (idx % 8)
            for b in range(4):
                c = acc2(jl, b)
                sc = "0" if (s == 0 and kb == 0) else f"v[{c}:{c + 3}]"
                S.mfma(f"v_mfma_f32_16x16x32_bf16 v[{c}:{c + 3}], a[{w}:{w + 3}], {self.areg(s, kb, b).r(4)}, {sc}", needs if b == 0 else (), idx in bar_at and b == 0)
        NG = len(G)
        RXr = lambda k, b: V_OWN + 16 * k + 4 * b
        rx_m = {}
        for k in range(3):
            for b in range(4):
                for jl in range(2):
                    c, sel = acc2(jl, b), V_SEL + (2 if jl == 0 else 0)
                    n = S.mfma(f"v_mfma_f32_16x16x32_bf16 v[{c}:{c + 3}], v[{sel}:{sel + 3}], v[{RXr(k, b)}:{RXr(k, b) + 3}], v[{c}:{c + 3}]",
                               [("vm", ("RX", k, b))] if jl == 0 else ())
                    rx_m.setdefault(k, n)
        A(self.st.stamp("g2start"))
        for idx in range(PD):
            for ins in self.rd2(idx, *G[idx]):
                A(ins); self.lg.issue(("W2", idx))
        last_rf = {}
        for idx in range(NG - PD):
            s, kb, jl = G[idx + PD]
            for i, ins in enumerate(self.rd2(idx + PD, s, kb, jl)):
                n = S.force(It(ins, "lg", ("W2", idx + PD)), 4 * idx + i)
            last_rf[(s, jl)] = n
        for s in (1, 3, 5):
            for jl in range(8):
                S.place(f"v_xor_b32 v{V_RF + jl}, 0x10000, v{V_RF + jl}", last_rf[(s, jl)], last_rf[(s, jl)] + 3)
        n = 0
        for ri in range(2):
            for b in range(4):
                d = V_FR + (ri * 4 + b) * 4
                x = It(f"buffer_store_dwordx4 v[{d}:{d + 3}], v{V_L16}, s[{SRD_A2}:{SRD_A2 + 3}], s{S_U4 if ri else S_HO} offen offset:{b * 1024} sc1",
                       "vm", "hst", needs=[("lg", ("hrd", ri, b))], cost=1)
                n = S.place(x, n) + opt.get("hst_gap", 2)
        ld, chk = self.poll_items("LF_fa", f"buffer_load_dword v{V_FLG}, v{V_FLG + 1}, s[{SRD_FL}:{SRD_FL + 3}], s{S_FA} offen sc1", V_FLG)
        n = S.place(ld, max(n, opt.get("fa_ld", 30)))
        p_fa = S.seq(chk, max(n + 1, opt.get("fa_chk", 60)))
        x = self.st.stamp("fapoll")
        if x:
            S.place(It(x), p_fa + 1)
        for t in range(1, NSTEP):
            x = self.st.stamp(f"s{t}")
            if x:
                S.place(It(x), 4 * first_s[t])
        fs_ld, fs_chk = self.poll_items("LF_fs", f"buffer_load_dword v{V_FLG}, v{V_FLG + 1}, s[{SRD_FL}:{SRD_FL + 3}], s{S_FA} offen offset:32 sc1", V_FLG)
        Q = []
        for s in range(NSTEP):
            for kb in range(4):
                if s == 0 and kb < 3:
                    continue
                early = 4 * last_a[(s - 3, kb)] + 4 if s >= 3 else 0
                Q.append((4 * first_a[(s, kb)], "A", s, kb, early))
        for t in range(3, NSTEP):
            early = 4 * (first_s[t - 2] - PD)
            Q.append((4 * (first_s[t] - PD), "D", t, 0, early))
        Q.sort(key=lambda x: x[0])
        rate, burst = opt.get("rate", 5), opt.get("burst", 4)
        n = p_fa + 1
        slack = []
        q, i = V_T2, V_T2 + 1
        pos = {}
        for need, kind, a, b_, early in Q:
            step = rate if need - n > opt.get("ahead", 128) else (burst if need - n > 80 else opt.get("burst0", 2))
            n = max(n, early)
            if kind == "A":
                if (a, b_) == (NF - 1, 0):
                    n = S.seq(fs_chk, n) + 1
                lds_ = self.a_loads(a, b_)
                for j, x in enumerate(lds_):
                    n = S.place(It(x, "vm", ("A", a, b_)), n)
                    last = n
                    n += step if len(lds_) == 4 else (step + (j & 1)) // 2
                slack.append((kind, a, b_, need - last))
                n = max(n, S.seq(self.a_adv(a, b_), last + 1))
                pos[(a, b_)] = n
                if (a, b_) == tuple(opt.get("fs_at", (2, 3))):
                    p_fs = S.place(It([f"buffer_store_dword v{V_T2 + 3}, v{V_T2 + 2}, s[{SRD_FL}:{SRD_FL + 3}], s{S_FA} offen offset:32 sc1"], "vm", "fs", needs=[("vm", "hst")]), n)
                    n = p_fs + 1
                if (a, b_) == (NF - 2, opt.get("fs_kb", 0)):
                    n = S.place(fs_ld, n) + 1
            else:
                for e in range(8):
                    m, ldi = self.dma2(a, e)
                    n = self.put_dma(S, m, ldi, ("D2", a), n)
                    last = n
                    n += step
                slack.append((kind, a, 0, need - last))
                n = max(n, S.seq(self.dma2_adv(a), last + 1))
                pos[("D", a)] = n
        self.slack = slack
        assert min(x[3] for x in slack) > 1, slack
        t0, t1, t2, t3 = V_T2 + 4, V_T2 + 5, V_T2 + 6, V_T2 + 7
        o = [f"s_and_b32 s{T}, s{S_W}, 1", f"s_lshl_b32 s{T}, s{T}, 1", f"s_add_u32 s{T}, s{T}, s{S_sp}", f"s_lshl_b32 s{T}, s{T}, 5",
             f"v_lshrrev_b32 v{t0}, 3, v{V_LANE}", f"v_and_b32 v{t1}, 7, v{V_LANE}"]
        for e in range(8):
            o += [f"v_add_u32 v{t2}, {8 * e}, v{t0}",
                  f"v_bfe_u32 v{t3}, v{t2}, 1, 3",
                  f"v_xor_b32 v{t3}, v{t3}, v{t1}",
                  f"v_lshlrev_b32 v{t3}, 4, v{t3}",
                  f"v_add_u32 v{t2}, s{T}, v{t2}",
                  f"v_and_b32 v{t2}, 127, v{t2}",
                  f"v_lshl_add_u32 v{V_SO2 + e}, v{t2}, 11, v{t3}"]
            if e & 3:
                o.append(f"v_subrev_u32 v{V_SO2 + e}, {(e & 3) * 1024}, v{V_SO2 + e}")
        o += [f"v_lshrrev_b32 v{t0}, 1, v{i}", f"v_xor_b32 v{t0}, v{t0}, v{q}", f"v_lshlrev_b32 v{t0}, 4, v{t0}",
              f"v_lshl_add_u32 v{V_RS}, v{i}, 7, v{t0}", f"v_xor_b32 v{V_RS + 1}, 64, v{V_RS}",
              f"v_add_u32 v{V_RS + 2}, 0x10000, v{V_RS}", f"v_add_u32 v{V_RS + 3}, 0x10000, v{V_RS + 1}"]
        o += [f"v_mov_b32 v{V_SEL + j}, 0" for j in (0, 1, 4, 5)]
        o += [f"v_lshlrev_b32 v{t0}, 2, v{q}", f"v_sub_u32 v{t0}, v{i}, v{t0}",
              f"v_and_b32 v{t1}, 1, v{t0}", f"v_lshlrev_b32 v{t1}, 4, v{t1}", f"v_mov_b32 v{t2}, 0x3f80", f"v_lshlrev_b32 v{t1}, v{t1}, v{t2}",
              f"v_lshrrev_b32 v{t0}, 1, v{t0}",
              f"v_cmp_eq_u32 s[{T + 1}:{T + 2}], 0, v{t0}", f"v_cmp_eq_u32 s[{T + 3}:{T + 4}], 1, v{t0}", f"v_mov_b32 v{t2}, 0", f"v_mov_b32 v{t3}, 0",
              f"v_cndmask_b32 v{V_SEL + 2}, v{t2}, v{t1}, s[{T + 1}:{T + 2}]", f"v_cndmask_b32 v{V_SEL + 3}, v{t2}, v{t1}, s[{T + 3}:{T + 4}]"]
        n = S.seq(o, p_fa + 2)
        assert n < pos[("D", NF - 1)] - 64
        ST, DKr, XR, DK, NM, XT = V_OWN, V_OWN + 8, V_OWN + 12, V_OWN + 28, V_OWN + 36, V_OWN + 40
        n = max(n + 1, 4 * first_s[1], p_fs + 1)
        o = [f"v_accvgpr_read_b32 v{ST + j}, a{A_RES + j}" for j in range(12)]
        o += [f"v_lshl_add_u32 v{t3}, v{i}, 6, s{S_U1}", f"v_lshl_add_u32 v{t3}, v{q}, 3, v{t3}"]
        n = S.seq(o, n) + 1
        first = True
        for b in range(4):
            for jl in range(2):
                d = XR + (b * 2 + jl) * 2
                n = S.place(It(f"ds_read_b64 v[{d}:{d + 1}], v{t3} offset:{b * 1024 + jl * 32}", "lg", "xr"), n) + 2
                first = False
        o = []
        for j in range(4):
            o += [f"v_lshlrev_b32 v{DK + 2 * j}, 16, v{DKr + j}", f"v_and_b32 v{DK + 2 * j + 1}, 0xffff0000, v{DKr + j}"]
        o += [f"v_mul_f32 v{NM + b}, v{ST + 2 * b}, v{ST + 2 * b + 1}" for b in range(4)]
        Rr = lambda jl, b: V_FR + (jl * 4 + b) * 4
        first = True
        for b in range(4):
            for jl in range(2):
                d = XR + (b * 2 + jl) * 2
                for r in range(4):
                    un = f"v_and_b32 v{XT}, 0xffff0000, v{d + (r >> 1)}" if r & 1 else f"v_lshlrev_b32 v{XT}, 16, v{d + (r >> 1)}"
                    o += [It(un, needs=[("lg", "xr")] if first else ()),
                          f"v_fma_f32 v{XT + 1}, v{XT}, v{ST + 2 * b + 1}, -v{NM + b}",
                          f"v_fma_f32 v{Rr(jl, b) + r}, v{XT + 1}, v{DK + 4 * jl + r}, v{XT}"]
                    first = False
        vo, fz = t0, t1
        o += [f"v_lshlrev_b32 v{vo}, 14, v{i}", f"v_lshl_add_u32 v{vo}, v{q}, 4, v{vo}", f"v_mov_b32 v{fz}, 0",
              f"s_lshl_b32 s{S_U0}, s{S_U0}, 7", f"s_lshl_b32 s{T}, s{S_G}, 18", f"s_add_u32 s{S_U0}, s{S_U0}, s{T}",
              f"s_lshl_b32 s{S_U1}, s{S_tile}, 11", f"s_lshl_b32 s{T}, s{S_W}, 7", f"s_add_u32 s{S_U1}, s{S_U1}, s{T}", f"s_add_u32 s{S_U1}, s{S_U1}, {FL_P}",
              f"s_mul_i32 s{S_U2}, s{S_tile}, {12 * 16384}", f"s_lshl_b32 s{T}, s{S_W}, 12", f"s_add_u32 s{S_U2}, s{S_U2}, s{T}"]
        n = S.seq(o, n + 8)
        o = []
        for d in (1, 2, 3):
            sd, sf = T + 2 * (d - 1), T + 2 * (d - 1) + 1
            o += [f"s_add_u32 s{sf}, s{S_sp}, {d}", f"s_and_b32 s{sf}, s{sf}, 3",
                  f"s_mul_i32 s{sd}, s{sf}, {3 * 16384}", f"s_add_u32 s{sd}, s{sd}, {(d - 1) * 16384}", f"s_add_u32 s{sd}, s{sd}, s{S_U2}",
                  f"s_lshl_b32 s{sf}, s{sf}, 9", f"s_add_u32 s{sf}, s{sf}, s{S_U1}"]
        o += [f"s_lshl_b32 s{S_U3}, s{S_sp}, 9", f"s_add_u32 s{S_U1}, s{S_U1}, s{S_U3}",
              f"s_mul_i32 s{S_U3}, s{S_sp}, {3 * 16384}", f"s_add_u32 s{S_U2}, s{S_U2}, s{S_U3}",
              f"s_add_u32 s{S_U3}, s{S_U2}, 16384", f"s_add_u32 s{S_U4}, s{S_U2}, 32768"]
        n = S.seq(o, n + 1)
        assert n < 4 * pair_end[1], (n, pair_end)
        end_keep = 4 * NG - 1
        for nm, at in [("send1", 4 * pair_end[1]), ("send2", 4 * pair_end[2]), ("send3", 4 * pair_end[3]), ("keepend", end_keep - 2)]:
            x = self.st.stamp(nm)
            if x:
                S.place(It(x), at)
        sent = {}
        for d in (1, 2, 3):
            n = 4 * pair_end[d] + 2
            for b in range(4):
                c0, c1 = acc2(2 * d, b), acc2(2 * d + 1, b)
                n = S.seq([f"v_cvt_pk_bf16_f32 v{c0}, v{c0}, v{c0 + 1}", f"v_cvt_pk_bf16_f32 v{c0 + 1}, v{c0 + 2}, v{c0 + 3}",
                           f"v_cvt_pk_bf16_f32 v{c0 + 2}, v{c1}, v{c1 + 1}", f"v_cvt_pk_bf16_f32 v{c0 + 3}, v{c1 + 2}, v{c1 + 3}",
                           It(f"buffer_store_dwordx4 v[{c0}:{c0 + 3}], v{V_L16}, s[{SRD_P}:{SRD_P + 3}], s{T + 2 * (d - 1)} offen offset:{b * 1024} sc1", "vm", ("S", d))], n)
            sent[d] = n
        fd = opt.get("flag_delay", 64)
        lim = rx_m[0] - 1
        for d in (1, 2, 3):
            x = It(f"buffer_store_dword v{V_T2 + 3}, v{fz}, s[{SRD_FL}:{SRD_FL + 3}], s{T + 2 * (d - 1) + 1} offen offset:{4 * (d - 1)} sc1", "vm", ("F", d), needs=[("vm", ("S", d))])
            S.place(x, min(sent[d] + fd, lim - 3), lim - 1)
        rx_pos = opt.get("rx", [[98, 56], [40, 0], [0, 0]])
        tail = []
        for k in range(3):
            fr = [V_FLG, V_FLG + 1, t2][k]
            ld, chk = self.poll_items(f"LF_rx{k}", f"buffer_load_dword v{fr}, v{fz}, s[{SRD_FL}:{SRD_FL + 3}], s{S_U1} offen offset:{4 * k} sc1", fr)
            rxl = [It(f"buffer_load_dwordx4 v[{RXr(k, b)}:{RXr(k, b) + 3}], v{V_L16}, s[{SRD_P}:{SRD_P + 3}], s{[S_U2, S_U3, S_U4][k]} offen offset:{b * 1024} sc1", "vm", ("RX", k, b)) for b in range(4)]
            a, c = rx_pos[k]
            if a:
                n = S.place(ld, lim - a, lim - 1)
            else:
                tail.insert(0, ld)
            if c:
                assert a > c
                n = S.seq(chk + rxl, max(n + 1, lim - c))
                assert n < lim
            else:
                tail += [chk[0], It(["s_nop 0"] + chk[1].text)] + rxl
        for x in tail:
            x.scalar = False
            S.g[lim]["V"].append(x)
        pre, segs = S.emit()
        A(pre)
        for s in segs:
            A(s)
        self.over2 = S.over
        for k in range(3):
            f = [j for j, l in enumerate(A.l) if l.startswith(f"buffer_store_dword v{V_T2 + 3}, v{fz},") and f"offset:{4 * k} " in l]
            assert len(f) == 1 and f[0] < A.l.index(f"LF_rx{k}_back:")
        A(self.st.stamp("rxdone"))
        A("s_nop 6")
        aux = opt.get("out_st", "sc1")
        for b in range(4):
            for jl in range(2):
                c, r = acc2(jl, b), Rr(jl, b)
                A([f"v_pk_add_f32 v[{c + j}:{c + j + 1}], v[{c + j}:{c + j + 1}], v[{r + j}:{r + j + 1}]" for j in (0, 2)])
                A(f"buffer_store_dwordx4 v[{c}:{c + 3}], v{vo}, s[{SRD_O}:{SRD_O + 3}], s{S_U0} offen offset:{jl * 64} {aux}")
            if b < 3:
                A(f"s_add_u32 s{S_U0}, s{S_U0}, 4096")

    def gen(self):
        A = self.A
        self.prologue()
        self.gemm1()
        self.transition()
        self.gemm2()
        self.st.dump(A, S_WSP, S_W, V_OWN, SRD_T)
        A("s_endpgm")
        A("LF_lbspin:")
        A(f"s_cmp_gt_u32 s{S_T + 4}, 0x40000")
        A("s_cbranch_scc1 LF_lbok")
        A(self.lb_loads)
        A("s_waitcnt vmcnt(0)")
        A("s_branch LF_lbchk")
        A("LF_epoch:")
        A(f"s_mov_b32 s{S_T + 4}, {M_EPOCH}")
        A("s_mov_b64 exec, 1")
        A(f"buffer_store_dword v{V_T2 + 3}, v{V_T2 + 2}, s[{SRD_FL}:{SRD_FL + 3}], s{S_T + 4} offen sc1")
        A("s_mov_b64 exec, -1")
        A("s_waitcnt vmcnt(0)")
        A("s_branch LF_epochok")
        self.emit_spins()
        A("LF_end:")
        A("s_endpgm")
        A.l, pads, size = post.layout(A.l, "LF_main", "LF_pad", "LF_walked", 4)
        assert len(pads) >= 4
        self.size = size
        bad = hazard.check(A.l)
        assert not bad, "\n".join(bad)
        import re
        fresh, prev = False, None
        for l in A.l:
            if re.match(r"s_\w+ m0,", l):
                assert not fresh, l
                fresh = True
            elif l.startswith("buffer_load") and l.endswith(" lds"):
                off = int(re.search(r"offset:(\d+)", l).group(1))
                srdn = re.search(r"s\[(\d+):", l).group(1)
                assert fresh == (off == 0), l
                assert off == 0 or prev == (srdn, off - 1024), l
                fresh, prev = False, (srdn, off)
        if self.opt.get("verbose"):
            print("over1", self.over1, "over2", self.over2, "size", self.size)
            print("slack", self.slack)
        return dict(text=kernel_head(self.name) + A.text(), desc=kernel_desc(self.name, 512, 256), lds=ST1 * NST + 16384, grid=256, block=256, stamps=self.st.names)


def gen_f(name, opt):
    return F(name, opt).gen()
```

```python
import sys, json
from gen_common import *
import gen_k0, gen_k1, gen_k2, gen_f

NAME = "parallel_sum__ssm_conv_s5__geglu_ffn__prompt"

def build(opt):
    ks = [("ln_kernel", gen_k0.gen_k0), ("gemm1_kernel", gen_k1.gen_k1), (NAME + "_kernel", gen_k2.gen_k2)]
    single = opt.get("arch", "s") == "s"
    if single:
        ks = [(NAME + "_kernel", gen_f.gen_f)]
    parts = [(n, f(n, opt)) for n, f in ks]
    hdr = [l for l in open("cdna_kernels/" + NAME + ".s.ref").read().split("\n") if l.startswith(";") and "@launch" not in l and "Override launch" not in l and "grid=ceil" not in l]
    out = "\n".join(hdr) + "\n"
    for n, p in parts:
        kn = "" if (single and not opt.get("aslist")) else f"kernel={n} "
        out += f"; @launch {kn}grid=({p['grid']},1,1) block=({p['block']},1,1) lds={p['lds']}\n"
    out += '.amdgcn_target "amdgcn-amd-amdhsa--gfx950"\n.text\n'
    for n, p in parts:
        out += p["text"]
    out += '.section .rodata,"a"\n'
    for n, p in parts:
        out += ".p2align 6\n" + p["desc"]
    return out, {n: p["stamps"] for n, p in parts}

if __name__ == "__main__":
    opt = json.loads(sys.argv[2]) if len(sys.argv) > 2 else {}
    txt, names = build(opt)
    if sys.argv[1].endswith(".json"):
        txt = json.dumps(dict(txt=txt, names=names))
    open(sys.argv[1], "w").write(txt)
    print("wrote", sys.argv[1], len(txt), "bytes")
```

```python
import math
from gen_common import *
from sched import *
import hazard, post

LOG2E = 1.4426950408889634
ST1, NST = 36864, 4
T_UP, T_SSM = 14336, 28672
ST2 = 32768
L_X = ST1 * NST
L_H = 3 * ST2
NF, NS = 7, 4
NSTEP = NF + NS
M_STATS, M_EPOCH, M_AGG = 0, 0x8000, WS_AGG - WS_STATS
FL_P = WS_FLAG - WS_STATS
FL_A = FL_P + 0x20000
FL_X = FL_P + 0x28000
M_SIZE = FL_P + 0x40000
L_LN = 3 * ST1
LN_PITCH = 2048 + 32

SRD_F, SRD_S, SRD_X, SRD_A2, SRD_AG, SRD_D, SRD_C, SRD_P, SRD_FL, SRD_O, SRD_T = 4, 8, 12, 16, 20, 24, 28, 32, 36, 40, 44
S_W, S_G, S_g, S_m, S_odd, S_sp, S_nt, S_tile = range(48, 56)
S_FOFF, S_SOFF, S_XOFF0, S_XOFF1, S_DF, S_DS, S_DST, S_DFS, S_DSS, S_RST, S_IT = range(56, 67)
S_AOFF, S_AEND, S_AOWN, S_ASSM, S_DOFF, S_DOWN, S_DSSM = range(67, 74)
S_DP = 3
S_PF1, S_PFD, S_PFC = 84, 85, 86
S_TAG = 80
S_DBASE = 89
S_GC = 74
S_WSP, S_XP, S_KP = 76, 78, 0
S_T = 81
S_DB, S_FA, S_HO, S_U0, S_U1, S_U2, S_U3, S_U4 = S_DF, S_DS, S_DST, S_FOFF, S_SOFF, S_XOFF0, S_XOFF1, S_DFS

V_LANE, V_L16 = 1, 2
V_FO, V_SO, V_RB, V_RD = 3, 10, 12, 16
V_PAR = 20
V_T = 44
V_RAW = 56
V_SACC = 64
V_FACC = 128
A_FACC, A_X, A_W = 0, 96, 160
V_L8 = 11
V_FO2, V_RF, V_SO2, V_RS, V_SEL, V_FLG, V_T2 = 3, 12, 20, 28, 32, 38, 40
V_OWN, V_PK, V_FR = 128, 176, 208
A_BUF, A_W2, A_RES = 0, 192, 224
ACC2 = [48 + 4 * i for i in range(20)] + [176 + 4 * i for i in range(8)] + [240 + 4 * i for i in range(4)]

P_L1, P_L16, P_L64, P_L16Q, P_L512Q, P_CF = range(6)


def accF(t, jb, b):
    if jb < 4:
        return R("v", V_FACC + (t * 4 + jb) * 16 + b * 4)
    return R("a", A_FACC + (t * 3 + jb - 4) * 16 + b * 4)


def accS(ri, sb, b):
    return R("v", V_SACC + (sb * 4 + b) * 8 + ri * 4)


def uu(sb, tau):
    r, b = tau >> 2, tau & 3
    return V_SACC - 8 + (sb * 4 + b) * 8 + 2 * r


def par(sb, k):
    return V_PAR + sb * 12 + 2 * k


def acc2(jl, b):
    return ACC2[jl * 4 + b]


def own(p, b):
    return V_OWN + [0, 32, 16][p] + 4 * b


def cmul_add(dst, lam, h, add):
    return [
        f"v_pk_fma_f32 v[{dst}:{dst + 1}], v[{lam}:{lam + 1}], v[{h}:{h + 1}], v[{add}:{add + 1}] op_sel_hi:[1,0,1]",
        f"v_pk_fma_f32 v[{dst}:{dst + 1}], v[{lam}:{lam + 1}], v[{h}:{h + 1}], v[{dst}:{dst + 1}] op_sel:[1,1,0] op_sel_hi:[0,1,1] neg_lo:[1,0,0]",
    ]


def cmul(dst, lam, h):
    return [
        f"v_pk_mul_f32 v[{dst}:{dst + 1}], v[{lam}:{lam + 1}], v[{h}:{h + 1}] op_sel_hi:[1,0]",
        f"v_pk_fma_f32 v[{dst}:{dst + 1}], v[{lam}:{lam + 1}], v[{h}:{h + 1}], v[{dst}:{dst + 1}] op_sel:[1,1,0] op_sel_hi:[0,1,1] neg_lo:[1,0,0]",
    ]


def interleave(*lists):
    out = []
    for i in range(max(len(x) for x in lists)):
        for x in lists:
            if i < len(x):
                out.append(x[i])
    return out


def srd_items(d, ptr, off, size):
    A = Asm()
    srd(A, d, ptr, off, size)
    return [It(A.l[:2]), It(A.l[2]), It(A.l[3])]


class F:
    def __init__(self, name, opt):
        self.name, self.opt = name, opt
        self.A = Asm()
        self.vm, self.lg = Cnt("vm", 63), Cnt("lgkm", 15)
        self.PD = 4
        self.st = Stamps(opt.get("diag"), opt.get("kidx", 0), opt.get("stamps", "tile0 loopend gelu g2start s1 s8 keepend rxdone").split())
        self.order = [("S", 0, 0), ("S", 1, 0), ("S", 0, 1), ("S", 1, 1)] + [("F", t, jb) for jb in range(7) for t in range(2)]
        self.spins = []

    def frag(self, f):
        return (f // 18,) + self.order[f % 18]

    def rd1(self, f):
        kk, kind, p, q = self.frag(f)
        w = A_W + 4 * (f % 6)
        if kind == "S":
            return [f"ds_read_b128 a[{w}:{w + 3}], v{V_RD + 2 + kk} offset:{T_SSM + p * 4096 + q * 2048}"]
        off = p * T_UP + kk * 7168 + (q * 32 if q < 6 else 0)
        a = V_RD + (0 if q < 6 else 1)
        return [f"ds_read_b64_tr_b16 a[{w + 2 * h}:{w + 2 * h + 1}], v{a} offset:{off + h * 1792}" for h in range(2)]

    def xreg(self, par_, kk, b):
        return A_X + ((par_ * 2 + kk) * 4 + b) * 4

    def x_load(self, par_, kk, b):
        x = self.xreg(par_, kk, b)
        return f"buffer_load_dwordx4 a[{x}:{x + 3}], v{V_L16}, s[{SRD_X}:{SRD_X + 3}], s{S_XOFF0 + kk} offen offset:{b * 1024} sc1"

    def dma1(self, n):
        if n < 7:
            m = None if n & 3 else (f"s_add_u32 m0, s{S_DFS}, 4096" if n else f"s_mov_b32 m0, s{S_DFS}")
            return m, f"buffer_load_dwordx4 v{V_FO + n}, s[{SRD_F}:{SRD_F + 3}], s{S_FOFF} offen offset:{(n & 3) * 1024} lds"
        e = n - 7
        return (None if e else f"s_mov_b32 m0, s{S_DSS}"), f"buffer_load_dwordx4 v{V_SO + e}, s[{SRD_S}:{SRD_S + 3}], s{S_SOFF} offen offset:{e * 1024} lds"

    def dma1_adv(self):
        return [f"s_add_u32 s{S_FOFF}, s{S_FOFF}, {64 * 7168}",
                f"s_add_u32 s{S_SOFF}, s{S_SOFF}, 128",
                f"s_add_u32 s{S_DST}, s{S_DST}, {ST1}",
                [f"s_cmp_eq_u32 s{S_DST}, {ST1 * NST}", f"s_cselect_b32 s{S_DST}, 0, s{S_DST}"],
                f"s_add_u32 s{S_DFS}, s{S_DF}, s{S_DST}",
                f"s_add_u32 s{S_DSS}, s{S_DS}, s{S_DST}"]

    def x_adv(self):
        return [f"s_add_u32 s{S_XOFF0}, s{S_XOFF0}, 8192", f"s_add_u32 s{S_XOFF1}, s{S_XOFF1}, 8192"]

    def mfma1(self, s, f, b):
        kk, kind, p, q = self.frag(f)
        w = A_W + 4 * (f % 6)
        x = self.xreg(s & 1, kk, b)
        c = (accS(p, q, b) if kind == "S" else accF(p, q, b)).r(4)
        sc = "0" if (s == 0 and kk == 0) else c
        if kind == "S":
            return f"v_mfma_f32_16x16x32_bf16 {c}, a[{x}:{x + 3}], a[{w}:{w + 3}], {sc}"
        return f"v_mfma_f32_16x16x32_bf16 {c}, a[{w}:{w + 3}], a[{x}:{x + 3}], {sc}"

    def put_dma(self, S, m, ld, tag, at):
        if m:
            return S.dma(m, ld, tag, at)
        return S.place(It(ld, "vm", tag), at)

    def dma2(self, t, e):
        m = None if e & 3 else f"s_add_u32 m0, s{S_DB}, {(t % 4) * ST2 + e * 1024}"
        if t < NF:
            return m, f"buffer_load_dwordx4 v{V_FO2 + e}, s[{SRD_D}:{SRD_D + 3}], s{S_DOFF} offen offset:{(e & 3) * 1024} lds"
        return m, f"buffer_load_dwordx4 v{V_SO2 + e}, s[{SRD_C}:{SRD_C + 3}], s{S_DOFF} offen offset:{(e & 3) * 1024} lds"

    def dma2_adv(self, t):
        if t == NF - 1:
            return [f"s_mov_b32 s{S_DOFF}, s{S_DSSM}"]
        if t >= NF:
            return [f"s_add_u32 s{S_DOFF}, s{S_DOFF}, 128"]
        if t == NF - 2:
            return [f"s_mul_i32 s{S_DOFF}, s{S_W}, {7 * 65536}", f"s_add_u32 s{S_DOFF}, s{S_DOFF}, {3 * 65536}", f"s_add_u32 s{S_DOFF}, s{S_DOFF}, s{S_DBASE}"]
        return [f"s_add_u32 s{S_DP}, s{S_DP}, 4"] + self.dma2_row()

    def dma2_row(self):
        t = S_T + 7
        return [f"s_add_u32 s{t}, s{S_DP}, 3",
                [f"s_cmp_ge_u32 s{S_DP}, s{S_DOWN}", f"s_cselect_b32 s{S_DOFF}, s{t}, s{S_DP}"]] + self.dma2_row2()

    def dma2_row2(self):
        t = S_T + 7
        for j in range(24):
            assert ((j + 3) * 43) >> 8 == (j + 3) // 6
        return [f"s_add_u32 s{t}, s{S_DOFF}, 3", f"s_mul_i32 s{t}, s{t}, 43", f"s_lshr_b32 s{t}, s{t}, 8",
                f"s_add_u32 s{S_DOFF}, s{S_DOFF}, s{t}", f"s_lshl_b32 s{S_DOFF}, s{S_DOFF}, 16", f"s_add_u32 s{S_DOFF}, s{S_DOFF}, s{S_DBASE}"]

    def areg(self, s, kb, b):
        if s == 0 and kb < 3:
            return R("v", own(kb, b))
        return R("a", A_BUF + ((s % 3) * 16 + kb * 4 + b) * 4)

    def a_loads(self, s, kb):
        if s != NF - 1:
            return [self.a_load(s, kb, b) for b in range(4)]
        return [f"buffer_load_dwordx2 {(self.areg(s, kb, b) + 2 * h).r(2)}, v{V_L8}, s[{SRD_A2}:{SRD_A2 + 3}], s{S_AOFF} offen offset:{b * 1024 + h * 512} {self.opt.get('a_aux', 'sc1')}"
                for b in range(4) for h in range(2)]

    def a_load(self, s, kb, b):
        return f"buffer_load_dwordx4 {self.areg(s, kb, b).r(4)}, v{V_L16}, s[{SRD_A2}:{SRD_A2 + 3}], s{S_AOFF} offen offset:{b * 1024} {self.opt.get('a_aux', 'sc1')}"

    def a_adv(self, s, kb):
        if s == NF - 1 and kb == 3:
            return [f"s_mov_b32 s{S_AOFF}, s{S_ASSM}"]
        out = [f"s_add_u32 s{S_AOFF}, s{S_AOFF}, 4096"]
        if s < NF:
            out.append([f"s_cmp_eq_u32 s{S_AOFF}, s{S_AOWN}", f"s_cselect_b32 s{S_AOFF}, s{S_AEND}, s{S_AOFF}"])
        return out

    def rd2(self, idx, s, kb, jl):
        w = A_W2 + 4 * (idx % 8)
        so = (s & 1) * ST2
        if s < NF:
            return [f"ds_read_b64_tr_b16 a[{w + 2 * h}:{w + 2 * h + 1}], v{V_RF + jl} offset:{so + kb * 8192 + h * 4096}" for h in range(2)]
        ri, half = kb & 1, kb >> 1
        return [f"ds_read_b128 a[{w}:{w + 3}], v{V_RS + half + 2 * ((s >> 1) & 1)} offset:{so + ri * 16384 + jl * 2048}"]

    def poll_items(self, label, load, reg, red=()):
        cmp_ = list(red) + [f"v_cmp_ne_u32 vcc, s{S_TAG}, v{reg}"]
        self.spins.append((label, load, cmp_))
        return It(load, "vm", label), [It(cmp_, needs=[("vm", label)], cost=2),
                                       It([f"s_cbranch_vccnz {label}_spin", f"{label}_back:"])]

    def emit_spins(self):
        A = self.A
        for label, load, cmp_ in self.spins:
            A(f"{label}_spin:")
            A(f"s_mov_b32 s{S_T + 6}, 0")
            A(f"{label}_loop:")
            A(load)
            A(f"s_add_u32 s{S_T + 6}, s{S_T + 6}, 1")
            A("s_waitcnt vmcnt(0)")
            A(cmp_)
            A(f"s_cmp_gt_u32 s{S_T + 6}, 0x40000")
            A(f"s_cbranch_scc1 {label}_back")
            A(f"s_cbranch_vccnz {label}_loop")
            A(f"s_branch {label}_back")

    def prologue(self):
        A = self.A
        T = S_T
        A("s_cmp_ge_u32 s2, 256")
        A("s_cbranch_scc1 LF_end")
        self.st.start(A)
        vm = self.vm
        A(f"s_load_dwordx2 s[{S_XP}:{S_XP + 1}], s[0:1], {KA['x']}")
        A(f"s_load_dwordx2 s[{S_WSP}:{S_WSP + 1}], s[0:1], {KA['ws']}")
        A(f"s_load_dwordx4 s[{SRD_D}:{SRD_D + 3}], s[0:1], {KA['wg']}")
        A(f"s_load_dwordx4 s[{SRD_C}:{SRD_C + 3}], s[0:1], {KA['Bre']}")
        A(f"s_load_dwordx4 s[{SRD_P}:{SRD_P + 3}], s[0:1], {KA['Lre']}")
        A(f"s_load_dwordx4 s[{SRD_AG}:{SRD_AG + 3}], s[0:1], {KA['ldt']}")
        A(f"s_load_dwordx4 s[{SRD_O}:{SRD_O + 3}], s[0:1], {KA['wd']}")
        A(f"s_load_dwordx4 s[{SRD_A2}:{SRD_A2 + 3}], s[0:1], {KA['Cre']}")
        t0, t1, t2, t3 = V_T, V_T + 1, V_T + 2, V_T + 3
        A(f"v_lshrrev_b32 v{t0}, 6, v0")
        A(f"v_and_b32 v{V_LANE}, 63, v0")
        A(f"v_readfirstlane_b32 s{S_W}, v{t0}")
        A(f"v_lshlrev_b32 v{V_L16}, 4, v{V_LANE}")
        S_LG, S_Lb, S_Lh, S_L0 = S_AOFF, S_AEND, S_AOWN, S_ASSM
        A(f"s_lshr_b32 s{S_LG}, s2, 3")
        A(f"s_bfe_u32 s{S_Lb}, s2, 0x20001")
        A(f"s_and_b32 s{S_Lh}, s2, 1")
        A(f"s_lshl_b32 s{S_L0}, s{S_LG}, 1")
        A(f"s_add_u32 s{S_L0}, s{S_L0}, s{S_Lh}")
        A(f"s_lshl_b32 s{S_L0}, s{S_L0}, 2")
        A(f"s_add_u32 s{S_L0}, s{S_L0}, s{S_W}")
        A(f"s_lshl_b32 s{S_L0}, s{S_L0}, 3")
        A(f"s_add_u32 s{S_L0}, s{S_L0}, s{S_Lb}")
        A(f"s_lshl_b32 s{T}, s{S_L0}, 11")
        A(f"s_add_u32 s{T + 1}, s{T}, 8192")
        A(f"s_mov_b32 s{SRD_T + 2}, {2048 * 2048}")
        A(f"s_mov_b32 s{SRD_T + 3}, 0x20000")
        A(f"s_getpc_b64 s[{T + 3}:{T + 4}]")
        A("LF_pc0:")
        A("s_waitcnt lgkmcnt(0)")
        A(f"s_mov_b32 s{SRD_T}, s{S_XP}")
        A(f"s_mov_b32 s{SRD_T + 1}, s{S_XP + 1}")
        RAW = 64
        for r in range(2):
            for j in range(2):
                d = RAW + 8 * r + 4 * j
                A(f"buffer_load_dwordx4 v[{d}:{d + 3}], v{V_L16}, s[{SRD_T}:{SRD_T + 3}], s{T + r} offen offset:{1024 * j}"); vm.issue(("ln", r))
        A(self.st.stamp("karg"))
        srd(A, SRD_FL, S_WSP, WS_STATS, M_SIZE)
        A(f"s_load_dword s{S_TAG}, s[{SRD_FL}:{SRD_FL + 1}], {M_EPOCH}")
        A(f"s_lshl_b32 s{T}, s{S_LG}, 2")
        A(f"s_add_u32 s{T}, s{T}, s{S_W}")
        A(f"s_lshl_b32 s{T}, s{T}, 9")
        A(f"v_lshrrev_b32 v{t0}, 4, v{V_LANE}")
        A(f"v_lshl_add_u32 v{t0}, v{t0}, 7, s{T}")
        A(f"v_min_u32 v{t0}, LF_end-LF_pc0, v{t0}")
        A(f"v_add_co_u32 v{t0}, vcc, s{T + 3}, v{t0}")
        A(f"v_mov_b32 v{t1}, s{T + 4}")
        A(f"v_mov_b32 v{t2}, 0")
        A(f"v_addc_co_u32 v{t1}, vcc, 0, v{t1}, vcc")
        d0_at = self.opt.get("d0_at", "fl")
        A(f"global_load_dword v0, v[{t0}:{t1}], off"); vm.issue("pf")
        A(f"s_and_b32 s{S_sp}, s2, 3")
        A(f"s_bfe_u32 s{S_nt}, s2, 0x30003")
        A(f"s_and_b32 s{S_m}, s2, 4")
        A(f"s_lshr_b32 s{T}, s2, 6")
        A(f"s_add_u32 s{S_m}, s{S_m}, s{T}")
        A(f"s_lshl_b32 s{S_g}, s{S_sp}, 3")
        A(f"s_add_u32 s{S_g}, s{S_g}, s{S_nt}")
        A(f"s_lshl_b32 s{S_G}, s{S_m}, 2")
        A(f"s_add_u32 s{S_G}, s{S_G}, s{S_W}")
        A(f"s_movk_i32 s{T}, 6944")
        A(f"s_movk_i32 s{T + 1}, 28672")
        A(f"v_mul_u32_u24 v{t0}, 4682, v{V_LANE}")
        for n in range(7):
            if n:
                A(f"v_add_u32 v{t0}, {64 * 4682}, v{t0}")
            A(f"v_bfe_u32 v{t2}, v{t0}, 18, 1")
            A(f"v_bfe_u32 v{t3}, v{t0}, 19, 1")
            A(f"v_lshrrev_b32 v{t1}, 16, v{t0}")
            A(f"v_sub_u32 v{t2}, v{t2}, v{t3}")
            A(f"v_mad_u32_u24 v{t1}, v{t1}, s{T}, v{V_L16}")
            A(f"v_mad_i32_i24 v{V_FO + n}, v{t2}, s{T + 1}, v{t1}")
            if n >= 4:
                A(f"v_add_u32 v{V_FO + n}, 4096, v{V_FO + n}")
        for n in range(7):
            for lane in range(64):
                ci = 64 * n + lane
                p = ci // 14
                k = (p & ~12) | ((p & 4) << 1) | ((p & 8) >> 1)
                t = ci * 4682
                got = (t >> 16) * 6944 + lane * 16 + (((t >> 18) & 1) - ((t >> 19) & 1)) * 28672 + (4096 if n >= 4 else 0)
                assert got >= 0 and got + (n & 3) * 1024 == k * 7168 + (ci % 14) * 16
        A(f"v_lshrrev_b32 v{t0}, 3, v{V_LANE}")
        A(f"v_lshrrev_b32 v{t1}, 4, v{V_LANE}")
        A(f"v_and_b32 v{t2}, 7, v{V_LANE}")
        A(f"v_xor_b32 v{t1}, v{t1}, v{t2}")
        A(f"v_lshlrev_b32 v{t1}, 4, v{t1}")
        A(f"v_lshl_add_u32 v{V_SO}, v{t0}, 11, v{t1}")
        A(f"v_xor_b32 v{V_SO + 1}, 64, v{V_SO}")
        A(f"v_add_u32 v{V_SO + 1}, {8 * 2048 - 1024}, v{V_SO + 1}")
        A(f"s_and_b32 s{T}, s{S_W}, 1")
        A(f"s_mul_i32 s{S_FOFF}, s{T}, {32 * 7168}")
        A(f"s_mul_i32 s{T + 1}, s{S_g}, 224")
        A(f"s_add_u32 s{S_FOFF}, s{S_FOFF}, s{T + 1}")
        A(f"s_lshl_b32 s{S_SOFF}, s{S_g}, 16")
        A(f"s_lshl_b32 s{T}, s{T}, 15")
        A(f"s_add_u32 s{S_SOFF}, s{S_SOFF}, s{T}")
        A(f"s_lshl_b32 s{S_XOFF0}, s{S_G}, 17")
        A(f"s_add_u32 s{S_XOFF1}, s{S_XOFF0}, 4096")
        A(f"s_mul_i32 s{S_DF}, s{S_W}, 7168")
        A(f"s_lshl_b32 s{S_DS}, s{S_W}, 11")
        A(f"s_add_u32 s{S_DS}, s{S_DS}, {T_SSM}")
        A(f"s_mov_b32 s{S_DST}, 0")
        A(f"s_mov_b32 s{S_DFS}, s{S_DF}")
        A(f"s_mov_b32 s{S_DSS}, s{S_DS}")
        A(f"s_mov_b32 s{SRD_F + 2}, {1024 * 7168}")
        A(f"s_mov_b32 s{SRD_F + 3}, 0x20000")
        A(f"s_mov_b32 s{SRD_S + 2}, {1024 * 2048}")
        A(f"s_mov_b32 s{SRD_S + 3}, 0x20000")
        A(f"s_cmp_lt_u32 s{S_W}, 2")
        A(f"s_cselect_b32 s{SRD_F}, s{SRD_D}, s{SRD_D + 2}")
        A(f"s_cselect_b32 s{SRD_F + 1}, s{SRD_D + 1}, s{SRD_D + 3}")
        A(f"s_cselect_b32 s{SRD_S}, s{SRD_C}, s{SRD_C + 2}")
        A(f"s_cselect_b32 s{SRD_S + 1}, s{SRD_C + 1}, s{SRD_C + 3}")
        A(f"s_cselect_b32 s{SRD_C}, s{SRD_A2}, s{SRD_A2 + 2}")
        A(f"s_cselect_b32 s{SRD_C + 1}, s{SRD_A2 + 1}, s{SRD_A2 + 3}")

        def dmas(t):
            for n in range(9):
                m, ld = self.dma1(n)
                if m:
                    A(m); A("s_nop 0")
                A(ld); self.vm.issue(("D", t))
            for x in self.dma1_adv():
                A(x)
        PFD_ = self.opt.get("pf_dist", 4)
        vpb = V_T + 6
        A(f"s_and_b32 s{T}, s{S_W}, 1")
        A(f"s_lshl_b32 s{S_PF1}, s2, 1")
        A(f"s_add_u32 s{T}, s{T}, s{S_PF1}")
        A(f"s_lshl_b32 s{S_PF1}, s{T}, 10")
        A(f"s_lshl_b32 s{S_PFC}, s{T}, 12")
        A(f"v_lshrrev_b32 v{vpb}, 5, v{V_LANE}")
        A(f"v_mul_u32_u24 v{vpb}, 1536, v{vpb}")
        A(f"v_add_u32 v{vpb}, v{vpb}, v{V_L16}")
        self.pf1 = f"buffer_load_dword v0, v{V_L16}, s[{SRD_F}:{SRD_F + 3}], s{S_PF1} offen"
        self.pf1_adv = f"s_add_u32 s{S_PF1}, s{S_PF1}, {64 * 7168}"
        self.pfb = lambda c: f"buffer_load_dword v0, v{vpb}, s[{SRD_S}:{SRD_S + 3}], s{S_PFC} offen offset:{512 * c}"
        if self.opt.get("pf_w1", 1):
            A(self.pf1); vm.issue("pf")
            A(self.pfb(0)); vm.issue("pf")
        A(self.pf1_adv)
        vf = 95
        A(f"v_and_b32 v{vf}, 7, v{V_LANE}")
        A(f"v_lshlrev_b32 v{vf}, 2, v{vf}")
        A(f"s_lshl_b32 s{S_IT}, s{S_G}, 7")
        A(f"s_add_u32 s{S_IT}, s{S_IT}, {FL_X}")
        x_poll = f"buffer_load_dword v0, v{vf}, s[{SRD_FL}:{SRD_FL + 3}], s{S_IT} offen sc1"
        A(x_poll); vm.issue("pf")
        A(f"s_lshl_b32 s{T}, s{S_L0}, 3")
        A(f"buffer_load_dword v0, v{vf}, s[{SRD_FL}:{SRD_FL + 3}], s{T} offen sc1"); vm.issue("pf")
        srd(A, SRD_X, S_WSP, WS_XN, 0x400000)
        d0 = [self.dma1(n) for n in range(9)]

        def d0_next(k=1, where="ln"):
            for _ in range(k if where == d0_at else 0):
                if d0:
                    m, ld = d0.pop(0)
                    if m:
                        A(m); A("s_nop 0")
                    A(ld); vm.issue(("D", 0))
        d0_next(9, "early")
        d0_next(self.opt.get("d0_pre", 0))
        X, M, V2, K = [96, 112], [80, 82], [84, 86], 88

        def wsum(a, b, fill):
            for j, ctl in enumerate(["row_shr:1 row_mask:0xf bank_mask:0xf bound_ctrl:1", "row_shr:2 row_mask:0xf bank_mask:0xf bound_ctrl:1",
                                     "row_shr:4 row_mask:0xf bank_mask:0xf bound_ctrl:1", "row_shr:8 row_mask:0xf bank_mask:0xf bound_ctrl:1",
                                     "row_bcast:15 row_mask:0xa bank_mask:0xf", "row_bcast:31 row_mask:0xc bank_mask:0xf"]):
                A(fill.pop(0) if fill else "s_nop 0")
                A(f"v_add_f32_dpp v{a}, v{a}, v{a} {ctl}")
                A(f"v_add_f32_dpp v{b}, v{b}, v{b} {ctl}")
            A(fill.pop(0) if fill else "s_nop 0")
            A(f"v_readlane_b32 s{T}, v{a}, 63")
            A(f"v_readlane_b32 s{T + 1}, v{b}, 63")
            A(fill.pop(0) if fill else "s_nop 0")
            A(f"v_mul_f32 v{a}, s{T}, v{K}")
            A(f"v_mul_f32 v{b}, s{T + 1}, v{K}")
        p = lambda x: f"v[{x}:{x + 1}]"
        w4, r7, d29, i5, c6 = 89, 90, 91, 92, 93
        fill = [f"s_mul_i32 s{T + 2}, s{S_W}, {2 * LN_PITCH}", f"s_add_u32 s{T + 2}, s{T + 2}, {L_LN}", f"v_add_u32 v{w4}, s{T + 2}, v{V_L16}",
                f"v_and_b32 v{i5}, 7, v{V_LANE}", f"v_lshrrev_b32 v{c6}, 3, v{V_LANE}", f"v_mul_u32_u24 v{r7}, {LN_PITCH}, v{i5}",
                f"v_lshl_add_u32 v{r7}, v{c6}, 4, v{r7}", f"s_lshl_b32 s{T + 2}, s{S_W}, 9",
                f"s_add_u32 s{T + 2}, s{T + 2}, {L_LN}", f"v_add_u32 v{r7}, s{T + 2}, v{r7}",
                f"v_lshrrev_b32 v{d29}, 2, v{c6}", f"v_and_b32 v{c6}, 3, v{c6}", f"v_lshlrev_b32 v{d29}, 12, v{d29}",
                f"v_lshl_add_u32 v{d29}, v{c6}, 8, v{d29}", f"v_lshl_add_u32 v{d29}, v{i5}, 4, v{d29}", f"s_lshl_b32 s{T + 2}, s{S_LG}, 17"]
        A(f"v_mov_b32 v{K}, {hx(f2u(1.0 / 1024))}")
        for r in range(2):
            A(waitcnt(vm.need(("ln", r))))
            for d in range(8):
                A(f"v_lshlrev_b32 v{X[r] + 2 * d}, 16, v{RAW + 8 * r + d}")
            for d in range(8):
                A(f"v_and_b32 v{X[r] + 2 * d + 1}, 0xffff0000, v{RAW + 8 * r + d}")
            A(f"v_pk_add_f32 {p(M[r])}, {p(X[r])}, {p(X[r] + 2)}")
            for d in range(2, 8):
                A(f"v_pk_add_f32 {p(M[r])}, {p(M[r])}, {p(X[r] + 2 * d)}")
        A(self.st.stamp("xrows"))
        d0_next(2)
        A([f"v_add_f32 v{M[r]}, v{M[r]}, v{M[r] + 1}" for r in range(2)])
        wsum(M[0], M[1], fill)
        for r in range(2):
            d0_next(2)
            A([f"v_pk_add_f32 {p(X[r] + 2 * d)}, {p(X[r] + 2 * d)}, {p(M[r])} op_sel_hi:[1,0] neg_lo:[0,1] neg_hi:[0,1]" for d in range(8)])
            A(f"v_pk_mul_f32 {p(V2[r])}, {p(X[r])}, {p(X[r])}")
            A([f"v_pk_fma_f32 {p(V2[r])}, {p(X[r] + 2 * d)}, {p(X[r] + 2 * d)}, {p(V2[r])}" for d in range(1, 8)])
        d0_next(1)
        A([f"v_add_f32 v{V2[r]}, v{V2[r]}, v{V2[r] + 1}" for r in range(2)])
        wsum(V2[0], V2[1], fill)
        assert not fill
        d0_next(2)
        a, b_, c_ = V2[0], V2[1], V2[0] + 1

        def rbf():
            A(f"v_cvt_pk_bf16_f32 v{c_}, v{a}, v{b_}")
            A(f"v_lshlrev_b32 v{a}, 16, v{c_}")
            A(f"v_and_b32 v{b_}, 0xffff0000, v{c_}")
        rbf()
        A(f"v_add_f32 v{a}, {hx(f2u(1e-5))}, v{a}")
        A(f"v_add_f32 v{b_}, {hx(f2u(1e-5))}, v{b_}")
        rbf()
        A(f"v_sqrt_f32 v{a}, v{a}")
        A(f"v_sqrt_f32 v{b_}, v{b_}")
        A(f"v_cvt_pk_bf16_f32 v{K}, v{M[0]}, v{M[1]}")
        rbf()
        A(f"v_rcp_f32 v{M[0] + 1}, v{a}")
        A(f"v_rcp_f32 v{M[1] + 1}, v{b_}")
        A(f"v_lshlrev_b32 v{a}, 16, v{K}")
        A(f"v_and_b32 v{b_}, 0xffff0000, v{K}")
        A(f"v_sub_f32 v{M[0]}, v{M[0]}, v{a}")
        A(f"v_sub_f32 v{M[1]}, v{M[1]}, v{b_}")
        A(f"v_mul_f32 v{M[0]}, v{M[0]}, v{M[0] + 1}")
        A(f"v_mul_f32 v{M[1]}, v{M[1]}, v{M[1] + 1}")
        for r in range(2):
            A([f"v_pk_fma_f32 {p(X[r] + 2 * d)}, {p(X[r] + 2 * d)}, {p(M[r])}, {p(M[r])} op_sel:[0,1,0] op_sel_hi:[1,1,0]" for d in range(8)])
            A([f"v_cvt_pk_bf16_f32 v{RAW + 8 * r + d}, v{X[r] + 2 * d}, v{X[r] + 2 * d + 1}" for d in range(8)])
            A([f"ds_write_b128 v{w4}, v[{RAW + 8 * r + 4 * j}:{RAW + 8 * r + 4 * j + 3}] offset:{r * LN_PITCH + j * 1024}" for j in range(2)])
        A(f"v_mov_b32 v{a + 1}, v{M[0] + 1}")
        A(f"v_mov_b32 v{b_ + 1}, v{M[1] + 1}")
        A(f"s_lshl_b32 s{T}, s{S_Lb}, 10")
        A(f"s_add_u32 s{T + 2}, s{T + 2}, s{T}")
        A(f"s_lshl_b32 s{T}, s{S_Lh}, 7")
        A(f"s_add_u32 s{T + 2}, s{T + 2}, s{T}")
        A(f"s_lshl_b32 s{T}, s{S_W}, 15")
        A(f"s_add_u32 s{T + 2}, s{T + 2}, s{T}")
        A("s_waitcnt lgkmcnt(0)")
        A("s_barrier")
        A([f"ds_read_b128 v[{RAW + 4 * j}:{RAW + 4 * j + 3}], v{r7} offset:{128 * j}" for j in range(4)])
        A(f"s_mul_i32 s{S_TAG}, s{S_TAG}, 1664525")
        A(f"s_add_u32 s{S_TAG}, s{S_TAG}, 1013904223")
        A([f"v_mov_b32 v{X[0] + j}, -1" for j in range(4)])
        A(f"v_mov_b32 v{K}, 0")
        A(f"v_mov_b32 v{w4}, s{S_TAG}")
        for j in range(4):
            A(f"s_waitcnt lgkmcnt({3 - j})")
            A(f"buffer_store_dwordx4 v[{RAW + 4 * j}:{RAW + 4 * j + 3}], v{d29}, s[{SRD_X}:{SRD_X + 3}], s{T + 2} offen sc1"); vm.issue("lnst")
            if j < 3:
                A(f"s_add_u32 s{T + 2}, s{T + 2}, 8192")
        A(f"s_lshl_b32 s{T}, s{S_g}, 5")
        A(f"s_sub_u32 s{T}, s{T}, s{S_G}")
        A(f"s_lshl_b32 s{T}, s{T}, 8")
        A(f"s_add_u32 s{T}, s{T}, {M_AGG + 31 * 256}")
        A(f"s_lshl_b32 s{T + 1}, s{S_L0}, 3")
        A("s_mov_b64 exec, 0xffff")
        A(f"buffer_store_dwordx4 v[{X[0]}:{X[0] + 3}], v{V_L16}, s[{SRD_FL}:{SRD_FL + 3}], s{T} offen sc1"); vm.issue("lnst")
        A("s_mov_b64 exec, 1")
        A(f"buffer_store_dwordx2 {p(a)}, v{K}, s[{SRD_FL}:{SRD_FL + 3}], s{T + 1} offen sc1"); vm.issue("lnst")
        A(f"buffer_store_dwordx2 {p(b_)}, v{K}, s[{SRD_FL}:{SRD_FL + 3}], s{T + 1} offen offset:32 sc1"); vm.issue("lnst")
        A("s_mov_b64 exec, -1")
        A(self.st.stamp("lnst"))
        d0_next(9, "st")
        q, r, c, i, u = V_T, V_T + 1, V_T + 2, V_T + 3, V_T + 4
        A(f"s_and_b32 s{S_odd}, s{S_g}, 1")
        A(f"v_lshrrev_b32 v{q}, 4, v{V_LANE}")
        A(f"v_bfe_u32 v{r}, v{V_LANE}, 2, 3")
        A(f"v_and_b32 v{c}, 3, v{V_LANE}")
        A(f"v_and_b32 v{i}, 15, v{V_LANE}")
        A(f"v_lshrrev_b32 v{u}, 5, v{V_LANE}")
        A(f"v_lshl_add_u32 v{u}, v{u}, 4, v{r}")
        A(f"v_mul_u32_u24 v{u}, 224, v{u}")
        A(f"v_lshl_add_u32 v{u}, v{c}, 3, v{u}")
        A(f"s_lshl_b32 s{T}, s{S_odd}, 5")
        A(f"s_mul_i32 s{T + 1}, s{S_odd}, 192")
        A(f"s_sub_u32 s{T + 1}, 192, s{T + 1}")
        A(f"v_add_u32 v{V_RB}, s{T}, v{u}")
        A(f"v_add_u32 v{V_RB + 1}, s{T + 1}, v{u}")
        A(f"v_lshrrev_b32 v{u}, 1, v{i}")
        A(f"v_xor_b32 v{u}, v{u}, v{q}")
        A(f"v_lshlrev_b32 v{u}, 4, v{u}")
        A(f"v_lshl_add_u32 v{V_RB + 2}, v{i}, 7, v{u}")
        A(f"v_xor_b32 v{V_RB + 3}, 64, v{V_RB + 2}")
        for j in range(4):
            A(f"v_mov_b32 v{V_RD + j}, v{V_RB + j}")
        A(f"s_mov_b32 s{S_RST}, 0")
        A(f"s_lshl_b32 s{T}, s{S_LG}, 7")
        A(f"s_and_b32 s{T + 1}, s2, 7")
        A(f"s_lshl_b32 s{T + 1}, s{T + 1}, 2")
        A(f"s_add_u32 s{T}, s{T}, s{T + 1}")
        A(f"s_add_u32 s{T}, s{T}, {FL_X}")
        A(f"s_cmp_lg_u32 s{S_W}, 0")
        A(waitcnt(vm.need("lnst")))
        A("s_barrier")
        A("s_cbranch_scc1 LF_noflag")
        A("s_mov_b64 exec, 1")
        A(f"buffer_store_dword v{w4}, v{K}, s[{SRD_FL}:{SRD_FL + 3}], s{T} offen sc1")
        A("s_mov_b64 exec, -1")
        A("LF_noflag:")
        A(self.st.stamp("xflag"))
        d0_next(9, "fl")
        for j in range(1, PFD_):
            if self.opt.get("pf_w1", 1):
                A(self.pf1)
            A(self.pf1_adv)
        for x in self.dma1_adv():
            A(x)
        if self.opt.get("walk", 1):
            A("s_mov_b64 exec, 0")
            for w in range(3):
                A(f"s_cmp_eq_u32 s{S_W}, {w}")
                A(f"s_cbranch_scc1 LF_pad{w}")
            A("s_branch LF_pad3")
        A("LF_walked:")
        A("s_mov_b64 exec, -1")
        A(self.st.stamp("walk"))
        A(f"s_mov_b32 s{T + 6}, 0")
        A("LF_xpoll:")
        if self.opt.get("xsleep"):
            A(f"s_sleep {self.opt['xsleep']}")
        A(x_poll)
        A(f"s_add_u32 s{T + 6}, s{T + 6}, 1")
        A("s_waitcnt vmcnt(0)"); vm.drain()
        A(f"v_cmp_ne_u32 vcc, s{S_TAG}, v0")
        A(f"s_cmp_gt_u32 s{T + 6}, 0x40000")
        A("s_cbranch_scc1 LF_xok")
        A("s_cbranch_vccnz LF_xpoll")
        A("LF_xok:")
        A(self.st.stamp("xpoll"))
        for kk in range(2):
            for b in range(4):
                A(self.x_load(0, kk, b)); vm.issue(("X", 0, kk))
        A("s_barrier")
        for f in range(self.PD):
            for ins in self.rd1(f):
                A(ins); self.lg.issue(("W", 0, f))
        A(self.x_adv())
        A(f"s_mov_b32 s{S_IT}, 0")
        A("s_branch LF_main")
        A(".p2align 12")
        A("LF_main:")

    def setup_items(self):
        T = S_T
        it = []
        if self.opt.get("pf_w1", 1):
            it += [It(self.pfb(c), "vm", "pf") for c in (1, 2, 3)]
        it += [f"s_lshr_b32 s{S_PFC}, s{S_PFC}, 2", f"s_lshl_b32 s{S_PFD}, s2, 2", f"s_add_u32 s{S_PFD}, s{S_PFD}, s{S_W}", f"s_lshl_b32 s{S_PFD}, s{S_PFD}, 10"]
        it += [f"v_and_b32 v{V_T}, 15, v{V_LANE}", f"v_lshlrev_b32 v{V_T}, 1, v{V_T}", f"s_lshl_b32 s{T}, s{S_g}, 6"]
        for j, p in enumerate([SRD_P, SRD_P + 2, SRD_AG]):
            it += srd_items(SRD_T, p, 0, 2048)
            for sb in range(2):
                it.append(It(f"buffer_load_ushort v{V_RAW + 2 * j + sb}, v{V_T}, s[{SRD_T}:{SRD_T + 3}], s{T} offen offset:{32 * sb}", "vm", "par"))
        it += [[f"s_mov_b32 s{S_KP}, s{SRD_AG + 2}", f"s_mov_b32 s{S_KP + 1}, s{SRD_AG + 3}"]]
        it += srd_items(SRD_D, SRD_O, 0, 3584 * 2048)
        it += srd_items(SRD_O, SRD_O + 2, 0, 2048 * 4096)
        it += [f"s_mov_b32 s{SRD_C + 2}, {1024 * 2048}", f"s_mov_b32 s{SRD_C + 3}, 0x20000"]
        it += srd_items(SRD_A2, S_WSP, WS_A2, A2_SIZE)
        it += srd_items(SRD_P, S_WSP, WS_PART, PART_SIZE)
        it += [f"s_lshl_b32 s{T}, s{S_g}, 13", f"s_add_u32 s{T}, s{T}, {hx(WS_AGG)}",
               [f"s_add_u32 s{SRD_AG}, s{S_WSP}, s{T}", f"s_addc_u32 s{SRD_AG + 1}, s{S_WSP + 1}, 0"],
               f"s_mov_b32 s{SRD_AG + 2}, 8192", f"s_mov_b32 s{SRD_AG + 3}, 0x20000"]
        c0 = -2.0 * LOG2E * math.sqrt(2.0 / math.pi)
        it += [f"s_mov_b32 s{S_GC}, {hx(f2u(c0 * 0.044715))}", f"s_mov_b32 s{S_GC + 1}, {hx(f2u(c0))}"]
        it += [f"s_lshl_b32 s{S_tile}, s{S_m}, 3", f"s_add_u32 s{S_tile}, s{S_tile}, s{S_nt}"]
        it += [f"s_mul_i32 s{T}, s{S_G}, {A2_G}",
               f"s_lshl_b32 s{T + 1}, s{S_sp}, 16",
               f"s_add_u32 s{S_ASSM}, s{T}, s{T + 1}",
               f"s_add_u32 s{S_ASSM}, s{S_ASSM}, {112 * 4096}",
               f"s_mul_i32 s{T + 1}, s{S_sp}, {28 * 4096}",
               f"s_add_u32 s{S_AOFF}, s{T}, s{T + 1}",
               f"s_mul_i32 s{S_DOWN}, s{S_nt}, 3",
               f"s_lshl_b32 s{T + 1}, s{S_DOWN}, 12",
               f"s_add_u32 s{S_AOWN}, s{S_AOFF}, s{T + 1}",
               f"s_add_u32 s{S_AEND}, s{S_AOWN}, {3 * 4096}",
               [f"s_cmp_eq_u32 s{S_AOFF}, s{S_AOWN}", f"s_cselect_b32 s{S_AOFF}, s{S_AEND}, s{S_AOFF}"],
               f"s_mul_i32 s{T + 1}, s{S_sp}, {896 * 2048}",
               f"s_lshl_b32 s{T + 2}, s{S_nt}, 8",
               f"s_add_u32 s{S_DBASE}, s{T + 1}, s{T + 2}",
               f"s_sub_u32 s{S_DP}, s{S_W}, 3",
               f"s_add_u32 s{S_DOFF}, s{S_DOWN}, s{S_W}",
               [f"s_cmp_eq_u32 s{S_W}, 3", f"s_cselect_b32 s{T}, s{S_nt}, 0"],
               [f"s_cmp_lg_u32 s{T}, 0", f"s_cselect_b32 s{S_DOFF}, 0, s{S_DOFF}"]] + self.dma2_row2()
        it += [f"s_lshl_b32 s{S_DSSM}, s{S_nt}, 18",
               f"s_lshl_b32 s{T}, s{S_sp}, 9",
               f"s_add_u32 s{S_DSSM}, s{S_DSSM}, s{T}"]
        return it

    def param_items(self):
        PL = V_RAW
        lre, lim, dt = PL, PL + 2, PL + 4
        zr, zi, nq, tm = V_T, V_T + 2, V_T + 4, V_T + 5
        o = [It(f"v_lshlrev_b32 v{PL}, 16, v{PL}", needs=[("vm", "par")])]
        o += [f"v_lshlrev_b32 v{PL + j}, 16, v{PL + j}" for j in range(1, 6)]
        o += [f"v_lshrrev_b32 v{nq}, 4, v{V_LANE}", f"v_cvt_f32_u32 v{nq}, v{nq}"]
        o += [f"v_mul_f32 v{dt + sb}, {hx(f2u(LOG2E))}, v{dt + sb}" for sb in range(2)]
        o += [f"v_exp_f32 v{dt + sb}, v{dt + sb}" for sb in range(2)]
        o += [f"v_cvt_pk_bf16_f32 v{tm}, v{dt}, v{dt + 1}", f"v_lshlrev_b32 v{dt}, 16, v{tm}", f"v_and_b32 v{dt + 1}, 0xffff0000, v{tm}"]
        for sb in range(2):
            o += [f"v_mul_f32 v{zr + sb}, v{dt + sb}, v{lre + sb}", f"v_mul_f32 v{zi + sb}, v{dt + sb}, v{lim + sb}"]
        for sb in range(2):
            o += [f"v_mul_f32 v{zr + sb}, {hx(f2u(LOG2E))}, v{zr + sb}", f"v_mul_f32 v{zi + sb}, {hx(f2u(1.0 / (2 * math.pi)))}, v{zi + sb}"]
        for k, (n, byq) in {P_L1: (1, False), P_L16: (16, False), P_L64: (64, False), P_L16Q: (16, True), P_L512Q: (512, True)}.items():
            if byq:
                o.append(f"v_mul_f32 v{tm + 6}, {hx(f2u(float(n)))}, v{nq}")
                mul = f"v{tm + 6}"
            else:
                mul = hx(f2u(float(n)))
            for sb in range(2):
                o += [f"v_mul_f32 v{tm + sb}, {mul}, v{zr + sb}", f"v_mul_f32 v{tm + 2 + sb}, {mul}, v{zi + sb}"]
            o += [f"v_rndne_f32 v{tm + 4 + sb}, v{tm + 2 + sb}" for sb in range(2)]
            o += [f"v_sub_f32 v{tm + 2 + sb}, v{tm + 2 + sb}, v{tm + 4 + sb}" for sb in range(2)]
            o += [f"v_exp_f32 v{tm + sb}, v{tm + sb}" for sb in range(2)]
            for sb in range(2):
                o += [f"v_cos_f32 v{par(sb, k)}, v{tm + 2 + sb}", f"v_sin_f32 v{par(sb, k) + 1}, v{tm + 2 + sb}"]
            for sb in range(2):
                p = par(sb, k)
                o += [f"v_mul_f32 v{p}, v{p}, v{tm + sb}", f"v_mul_f32 v{p + 1}, v{p + 1}, v{tm + sb}"]
        for sb in range(2):
            l1, cf = par(sb, P_L1), par(sb, P_CF)
            o += [f"v_mul_f32 v{tm}, v{lre + sb}, v{lre + sb}",
                  f"v_fma_f32 v{tm}, v{lim + sb}, v{lim + sb}, v{tm}",
                  f"v_rcp_f32 v{tm}, v{tm}",
                  f"v_add_f32 v{tm + 1}, -1.0, v{l1}",
                  f"v_mul_f32 v{cf}, v{tm + 1}, v{lre + sb}",
                  f"v_fma_f32 v{cf}, v{l1 + 1}, v{lim + sb}, v{cf}",
                  f"v_mul_f32 v{cf + 1}, v{l1 + 1}, v{lre + sb}",
                  f"v_fma_f32 v{cf + 1}, -v{tm + 1}, v{lim + sb}, v{cf + 1}",
                  f"v_add_f32 v{tm}, v{tm}, v{tm}",
                  f"v_mul_f32 v{cf}, v{cf}, v{tm}",
                  f"v_mul_f32 v{cf + 1}, v{cf + 1}, v{tm}"]
        return o

    def fo2_items(self):
        T = S_T
        t0, t1, t2, t3 = V_RAW + 6, V_RAW + 7, V_SO + 1, 0
        o = [f"s_lshl_b32 s{T}, s{S_sp}, 2", f"s_lshl_b32 s{S_DB}, s{S_W}, 13",
             f"v_lshrrev_b32 v{t0}, 4, v{V_LANE}", f"v_and_b32 v{t1}, 15, v{V_LANE}"]
        for e in range(2):
            o += [f"v_add_u32 v{t2}, {4 * e}, v{t0}",
                  f"v_lshlrev_b32 v{t3}, 1, v{t2}",
                  f"v_xor_b32 v{t3}, v{t3}, v{t1}",
                  f"v_add_u32 v{t3}, s{T}, v{t3}",
                  f"v_and_b32 v{t3}, 15, v{t3}",
                  f"v_lshlrev_b32 v{t3}, 4, v{t3}",
                  f"v_lshl_add_u32 v{V_FO2 + e}, v{t2}, 11, v{t3}"]
        for e in range(7, 0, -1):
            d = (e // 2) * 8 * 2048 - (e & 3) * 1024
            o.append(f"v_add_u32 v{V_FO2 + e}, {hx(d)}, v{V_FO2 + (e & 1)}")
        return o

    def res_loads(self, S, n):
        T = S_T
        t0, t1 = V_RAW + 6, V_RAW + 7
        o = srd_items(SRD_T, S_XP, 0, 2048 * 2048)
        o += [f"v_lshrrev_b32 v{t0}, 2, v{V_LANE}", f"v_and_b32 v{t1}, 3, v{V_LANE}", f"v_lshlrev_b32 v{t1}, 4, v{t1}", f"v_lshl_add_u32 v{t0}, v{t0}, 13, v{t1}",
              f"s_lshl_b32 s{S_U0}, s{S_nt}, 2", f"s_add_u32 s{S_U0}, s{S_U0}, s{S_sp}",
              f"s_lshl_b32 s{T + 1}, s{S_U0}, 6", f"s_lshl_b32 s{T}, s{S_G}, 17", f"s_add_u32 s{T}, s{T}, s{T + 1}",
              f"s_lshl_b32 s{S_U1}, s{S_W}, 12", f"s_add_u32 s{S_U1}, s{S_U1}, {L_X}"]
        n = S.seq(o, n)
        for b in range(4):
            ldi = f"buffer_load_dwordx4 v{t0}, s[{SRD_T}:{SRD_T + 3}], s{T} offen offset:{b * 1024} lds"
            n = self.put_dma(S, f"s_mov_b32 m0, s{S_U1}" if b == 0 else None, ldi, "res", n + 2)
            n = S.place(f"s_add_u32 s{T}, s{T}, 1024", n + 1)
        o = srd_items(SRD_T, S_KP, 0, 2048) + [f"v_lshrrev_b32 v{t1}, 4, v{V_LANE}", f"v_lshlrev_b32 v{t1}, 3, v{t1}"]
        o += [It(f"buffer_load_dwordx2 a[{A_RES + 8 + 2 * jl}:{A_RES + 9 + 2 * jl}], v{t1}, s[{SRD_T}:{SRD_T + 3}], s{T + 1} offen offset:{32 * jl}", "vm", "res") for jl in range(2)]
        o += [f"v_and_b32 v{t0}, 15, v{V_LANE}", f"v_lshlrev_b32 v{t0}, 5, v{t0}", f"s_lshl_b32 s{T}, s{S_G}, 9"]
        o += [It(f"buffer_load_dwordx4 a[{A_RES + 4 * j}:{A_RES + 4 * j + 3}], v{t0}, s[{SRD_FL}:{SRD_FL + 3}], s{T} offen offset:{16 * j} sc1", "vm", "res") for j in range(2)]
        o += [f"s_lshl_b32 s{S_FA}, s{S_G}, 2", f"s_add_u32 s{S_FA}, s{S_FA}, s{S_sp}", f"s_lshl_b32 s{S_FA}, s{S_FA}, 7", f"s_add_u32 s{S_FA}, s{S_FA}, {FL_A}",
              f"s_lshl_b32 s{T}, s{S_tile}, 2", f"s_add_u32 s{T}, s{T}, s{S_sp}", f"s_lshl_b32 s{T}, s{T}, 2", f"s_add_u32 s{T}, s{T}, s{S_W}",
              f"s_lshl_b32 s{T}, s{T}, 7", f"s_add_u32 s{T}, s{T}, {FL_P}",
              It(f"buffer_load_dword v0, v{t1}, s[{SRD_FL}:{SRD_FL + 3}], s{S_FA} offen sc1", "vm", "pf"),
              It(f"buffer_load_dword v0, v{t1}, s[{SRD_FL}:{SRD_FL + 3}], s{T} offen sc1", "vm", "pf")]
        n = S.seq(o, n + 1)
        o = [f"v_and_b32 v{t0}, 3, v{V_LANE}", f"v_and_b32 v{t1}, 4, v{V_LANE}", f"v_lshlrev_b32 v{t0}, 10, v{t0}", f"v_lshl_add_u32 v{V_T}, v{t1}, 2, v{t0}",
             f"s_lshl_b32 s{T + 5}, s{S_nt}, 5", f"s_add_u32 s{T + 5}, s{T + 5}, s{S_sp}", f"s_lshl_b32 s{T + 5}, s{T + 5}, 2", f"s_add_u32 s{T + 5}, s{T + 5}, {FL_X}"]
        ld, chk = self.poll_items("LF_clr", f"buffer_load_dword v{V_T + 1}, v{V_T}, s[{SRD_FL}:{SRD_FL + 3}], s{T + 5} offen sc1", V_T + 1)
        n = S.seq(o + [ld], n + 1)
        S.seq(chk, 144 * 8 - 12)
        return n

    def prefetch_items(self):
        T = S_T
        t0, t1 = V_RAW + 6, V_RAW + 7
        o = []
        if self.opt.get("pf_code", 1):
            o += [[f"s_getpc_b64 s[{T + 3}:{T + 4}]", "LF_pc:"],
                  f"s_lshr_b32 s{T}, s2, 3", f"s_lshl_b32 s{T}, s{T}, 2", f"s_add_u32 s{T}, s{T}, s{S_W}",
                  f"s_lshl_b32 s{T}, s{T}, 9",
                  f"v_lshrrev_b32 v{t0}, 4, v{V_LANE}", f"v_lshl_add_u32 v{t0}, v{t0}, 7, s{T}",
                  f"v_min_u32 v{t0}, LF_end-LF_pc, v{t0}",
                  f"v_mov_b32 v{t1}, s{T + 4}",
                  f"v_add_co_u32 v{t0}, vcc, s{T + 3}, v{t0}",
                  "s_nop 0",
                  f"v_addc_co_u32 v{t1}, vcc, 0, v{t1}, vcc",
                  It(f"global_load_dword v0, v[{t0}:{t1}], off", "vm", "pf")]
        return o

    def gemm1(self):
        A, PD = self.A, self.PD
        S = Stream(self.vm, self.lg)
        NV = 8
        for s in range(NV):
            for f in range(36):
                needs = [("lg", ("W", s, f))]
                if f in (0, 18):
                    needs.append(("vm", ("X", s, f // 18)))
                bar = s + 1 < NV and f + PD == 36
                if bar:
                    needs.append(("vm", ("D", s + 1)))
                for b in range(4):
                    S.mfma(self.mfma1(s, f, b), needs if b == 0 else (), bar and b == 0)
        for s in range(NV):
            base = 144 * s
            do_x, do_dma, do_next = s + 1 < NV, s + 2 < NV, s + 1 < NV
            for f in range(36):
                nxt = f + PD
                if nxt < 36 or do_next:
                    tag = ("W", s, nxt) if nxt < 36 else ("W", s + 1, nxt - 36)
                    for i, ins in enumerate(self.rd1(nxt % 36)):
                        S.force(It(ins, "lg", tag), base + 4 * f + i)
            i, vs = 0, 8
            if s == 0 and not self.opt.get("d1_pro"):
                vs = 5
                for k in range(9):
                    m, ld = self.dma1(k)
                    n = self.put_dma(S, m, ld, ("D", 1), base + 4 * i + 2); i += 1
                S.seq(self.dma1_adv(), n + 1)
            if do_x:
                for kk in range(2):
                    for b in range(4):
                        n = S.place(It(self.x_load((s + 1) & 1, kk, b), "vm", ("X", s + 1, kk)), base + vs * i + 2); i += 1
                S.seq(self.x_adv(), n + 1)
            if do_dma:
                for k in range(9):
                    m, ld = self.dma1(k)
                    n = self.put_dma(S, m, ld, ("D", s + 2), base + vs * i + 2); i += 1
                if s <= 4 and self.opt.get("pf_w1", 1):
                    S.seq([It(self.pf1, "vm", "pf"), self.pf1_adv], n + 2)
                if s <= 4 and self.opt.get("pf_w2", 1):
                    if s & 1 or s == 0:
                        x = [It(f"buffer_load_dword v0, v{V_L16}, s[{SRD_D}:{SRD_D + 3}], s{S_PFD} offen", "vm", "pf"), f"s_add_u32 s{S_PFD}, s{S_PFD}, {1 << 20}"]
                    else:
                        x = [It(f"buffer_load_dword v0, v{V_L16}, s[{SRD_C}:{SRD_C + 3}], s{S_PFC} offen", "vm", "pf"), f"s_add_u32 s{S_PFC}, s{S_PFC}, {1 << 19}"]
                    n2 = S.seq(x, n + 5)
                    assert n2 < base + 143
                n = S.seq(self.dma1_adv(), n + 1)
                assert n < base + 143
            if do_next:
                n = S.seq([f"s_add_u32 s{S_RST}, s{S_RST}, {ST1}",
                           [f"s_cmp_eq_u32 s{S_RST}, {ST1 * NST}", f"s_cselect_b32 s{S_RST}, 0, s{S_RST}"],
                           f"v_add_u32 v{V_RD + 2}, s{S_RST}, v{V_RB + 2}",
                           f"v_add_u32 v{V_RD + 3}, s{S_RST}, v{V_RB + 3}"], base + 4 * 24)
                assert n < base + 4 * (36 - PD)
                n = S.seq([f"v_add_u32 v{V_RD}, s{S_RST}, v{V_RB}",
                           f"v_add_u32 v{V_RD + 1}, s{S_RST}, v{V_RB + 1}"], base + 4 * (36 - PD))
                assert n < base + 144
            if s in (2, 4):
                S.place(f"s_add_u32 s{S_IT}, s{S_IT}, 1", base + 4)
        n = S.seq(self.setup_items(), 0)
        assert n < 120, n
        n = S.seq(self.param_items(), 144 * 5)
        n = S.seq(self.fo2_items(), max(n + 1, 144 * 6))
        n = S.seq(self.prefetch_items(), max(n + 1, 144 * 6 + 56))
        n = self.res_loads(S, n + 1)
        n = max(n + 1, 144 * 7)
        for t in range(2):
            for e in range(8):
                m, ld = self.dma2(t, e)
                n = self.put_dma(S, m, ld, ("D2", t), n + 6)
            n = S.seq(self.dma2_adv(t), n + 1)
        pre, segs = S.emit()
        flat = lambda a, b: [x for s in segs[a:b] for x in s]
        body, body2 = flat(144, 432), flat(432, 720)
        if body != body2:
            assert len(body) == len(body2)
            for x, y in zip(body, body2):
                if x != y:
                    import re
                    assert x.startswith("s_waitcnt") and y.startswith("s_waitcnt"), (x, y)
                    cx, cy = dict(re.findall(r"(\w+)\((\d+)\)", x)), dict(re.findall(r"(\w+)\((\d+)\)", y))
                    assert all(k in cy and int(cy[k]) <= int(v) for k, v in cx.items()), (x, y)
        A(pre)
        A(self.st.stamp("tile0"))
        A(flat(0, 144))
        A(self.st.stamp("step0"))
        A(".p2align 5")
        A("LF_loop:")
        A(body2)
        A(f"s_cmp_lt_u32 s{S_IT}, 6")
        A("s_cbranch_scc1 LF_loop")
        A(self.st.stamp("loop12"))
        A(flat(720, 864))
        A(self.st.stamp("step13"))
        A(flat(864, 1008))
        A(self.st.stamp("step14"))
        A(flat(1008, 144 * NV))
        bad = hazard.check(body2 + body2)
        assert not bad, bad
        self.over1 = S.over

    def transition(self):
        A = self.A
        T = S_T
        vm = self.vm
        A(self.st.stamp("loopend"))
        for sb in range(2):
            cf = par(sb, P_CF)
            for b in range(4):
                l1, l2 = [], []
                for r in range(4):
                    d = uu(sb, 4 * r + b)
                    a_re, a_im, s = accS(0, sb, b).i + r, accS(1, sb, b).i + r, r & 1
                    l1.append(f"v_pk_mul_f32 v[{d}:{d + 1}], v[{cf}:{cf + 1}], v[{a_re - s}:{a_re - s + 1}] op_sel:[0,{s}] op_sel_hi:[1,{s}]")
                    l2.append(f"v_pk_fma_f32 v[{d}:{d + 1}], v[{cf}:{cf + 1}], v[{a_im - s}:{a_im - s + 1}], v[{d}:{d + 1}] op_sel:[1,{s},0] op_sel_hi:[0,{s},1] neg_lo:[1,0,0]")
                A(l1); A(l2)
        Q0, Q1 = 120, 124
        cur = [uu(0, 0), uu(1, 0)]
        for tau in range(1, 16):
            dst = Q0 if tau & 1 else Q1
            A(interleave(*[cmul_add(dst + 2 * sb, par(sb, P_L1), cur[sb], uu(sb, tau)) for sb in range(2)]))
            cur = [dst, dst + 2]
        g0, g1, g2, g3, PQ = Q0, Q1, 12, 16, 52
        A([f"v_mov_b64 v[{g2 + j}:{g2 + j + 1}], v[{g0 + j}:{g0 + j + 1}]" for j in (0, 2)])
        A(f"s_sub_u32 s{T}, 31, s{S_G}")
        A(f"s_lshl_b32 s{T}, s{T}, 8")
        A([f"v_permlane32_swap_b32 v{g0 + j}, v{g2 + j}" for j in range(4)])
        A([f"v_mov_b64 v[{g1 + j}:{g1 + j + 1}], v[{g0 + j}:{g0 + j + 1}]" for j in (0, 2)])
        A([f"v_mov_b64 v[{g3 + j}:{g3 + j + 1}], v[{g2 + j}:{g2 + j + 1}]" for j in (0, 2)])
        A([f"v_permlane16_swap_b32 v{g0 + j}, v{g1 + j}" for j in range(4)])
        A([f"v_permlane16_swap_b32 v{g2 + j}, v{g3 + j}" for j in range(4)])
        for prev, nx in [(g0, g1), (g1, g2), (g2, g3)]:
            A(interleave(*[cmul_add(nx + 2 * sb, par(sb, P_L16), prev + 2 * sb, nx + 2 * sb) for sb in range(2)]))
        A("s_mov_b64 exec, 0xffff")
        A(f"buffer_store_dwordx4 v[{g3}:{g3 + 3}], v{V_L16}, s[{SRD_AG}:{SRD_AG + 3}], s{T} offen sc1"); vm.issue("agg")
        A(f"v_mov_b64 v[{PQ}:{PQ + 1}], 0")
        A(f"v_mov_b64 v[{PQ + 2}:{PQ + 3}], 0")
        for src in (g0, g1, g2):
            A("s_lshl_b64 exec, exec, 16")
            A(f"v_mov_b64 v[{PQ}:{PQ + 1}], v[{src}:{src + 1}]")
            A(f"v_mov_b64 v[{PQ + 2}:{PQ + 3}], v[{src + 2}:{src + 3}]")
        A("s_mov_b64 exec, -1")
        A(self.st.stamp("publish"))
        A(f"s_mov_b32 s{T}, s{S_AOWN}")
        A(f"s_lshr_b32 s{T + 2}, s{S_nt}, 1")
        A(f"s_sub_u32 s{T + 2}, s{T + 2}, s{S_DOWN}")
        A(f"s_add_u32 s{T + 2}, s{T + 2}, 24")
        A(f"s_lshl_b32 s{T + 2}, s{T + 2}, 3")
        A(f"s_add_u32 s{T + 2}, s{T + 2}, s{S_odd}")
        A(f"s_lshl_b32 s{T + 2}, s{T + 2}, 9")
        A(f"s_add_u32 s{T + 2}, s{T + 2}, s{T}")
        A(f"v_lshlrev_b32 v{V_L8}, 3, v{V_LANE}")
        Z = 120
        GT, UT = 224, 232

        def gelu(gq, uq, out):
            g, u = [], []
            for h in range(2):
                if gq[h].t == "a":
                    A([f"v_accvgpr_read_b32 v{GT + 4 * h + r}, a{gq[h].i + r}" for r in range(4)])
                    g += [GT + 4 * h, GT + 4 * h + 2]; u += [UT + 4 * h, UT + 4 * h + 2]
                else:
                    g += [gq[h].i, gq[h].i + 2]; u += [uq[h].i, uq[h].i + 2]
            p = lambda x: f"v[{x}:{x + 1}]"
            sc = f"s[{S_GC}:{S_GC + 1}]"
            A([f"v_pk_mul_f32 {p(Z + 2 * j)}, {p(g[j])}, {p(g[j])}" for j in range(4)])
            A([f"v_pk_fma_f32 {p(Z + 2 * j)}, {p(Z + 2 * j)}, {sc}, {sc} op_sel:[0,0,1] op_sel_hi:[1,0,1]" for j in range(4)])
            A([f"v_pk_mul_f32 {p(Z + 2 * j)}, {p(Z + 2 * j)}, {p(g[j])}" for j in range(4)])
            A([f"v_exp_f32 v{Z + j}, v{Z + j}" for j in range(8)])
            for h in range(2):
                if uq[h].t == "a":
                    A([f"v_accvgpr_read_b32 v{UT + 4 * h + r}, a{uq[h].i + r}" for r in range(4)])
            A([f"v_pk_add_f32 {p(Z + 2 * j)}, {p(Z + 2 * j)}, 1.0 op_sel_hi:[1,0]" for j in range(4)])
            A([f"v_rcp_f32 v{Z + j}, v{Z + j}" for j in range(8)])
            A([f"v_pk_mul_f32 {p(u[j])}, {p(u[j])}, {p(g[j])}" for j in range(4)])
            A([f"v_pk_mul_f32 {p(u[j])}, {p(u[j])}, {p(Z + 2 * j)}" for j in range(4)])
            A([f"v_cvt_pk_bf16_f32 v{out + j}, v{u[j]}, v{u[j] + 1}" for j in range(4)])

        A(f"s_lshl_b32 s{T + 3}, s{S_nt}, 2")
        assert V_T2 + 2 == par(1, P_CF)
        A(f"v_mov_b32 v{V_T2 + 2}, s{T + 3}")
        A(f"v_mov_b32 v{V_T2 + 3}, s{S_TAG}")

        def emit_fa(where):
            if where != self.opt.get("fa_at", "horner"):
                return
            A(self.st.stamp("prefa"))
            A(waitcnt(vm.need("act")))
            A("s_mov_b64 exec, 1")
            A(f"buffer_store_dword v{V_T2 + 3}, v{V_T2 + 2}, s[{SRD_FL}:{SRD_FL + 3}], s{S_FA} offen sc1"); vm.issue("fa")
            A("s_mov_b64 exec, -1")
            A(self.st.stamp("faflag"))

        LB = 192
        va, vx = V_T, V_T + 1
        lb_loads = [f"buffer_load_dwordx4 v[{LB + 4 * e}:{LB + 4 * e + 3}], v{va}, s[{SRD_AG}:{SRD_AG + 3}], 0 offen offset:{e * 256} sc1" for e in range(8)]
        for pp in range(3):
            for b in range(4):
                o = own(pp, b)
                gelu([accF(0, 2 * pp + h, b) for h in range(2)], [accF(1, 2 * pp + h, b) for h in range(2)], o)
                A(f"buffer_store_dwordx4 v[{o}:{o + 3}], v{V_L16}, s[{SRD_A2}:{SRD_A2 + 3}], s{T} offen offset:{b * 1024} sc1"); vm.issue("act")
            if pp < 2:
                A(f"s_add_u32 s{T}, s{T}, 4096")
            if pp == 0:
                A(waitcnt(vm.need(("D2", 0), ("D2", 1), "res")))
                A("s_barrier")
                for e in range(8):
                    m, ld = self.dma2(2, e)
                    if m:
                        A(m); A("s_nop 0")
                    A(ld); vm.issue(("D2", 2))
                for x in self.dma2_adv(2):
                    A(x)
            if pp == self.opt.get("lb_after", 1):
                A(f"v_lshrrev_b32 v{va}, 4, v{V_LANE}")
                A(f"v_and_b32 v{vx}, 15, v{V_LANE}")
                A(f"v_lshlrev_b32 v{va}, 11, v{va}")
                A(f"v_lshl_add_u32 v{va}, v{vx}, 4, v{va}")
                A(f"s_sub_u32 s{T + 3}, 32, s{S_G}")
                A(f"s_lshl_b32 s{T + 3}, s{T + 3}, 8")
                A(f"v_add_u32 v{va}, s{T + 3}, v{va}")
                for x in lb_loads:
                    A(x); vm.issue("lb")
        for b2 in range(2):
            o = 240 + 4 * b2
            gelu([accF(0, 6, 2 * b2 + h) for h in range(2)], [accF(1, 6, 2 * b2 + h) for h in range(2)], o)
            for h in range(2):
                A(f"buffer_store_dwordx2 v[{o + 2 * h}:{o + 2 * h + 1}], v{V_L8}, s[{SRD_A2}:{SRD_A2 + 3}], s{T + 2} offen offset:{(2 * b2 + h) * 1024} sc1"); vm.issue("hst")
        A(self.st.stamp("gelu"))
        emit_fa("gelu")
        A(f"s_mov_b32 s{T + 4}, 0")
        A(waitcnt(vm.need("lb")))
        A("LF_lbchk:")
        A(f"v_max_u32 v{vx}, v{LB}, v{LB + 1}")
        for j in range(2, 32, 2):
            A(f"v_max3_u32 v{vx}, v{vx}, v{LB + j}, v{LB + j + 1}")
        A(f"v_cmp_eq_u32 vcc, -1, v{vx}")
        A(f"s_add_u32 s{T + 4}, s{T + 4}, 1")
        A("s_cbranch_vccnz LF_lbspin")
        A("LF_lbok:")
        A(f"s_lshl_b32 s{T + 4}, s{S_g}, 5")
        A(f"s_add_u32 s{T + 4}, s{T + 4}, s{S_G}")
        A(f"s_cmp_eq_u32 s{T + 4}, 31")
        A("s_cbranch_scc1 LF_epoch")
        A("LF_epochok:")
        self.lb_loads = lb_loads
        for e in range(6, -1, -1):
            A(interleave(*[cmul_add(LB + 4 * e + 2 * sb, par(sb, P_L64), LB + 4 * (e + 1) + 2 * sb, LB + 4 * e + 2 * sb) for sb in range(2)]))
        Sx, St = LB + 4, LB + 8
        A(interleave(*[cmul(Sx + 2 * sb, par(sb, P_L512Q), LB + 2 * sb) for sb in range(2)]))
        for swp in ["v_permlane32_swap_b32", "v_permlane16_swap_b32"]:
            A([f"v_mov_b64 v[{St + j}:{St + j + 1}], v[{Sx + j}:{Sx + j + 1}]" for j in (0, 2)])
            A("s_nop 1")
            A([f"{swp} v{Sx + j}, v{St + j}" for j in range(4)])
            A([f"v_pk_add_f32 v[{Sx + j}:{Sx + j + 1}], v[{Sx + j}:{Sx + j + 1}], v[{St + j}:{St + j + 1}]" for j in (0, 2)])
        A(interleave(*[cmul_add(PQ + 2 * sb, par(sb, P_L16Q), Sx + 2 * sb, PQ + 2 * sb) for sb in range(2)]))
        emit_fa("horner")
        cur = [PQ, PQ + 2]
        for tau in range(16):
            A(interleave(*[cmul_add(uu(sb, tau), par(sb, P_L1), cur[sb], uu(sb, tau)) for sb in range(2)]))
            cur = [uu(0, tau), uu(1, tau)]
        vw, vrd, q, i = V_T + 2, V_T + 3, V_T2, V_T2 + 1
        emit_fa("p2")
        A(f"v_and_b32 v{i}, 15, v{V_LANE}")
        A(f"v_lshrrev_b32 v{q}, 4, v{V_LANE}")
        A(f"s_add_u32 s{T + 3}, s{S_DB}, {L_H}")
        t0, t1 = V_T, V_T + 1
        A(f"v_lshrrev_b32 v{t0}, 2, v{i}")
        A(f"v_xor_b32 v{t0}, v{t0}, v{q}")
        A(f"v_lshl_add_u32 v{vw}, v{i}, 5, s{T + 3}")
        A(f"v_lshl_add_u32 v{vw}, v{t0}, 3, v{vw}")
        k = 0
        for ri in range(2):
            ng = "-" if ri else ""
            cv, wr = [], []
            for b in range(4):
                for sb in range(2):
                    d = V_FR + 2 * k; k += 1
                    cv.append(f"v_cvt_pk_bf16_f32 v{d}, {ng}v{uu(sb, b) + ri}, {ng}v{uu(sb, 4 + b) + ri}")
                    cv.append(f"v_cvt_pk_bf16_f32 v{d + 1}, {ng}v{uu(sb, 8 + b) + ri}, {ng}v{uu(sb, 12 + b) + ri}")
                    wr.append(f"ds_write_b64 v{vw}, v[{d}:{d + 1}] offset:{(ri * 4 + b) * 1024 + sb * 512}")
            A(cv); A(wr)
            for x in wr:
                self.lg.issue("hwr")
        A(f"v_lshlrev_b32 v{t0}, 1, v{q}")
        A(f"v_and_b32 v{t0}, 2, v{t0}")
        A(f"v_xor_b32 v{t0}, v{t0}, v{i}")
        A(f"v_lshl_add_u32 v{vrd}, v{t0}, 3, s{T + 3}")
        A(f"v_lshl_add_u32 v{vrd}, v{q}, 8, v{vrd}")
        A(f"v_xor_b32 v{vw}, 8, v{vrd}")
        for ri in range(2):
            for b in range(4):
                for h in range(2):
                    d = V_FR + (ri * 4 + b) * 4 + 2 * h
                    A(f"ds_read_b64_tr_b16 v[{d}:{d + 1}], v{vw if h else vrd} offset:{(ri * 4 + b) * 1024 + h * 128}")
                    self.lg.issue(("hrd", ri, b))
        A(f"v_lshrrev_b32 v{t0}, 2, v{V_LANE}")
        A(f"v_and_b32 v{t1}, 7, v{t0}")
        A(f"v_lshlrev_b32 v{t0}, 8, v{t0}")
        A(f"v_lshl_add_u32 v{t0}, v{t1}, 5, v{t0}")
        A(f"v_and_b32 v{t1}, 3, v{V_LANE}")
        A(f"v_lshl_add_u32 v{V_RF}, v{t1}, 3, v{t0}")
        for jl in range(1, 8):
            A(f"v_xor_b32 v{V_RF + jl}, {jl * 32}, v{V_RF}")
        A(f"v_and_b32 v{V_FLG + 1}, 7, v{V_LANE}")
        A(f"v_lshlrev_b32 v{V_FLG + 1}, 2, v{V_FLG + 1}")
        A(f"s_lshl_b32 s{S_HO}, s{S_nt}, 13")
        A(f"s_add_u32 s{S_HO}, s{S_HO}, s{S_ASSM}")
        A(f"s_add_u32 s{S_U4}, s{S_HO}, 4096")

    def gemm2(self):
        A, PD, opt = self.A, self.PD, self.opt
        T = S_T
        TK, PM = opt.get("TK", 3), opt.get("PM", 2)
        assert PM <= TK <= 3
        G = []
        for s in range(NSTEP - PM):
            G += [(s, kb, jl) for kb in range(4) for jl in range(0 if s < NSTEP - TK else 2, 8)]
        pair_end = {}
        for d in (1, 2, 3):
            G += [(s, kb, jl) for s in range(NSTEP - PM, NSTEP) for kb in range(4) for jl in (2 * d, 2 * d + 1)]
            pair_end[d] = len(G)
        G += [(s, kb, jl) for s in range(NSTEP - TK, NSTEP) for kb in range(4) for jl in (0, 1)]
        first_s, first_a, last_a = {}, {}, {}
        for idx, (s, kb, jl) in enumerate(G):
            first_s.setdefault(s, idx); first_a.setdefault((s, kb), idx); last_a[(s, kb)] = idx
        bar_at = {first_s[t] - PD: t for t in range(1, NSTEP)}
        S = Stream(self.vm, self.lg)
        for idx, (s, kb, jl) in enumerate(G):
            needs = [("lg", ("W2", idx))]
            if first_a[(s, kb)] == idx and not (s == 0 and kb < 3):
                needs.append(("vm", ("A", s, kb)))
            if idx in bar_at:
                needs.append(("vm", ("D2", bar_at[idx])))
            w = A_W2 + 4 * (idx % 8)
            for b in range(4):
                c = acc2(jl, b)
                sc = "0" if (s == 0 and kb == 0) else f"v[{c}:{c + 3}]"
                S.mfma(f"v_mfma_f32_16x16x32_bf16 v[{c}:{c + 3}], a[{w}:{w + 3}], {self.areg(s, kb, b).r(4)}, {sc}", needs if b == 0 else (), idx in bar_at and b == 0)
        NG = len(G)
        RXr = lambda k, b: V_OWN + 16 * k + 4 * b
        rx_m = {}
        for k in range(3):
            for b in range(4):
                for jl in range(2):
                    c, sel = acc2(jl, b), V_SEL + (2 if jl == 0 else 0)
                    n = S.mfma(f"v_mfma_f32_16x16x32_bf16 v[{c}:{c + 3}], v[{sel}:{sel + 3}], v[{RXr(k, b)}:{RXr(k, b) + 3}], v[{c}:{c + 3}]",
                               [("vm", ("RX", k, b))] if jl == 0 else ())
                    rx_m.setdefault(k, n)
        A(self.st.stamp("g2start"))
        for idx in range(PD):
            for ins in self.rd2(idx, *G[idx]):
                A(ins); self.lg.issue(("W2", idx))
        last_rf = {}
        for idx in range(NG - PD):
            s, kb, jl = G[idx + PD]
            for i, ins in enumerate(self.rd2(idx + PD, s, kb, jl)):
                n = S.force(It(ins, "lg", ("W2", idx + PD)), 4 * idx + i)
            last_rf[(s, jl)] = n
        for s in (1, 3, 5):
            for jl in range(8):
                S.place(f"v_xor_b32 v{V_RF + jl}, 0x10000, v{V_RF + jl}", last_rf[(s, jl)], last_rf[(s, jl)] + 3)
        n = 0
        for ri in range(2):
            for b in range(4):
                d = V_FR + (ri * 4 + b) * 4
                x = It(f"buffer_store_dwordx4 v[{d}:{d + 3}], v{V_L16}, s[{SRD_A2}:{SRD_A2 + 3}], s{S_U4 if ri else S_HO} offen offset:{b * 1024} sc1",
                       "vm", "hst", needs=[("lg", ("hrd", ri, b))], cost=1)
                n = S.place(x, n) + opt.get("hst_gap", 2)
        ld, chk = self.poll_items("LF_fa", f"buffer_load_dword v{V_FLG}, v{V_FLG + 1}, s[{SRD_FL}:{SRD_FL + 3}], s{S_FA} offen sc1", V_FLG)
        n = S.place(ld, max(n, opt.get("fa_ld", 30)))
        p_fa = S.seq(chk, max(n + 1, opt.get("fa_chk", 60)))
        x = self.st.stamp("fapoll")
        if x:
            S.place(It(x), p_fa + 1)
        for t in range(1, NSTEP):
            x = self.st.stamp(f"s{t}")
            if x:
                S.place(It(x), 4 * first_s[t])
        fs_ld, fs_chk = self.poll_items("LF_fs", f"buffer_load_dword v{V_FLG}, v{V_FLG + 1}, s[{SRD_FL}:{SRD_FL + 3}], s{S_FA} offen offset:32 sc1", V_FLG)
        Q = []
        for s in range(NSTEP):
            for kb in range(4):
                if s == 0 and kb < 3:
                    continue
                early = 4 * last_a[(s - 3, kb)] + 4 if s >= 3 else 0
                Q.append((4 * first_a[(s, kb)], "A", s, kb, early))
        for t in range(3, NSTEP):
            early = 4 * (first_s[t - 2] - PD)
            Q.append((4 * (first_s[t] - PD), "D", t, 0, early))
        Q.sort(key=lambda x: x[0])
        rate, burst = opt.get("rate", 5), opt.get("burst", 4)
        n = p_fa + 1
        slack = []
        q, i = V_T2, V_T2 + 1
        pos = {}
        for need, kind, a, b_, early in Q:
            step = rate if need - n > opt.get("ahead", 128) else (burst if need - n > 80 else opt.get("burst0", 2))
            n = max(n, early)
            if kind == "A":
                if (a, b_) == (NF - 1, 0):
                    n = S.seq(fs_chk, n) + 1
                lds_ = self.a_loads(a, b_)
                for j, x in enumerate(lds_):
                    n = S.place(It(x, "vm", ("A", a, b_)), n)
                    last = n
                    n += step if len(lds_) == 4 else (step + (j & 1)) // 2
                slack.append((kind, a, b_, need - last))
                n = max(n, S.seq(self.a_adv(a, b_), last + 1))
                pos[(a, b_)] = n
                if (a, b_) == tuple(opt.get("fs_at", (2, 3))):
                    p_fs = S.place(It([f"buffer_store_dword v{V_T2 + 3}, v{V_T2 + 2}, s[{SRD_FL}:{SRD_FL + 3}], s{S_FA} offen offset:32 sc1"], "vm", "fs", needs=[("vm", "hst")]), n)
                    n = p_fs + 1
                if (a, b_) == (NF - 2, opt.get("fs_kb", 0)):
                    n = S.place(fs_ld, n) + 1
            else:
                for e in range(8):
                    m, ldi = self.dma2(a, e)
                    n = self.put_dma(S, m, ldi, ("D2", a), n)
                    last = n
                    n += step
                slack.append((kind, a, 0, need - last))
                n = max(n, S.seq(self.dma2_adv(a), last + 1))
                pos[("D", a)] = n
        self.slack = slack
        assert min(x[3] for x in slack) > 1, slack
        t0, t1, t2, t3 = V_T2 + 4, V_T2 + 5, V_T2 + 6, V_T2 + 7
        o = [f"s_and_b32 s{T}, s{S_W}, 1", f"s_lshl_b32 s{T}, s{T}, 1", f"s_add_u32 s{T}, s{T}, s{S_sp}", f"s_lshl_b32 s{T}, s{T}, 5",
             f"v_lshrrev_b32 v{t0}, 3, v{V_LANE}", f"v_and_b32 v{t1}, 7, v{V_LANE}"]
        for e in range(8):
            o += [f"v_add_u32 v{t2}, {8 * e}, v{t0}",
                  f"v_bfe_u32 v{t3}, v{t2}, 1, 3",
                  f"v_xor_b32 v{t3}, v{t3}, v{t1}",
                  f"v_lshlrev_b32 v{t3}, 4, v{t3}",
                  f"v_add_u32 v{t2}, s{T}, v{t2}",
                  f"v_and_b32 v{t2}, 127, v{t2}",
                  f"v_lshl_add_u32 v{V_SO2 + e}, v{t2}, 11, v{t3}"]
            if e & 3:
                o.append(f"v_subrev_u32 v{V_SO2 + e}, {(e & 3) * 1024}, v{V_SO2 + e}")
        o += [f"v_lshrrev_b32 v{t0}, 1, v{i}", f"v_xor_b32 v{t0}, v{t0}, v{q}", f"v_lshlrev_b32 v{t0}, 4, v{t0}",
              f"v_lshl_add_u32 v{V_RS}, v{i}, 7, v{t0}", f"v_xor_b32 v{V_RS + 1}, 64, v{V_RS}",
              f"v_add_u32 v{V_RS + 2}, 0x10000, v{V_RS}", f"v_add_u32 v{V_RS + 3}, 0x10000, v{V_RS + 1}"]
        o += [f"v_mov_b32 v{V_SEL + j}, 0" for j in (0, 1, 4, 5)]
        o += [f"v_lshlrev_b32 v{t0}, 2, v{q}", f"v_sub_u32 v{t0}, v{i}, v{t0}",
              f"v_and_b32 v{t1}, 1, v{t0}", f"v_lshlrev_b32 v{t1}, 4, v{t1}", f"v_mov_b32 v{t2}, 0x3f80", f"v_lshlrev_b32 v{t1}, v{t1}, v{t2}",
              f"v_lshrrev_b32 v{t0}, 1, v{t0}",
              f"v_cmp_eq_u32 s[{T + 1}:{T + 2}], 0, v{t0}", f"v_cmp_eq_u32 s[{T + 3}:{T + 4}], 1, v{t0}", f"v_mov_b32 v{t2}, 0", f"v_mov_b32 v{t3}, 0",
              f"v_cndmask_b32 v{V_SEL + 2}, v{t2}, v{t1}, s[{T + 1}:{T + 2}]", f"v_cndmask_b32 v{V_SEL + 3}, v{t2}, v{t1}, s[{T + 3}:{T + 4}]"]
        n = S.seq(o, p_fa + 2)
        assert n < pos[("D", NF - 1)] - 64
        ST, DKr, XR, DK, NM, XT = V_OWN, V_OWN + 8, V_OWN + 12, V_OWN + 28, V_OWN + 36, V_OWN + 40
        n = max(n + 1, 4 * first_s[1], p_fs + 1)
        o = [f"v_accvgpr_read_b32 v{ST + j}, a{A_RES + j}" for j in range(12)]
        o += [f"v_lshl_add_u32 v{t3}, v{i}, 6, s{S_U1}", f"v_lshl_add_u32 v{t3}, v{q}, 3, v{t3}"]
        n = S.seq(o, n) + 1
        first = True
        for b in range(4):
            for jl in range(2):
                d = XR + (b * 2 + jl) * 2
                n = S.place(It(f"ds_read_b64 v[{d}:{d + 1}], v{t3} offset:{b * 1024 + jl * 32}", "lg", "xr"), n) + 2
                first = False
        o = []
        for j in range(4):
            o += [f"v_lshlrev_b32 v{DK + 2 * j}, 16, v{DKr + j}", f"v_and_b32 v{DK + 2 * j + 1}, 0xffff0000, v{DKr + j}"]
        o += [f"v_mul_f32 v{NM + b}, v{ST + 2 * b}, v{ST + 2 * b + 1}" for b in range(4)]
        Rr = lambda jl, b: V_FR + (jl * 4 + b) * 4
        first = True
        for b in range(4):
            for jl in range(2):
                d = XR + (b * 2 + jl) * 2
                for r in range(4):
                    un = f"v_and_b32 v{XT}, 0xffff0000, v{d + (r >> 1)}" if r & 1 else f"v_lshlrev_b32 v{XT}, 16, v{d + (r >> 1)}"
                    o += [It(un, needs=[("lg", "xr")] if first else ()),
                          f"v_fma_f32 v{XT + 1}, v{XT}, v{ST + 2 * b + 1}, -v{NM + b}",
                          f"v_fma_f32 v{Rr(jl, b) + r}, v{XT + 1}, v{DK + 4 * jl + r}, v{XT}"]
                    first = False
        vo, fz = t0, t1
        o += [f"v_lshlrev_b32 v{vo}, 14, v{i}", f"v_lshl_add_u32 v{vo}, v{q}, 4, v{vo}", f"v_mov_b32 v{fz}, 0",
              f"s_lshl_b32 s{S_U0}, s{S_U0}, 7", f"s_lshl_b32 s{T}, s{S_G}, 18", f"s_add_u32 s{S_U0}, s{S_U0}, s{T}",
              f"s_lshl_b32 s{S_U1}, s{S_tile}, 11", f"s_lshl_b32 s{T}, s{S_W}, 7", f"s_add_u32 s{S_U1}, s{S_U1}, s{T}", f"s_add_u32 s{S_U1}, s{S_U1}, {FL_P}",
              f"s_mul_i32 s{S_U2}, s{S_tile}, {12 * 16384}", f"s_lshl_b32 s{T}, s{S_W}, 12", f"s_add_u32 s{S_U2}, s{S_U2}, s{T}"]
        n = S.seq(o, n + 8)
        o = []
        for d in (1, 2, 3):
            sd, sf = T + 2 * (d - 1), T + 2 * (d - 1) + 1
            o += [f"s_add_u32 s{sf}, s{S_sp}, {d}", f"s_and_b32 s{sf}, s{sf}, 3",
                  f"s_mul_i32 s{sd}, s{sf}, {3 * 16384}", f"s_add_u32 s{sd}, s{sd}, {(d - 1) * 16384}", f"s_add_u32 s{sd}, s{sd}, s{S_U2}",
                  f"s_lshl_b32 s{sf}, s{sf}, 9", f"s_add_u32 s{sf}, s{sf}, s{S_U1}"]
        o += [f"s_lshl_b32 s{S_U3}, s{S_sp}, 9", f"s_add_u32 s{S_U1}, s{S_U1}, s{S_U3}",
              f"s_mul_i32 s{S_U3}, s{S_sp}, {3 * 16384}", f"s_add_u32 s{S_U2}, s{S_U2}, s{S_U3}",
              f"s_add_u32 s{S_U3}, s{S_U2}, 16384", f"s_add_u32 s{S_U4}, s{S_U2}, 32768"]
        n = S.seq(o, n + 1)
        assert n < 4 * pair_end[1], (n, pair_end)
        end_keep = 4 * NG - 1
        for nm, at in [("send1", 4 * pair_end[1]), ("send2", 4 * pair_end[2]), ("send3", 4 * pair_end[3]), ("keepend", end_keep - 2)]:
            x = self.st.stamp(nm)
            if x:
                S.place(It(x), at)
        sent = {}
        for d in (1, 2, 3):
            n = 4 * pair_end[d] + 2
            for b in range(4):
                c0, c1 = acc2(2 * d, b), acc2(2 * d + 1, b)
                n = S.seq([f"v_cvt_pk_bf16_f32 v{c0}, v{c0}, v{c0 + 1}", f"v_cvt_pk_bf16_f32 v{c0 + 1}, v{c0 + 2}, v{c0 + 3}",
                           f"v_cvt_pk_bf16_f32 v{c0 + 2}, v{c1}, v{c1 + 1}", f"v_cvt_pk_bf16_f32 v{c0 + 3}, v{c1 + 2}, v{c1 + 3}",
                           It(f"buffer_store_dwordx4 v[{c0}:{c0 + 3}], v{V_L16}, s[{SRD_P}:{SRD_P + 3}], s{T + 2 * (d - 1)} offen offset:{b * 1024} sc1", "vm", ("S", d))], n)
            sent[d] = n
        fd = opt.get("flag_delay", 64)
        lim = rx_m[0] - 1
        for d in (1, 2, 3):
            x = It(f"buffer_store_dword v{V_T2 + 3}, v{fz}, s[{SRD_FL}:{SRD_FL + 3}], s{T + 2 * (d - 1) + 1} offen offset:{4 * (d - 1)} sc1", "vm", ("F", d), needs=[("vm", ("S", d))])
            S.place(x, min(sent[d] + fd, lim - 3), lim - 1)
        rx_pos = opt.get("rx", [[98, 56], [40, 0], [0, 0]])
        tail = []
        for k in range(3):
            fr = [V_FLG, V_FLG + 1, t2][k]
            ld, chk = self.poll_items(f"LF_rx{k}", f"buffer_load_dword v{fr}, v{fz}, s[{SRD_FL}:{SRD_FL + 3}], s{S_U1} offen offset:{4 * k} sc1", fr)
            rxl = [It(f"buffer_load_dwordx4 v[{RXr(k, b)}:{RXr(k, b) + 3}], v{V_L16}, s[{SRD_P}:{SRD_P + 3}], s{[S_U2, S_U3, S_U4][k]} offen offset:{b * 1024} sc1", "vm", ("RX", k, b)) for b in range(4)]
            a, c = rx_pos[k]
            if a:
                n = S.place(ld, lim - a, lim - 1)
            else:
                tail.insert(0, ld)
            if c:
                assert a > c
                n = S.seq(chk + rxl, max(n + 1, lim - c))
                assert n < lim
            else:
                tail += [chk[0], It(["s_nop 0"] + chk[1].text)] + rxl
        for x in tail:
            x.scalar = False
            S.g[lim]["V"].append(x)
        pre, segs = S.emit()
        A(pre)
        for s in segs:
            A(s)
        self.over2 = S.over
        for k in range(3):
            f = [j for j, l in enumerate(A.l) if l.startswith(f"buffer_store_dword v{V_T2 + 3}, v{fz},") and f"offset:{4 * k} " in l]
            assert len(f) == 1 and f[0] < A.l.index(f"LF_rx{k}_back:")
        A(self.st.stamp("rxdone"))
        A("s_nop 6")
        aux = opt.get("out_st", "sc1")
        for b in range(4):
            for jl in range(2):
                c, r = acc2(jl, b), Rr(jl, b)
                A([f"v_pk_add_f32 v[{c + j}:{c + j + 1}], v[{c + j}:{c + j + 1}], v[{r + j}:{r + j + 1}]" for j in (0, 2)])
                A(f"buffer_store_dwordx4 v[{c}:{c + 3}], v{vo}, s[{SRD_O}:{SRD_O + 3}], s{S_U0} offen offset:{jl * 64} {aux}")
            if b < 3:
                A(f"s_add_u32 s{S_U0}, s{S_U0}, 4096")

    def gen(self):
        A = self.A
        self.prologue()
        self.gemm1()
        self.transition()
        self.gemm2()
        self.st.dump(A, S_WSP, S_W, V_OWN, SRD_T)
        A("s_endpgm")
        A("LF_lbspin:")
        A(f"s_cmp_gt_u32 s{S_T + 4}, 0x40000")
        A("s_cbranch_scc1 LF_lbok")
        A(self.lb_loads)
        A("s_waitcnt vmcnt(0)")
        A("s_branch LF_lbchk")
        A("LF_epoch:")
        A(f"s_mov_b32 s{S_T + 4}, {M_EPOCH}")
        A("s_mov_b64 exec, 1")
        A(f"buffer_store_dword v{V_T2 + 3}, v{V_T2 + 2}, s[{SRD_FL}:{SRD_FL + 3}], s{S_T + 4} offen sc1")
        A("s_mov_b64 exec, -1")
        A("s_waitcnt vmcnt(0)")
        A("s_branch LF_epochok")
        self.emit_spins()
        A("LF_end:")
        A("s_endpgm")
        A.l, pads, size = post.layout(A.l, "LF_main", "LF_pad", "LF_walked", 4)
        assert len(pads) >= 4
        self.size = size
        bad = hazard.check(A.l)
        assert not bad, "\n".join(bad)
        import re
        fresh, prev = False, None
        for l in A.l:
            if re.match(r"s_\w+ m0,", l):
                assert not fresh, l
                fresh = True
            elif l.startswith("buffer_load") and l.endswith(" lds"):
                off = int(re.search(r"offset:(\d+)", l).group(1))
                srdn = re.search(r"s\[(\d+):", l).group(1)
                assert fresh == (off == 0), l
                assert off == 0 or prev == (srdn, off - 1024), l
                fresh, prev = False, (srdn, off)
        if self.opt.get("verbose"):
            print("over1", self.over1, "over2", self.over2, "size", self.size)
            print("slack", self.slack)
        return dict(text=kernel_head(self.name) + A.text(), desc=kernel_desc(self.name, 512, 256), lds=ST1 * NST + 16384, grid=256, block=256, stamps=self.st.names)


def gen_f(name, opt):
    return F(name, opt).gen()
```

```python
import math, re
from gen_common import *
from sched import *
import hazard, post

LOG2E = 1.4426950408889634
SA, SB_ = 22528, 14336
RB0 = 2 * SA
RA2 = RB0 + 4 * SB_
T_UP, T_SSM = 7168, 14336
ST2 = 32768
L_X = 4 * ST2
L_H = 3 * ST2
NF, NS = 7, 4
NSTEP = NF + NS
M_STATS, M_EPOCH, M_AGG = 0, 0x8000, WS_AGG - WS_STATS
FL_P = WS_FLAG - WS_STATS
FL_A = FL_P + 0x20000
FL_X = FL_P + 0x28000
FL_C = FL_P + 0x2C000
M_CS = FL_P + 0x40000
M_BS = M_CS + 0x38000
M_SIZE = M_BS + 0x2000
OOB = 0x7ff00000
TB_CS, TB_S1, TB_S2, TB_X = 0, 1024, 1536, 4096

SRD_F, SRD_S, SRD_X, SRD_A2, SRD_AG, SRD_D, SRD_C, SRD_P, SRD_FL, SRD_O, SRD_T = 4, 8, 12, 16, 20, 24, 28, 32, 36, 40, 44
S_W, S_G, S_g, S_m, S_odd, S_sp, S_nt, S_tile = range(48, 56)
S_FOFF, S_SOFF, S_XOFF0, S_XOFF1, S_DF, S_DS, S_DST, S_DFS, S_DSS, S_RST, S_IT = range(56, 67)
S_AOFF, S_AEND, S_AOWN, S_ASSM, S_DOFF, S_DOWN, S_DSSM = range(67, 74)
S_DP = 3
S_PF1, S_PFD, S_PFC = 84, 85, 86
S_TAG = 80
S_LX = 78
S_V = 79
S_DBO, S_RBO, S_R0, S_R1 = 12, 13, 14, 15
S_DBASE = 89
S_PFB, S_PFX = 74, 75
S_WSP, S_KP = 76, 0
S_T = 81
S_DB, S_FA, S_HO, S_U0, S_U1, S_U2, S_U3, S_U4 = S_DF, S_DS, S_DST, S_FOFF, S_SOFF, S_XOFF0, S_XOFF1, S_DFS

V_LANE, V_L16 = 1, 2
V_FO, V_SO, V_RD, V_XR = 3, 10, 12, 18
V_PAR = 20
V_T = 44
V_RAW = 56
V_SACC = 64
V_FACC = 128
A_FACC, A_X, A_W, A_TMP = 0, 96, 160, 184
V_CSA, V_BSA, V_XS, V_XQ, V_XP, V_LW, V_P4, V_TG, V_J0, V_J1, V_PW, V_ZR = 20, 28, 29, 30, 31, 32, 36, 37, 38, 39, 40, 41
V_QA, V_QB, V_QC, V_QD, V_QE, V_X0 = 42, 46, 50, 54, 58, 62
A_PAR, A_ST, A_BS = 200, 206, 208
V_L8 = 11
V_FO2, V_RF, V_SO2, V_RS, V_SEL, V_FLG, V_T2 = 3, 12, 20, 28, 32, 38, 40
V_OWN, V_PK, V_FR = 128, 176, 208
A_BUF, A_W2, A_RES = 0, 192, 224
ACC2 = [48 + 4 * i for i in range(20)] + [176 + 4 * i for i in range(8)] + [240 + 4 * i for i in range(4)]

P_L1, P_L16, P_L64, P_L16Q, P_L512Q, P_CF = range(6)


def accF(t, jb, b):
    if jb < 4:
        return R("v", V_FACC + (t * 4 + jb) * 16 + b * 4)
    return R("a", A_FACC + (t * 3 + jb - 4) * 16 + b * 4)


def accS(ri, sb, b):
    return R("v", V_SACC + (b * 2 + sb) * 8 + ri * 4)


def uu(sb, tau):
    r, b = tau >> 2, tau & 3
    return V_SACC - 8 + (b * 2 + sb) * 8 + 2 * r


def par(sb, k):
    return V_PAR + sb * 12 + 2 * k


def acc2(jl, b):
    return ACC2[jl * 4 + b]


def own(p, b):
    return V_OWN + [0, 32, 16][p] + 4 * b


def cmul_add(dst, lam, h, add):
    return [
        f"v_pk_fma_f32 v[{dst}:{dst + 1}], v[{lam}:{lam + 1}], v[{h}:{h + 1}], v[{add}:{add + 1}] op_sel_hi:[1,0,1]",
        f"v_pk_fma_f32 v[{dst}:{dst + 1}], v[{lam}:{lam + 1}], v[{h}:{h + 1}], v[{dst}:{dst + 1}] op_sel:[1,1,0] op_sel_hi:[0,1,1] neg_lo:[1,0,0]",
    ]


def cmul(dst, lam, h):
    return [
        f"v_pk_mul_f32 v[{dst}:{dst + 1}], v[{lam}:{lam + 1}], v[{h}:{h + 1}] op_sel_hi:[1,0]",
        f"v_pk_fma_f32 v[{dst}:{dst + 1}], v[{lam}:{lam + 1}], v[{h}:{h + 1}], v[{dst}:{dst + 1}] op_sel:[1,1,0] op_sel_hi:[0,1,1] neg_lo:[1,0,0]",
    ]


def interleave(*lists):
    out = []
    for i in range(max(len(x) for x in lists)):
        for x in lists:
            if i < len(x):
                out.append(x[i])
    return out


def zig(pair):
    bs = range(4) if pair % 2 == 0 else range(3, -1, -1)
    return [(h, b) for k, b in enumerate(bs) for h in ((0, 1) if k % 2 == 0 else (1, 0))]


RD_GAPS = (0, 1, 3, 4)


def srd_items(d, ptr, off, size):
    A = Asm()
    srd(A, d, ptr, off, size)
    return [It(A.l[:2]), It(A.l[2]), It(A.l[3])]


class F:
    def __init__(self, name, opt):
        self.name, self.opt = name, opt
        self.A = Asm()
        self.vm, self.lg = Cnt("vm", 63), Cnt("lgkm", 15)
        self.PD = 4
        self.st = Stamps(opt.get("diag"), opt.get("kidx", 0), opt.get("stamps", "tile0 loopend gelu g2start s1 s8 keepend rxdone").split())
        self.order = [("S", 0, 0), ("S", 1, 0), ("S", 0, 1), ("S", 1, 1)] + [("F", t, jb) for jb in range(7) for t in range(2)]
        self.spins = []

    def frag(self, f):
        return (f // 18,) + self.order[f % 18]

    def rd1(self, f):
        kk, kind, p, q = self.frag(f)
        w = A_W + 4 * (f % 6)
        if kind == "S":
            return [f"ds_read_b128 a[{w}:{w + 3}], v{V_RD + 2 + kk} offset:{T_SSM + p * 4096 + q * 2048}"]
        off = p * T_UP + (q * 32 if q < 6 else 0)
        a = V_RD + 4 * kk + (0 if q < 6 else 1)
        return [f"ds_read_b64_tr_b16 a[{w + 2 * h}:{w + 2 * h + 1}], v{a} offset:{off + h * 1792}" for h in range(2)]

    def xreg(self, par_, kk, b):
        return A_X + ((par_ * 2 + kk) * 4 + b) * 4

    def dma1(self, n):
        if n < 7:
            m = None if n & 3 else (f"s_add_u32 m0, s{S_DFS}, 4096" if n else f"s_mov_b32 m0, s{S_DFS}")
            return m, f"buffer_load_dwordx4 v{V_FO + n}, s[{SRD_F}:{SRD_F + 3}], s{S_FOFF} offen offset:{(n & 3) * 1024} {self.opt.get('w_aux', '')} lds"
        e = n - 7
        return (None if e else f"s_mov_b32 m0, s{S_DSS}"), f"buffer_load_dwordx4 v{V_SO + e}, s[{SRD_S}:{SRD_S + 3}], s{S_SOFF} offen offset:{e * 1024} {self.opt.get('w_aux', '')} lds"

    def ring_a(self, dst, src):
        return [f"s_add_u32 s{dst}, s{src}, {SA}",
                [f"s_cmp_eq_u32 s{dst}, {RB0}", f"s_cselect_b32 s{dst}, {RA2}, s{dst}"],
                [f"s_cmp_eq_u32 s{dst}, {RA2 + SA}", f"s_cselect_b32 s{dst}, 0, s{dst}"]]

    def ring_b(self, dst, src):
        return [f"s_add_u32 s{dst}, s{src}, {SB_}", [f"s_cmp_eq_u32 s{dst}, {RA2}", f"s_cselect_b32 s{dst}, {RB0}, s{dst}"]]

    def dma1_dst(self):
        return [[f"s_bitcmp1_b32 s{S_W}, 0", f"s_cselect_b32 s{S_DFS}, s{S_DBO}, s{S_DST}"],
                f"s_add_u32 s{S_DFS}, s{S_DFS}, s{S_DF}",
                f"s_add_u32 s{S_DSS}, s{S_DS}, s{S_DST}"]

    def dma1_adv(self):
        return [f"s_add_u32 s{S_FOFF}, s{S_FOFF}, {64 * 7168}", f"s_add_u32 s{S_SOFF}, s{S_SOFF}, 128"] + \
            self.ring_a(S_DST, S_DST) + self.ring_b(S_DBO, S_DBO) + self.dma1_dst()

    def mfma1(self, s, f, b):
        kk, kind, p, q = self.frag(f)
        w = A_W + 4 * (f % 6)
        x = self.xreg(s & 1, kk, b)
        c = (accS(p, q, b) if kind == "S" else accF(p, q, b)).r(4)
        sc = "0" if (s == 0 and kk == 0) else c
        if kind == "S":
            return f"v_mfma_f32_16x16x32_bf16 {c}, a[{x}:{x + 3}], a[{w}:{w + 3}], {sc}"
        return f"v_mfma_f32_16x16x32_bf16 {c}, a[{w}:{w + 3}], a[{x}:{x + 3}], {sc}"

    def put_dma(self, S, m, ld, tag, at):
        if m:
            return S.dma(m, ld, tag, at)
        return S.place(It(ld, "vm", tag), at)

    def dma2(self, t, e):
        m = None if e & 3 else f"s_add_u32 m0, s{S_DB}, {(t % 4) * ST2 + e * 1024}"
        if t < NF:
            return m, f"buffer_load_dwordx4 v{V_FO2 + e}, s[{SRD_D}:{SRD_D + 3}], s{S_DOFF} offen offset:{(e & 3) * 1024} {self.opt.get('w_aux', '')} lds"
        return m, f"buffer_load_dwordx4 v{V_SO2 + e}, s[{SRD_C}:{SRD_C + 3}], s{S_DOFF} offen offset:{(e & 3) * 1024} {self.opt.get('w_aux', '')} lds"

    def dma2_adv(self, t):
        if t == NF - 1:
            return [f"s_mov_b32 s{S_DOFF}, s{S_DSSM}"]
        if t >= NF:
            return [f"s_add_u32 s{S_DOFF}, s{S_DOFF}, 128"]
        if t == NF - 2:
            return [f"s_mul_i32 s{S_DOFF}, s{S_W}, {7 * 65536}", f"s_add_u32 s{S_DOFF}, s{S_DOFF}, {3 * 65536}", f"s_add_u32 s{S_DOFF}, s{S_DOFF}, s{S_DBASE}"]
        return [f"s_add_u32 s{S_DP}, s{S_DP}, 4"] + self.dma2_row()

    def dma2_row(self):
        t = S_T + 7
        return [f"s_add_u32 s{t}, s{S_DP}, 3",
                [f"s_cmp_ge_u32 s{S_DP}, s{S_DOWN}", f"s_cselect_b32 s{S_DOFF}, s{t}, s{S_DP}"]] + self.dma2_row2()

    def dma2_row2(self):
        t = S_T + 7
        for j in range(24):
            assert ((j + 3) * 43) >> 8 == (j + 3) // 6
        return [f"s_add_u32 s{t}, s{S_DOFF}, 3", f"s_mul_i32 s{t}, s{t}, 43", f"s_lshr_b32 s{t}, s{t}, 8",
                f"s_add_u32 s{S_DOFF}, s{S_DOFF}, s{t}", f"s_lshl_b32 s{S_DOFF}, s{S_DOFF}, 16", f"s_add_u32 s{S_DOFF}, s{S_DOFF}, s{S_DBASE}"]

    def areg(self, s, kb, b):
        if s == 0 and kb < 3:
            return R("v", own(kb, b))
        return R("a", A_BUF + ((s % 3) * 16 + kb * 4 + b) * 4)

    def a_loads(self, s, kb):
        if s != NF - 1:
            return [self.a_load(s, kb, b) for b in range(4)]
        return [f"buffer_load_dwordx2 {(self.areg(s, kb, b) + 2 * h).r(2)}, v{V_L8}, s[{SRD_A2}:{SRD_A2 + 3}], s{S_AOFF} offen offset:{b * 1024 + h * 512} {self.opt.get('a_aux', 'sc1')}"
                for b in range(4) for h in range(2)]

    def a_load(self, s, kb, b):
        return f"buffer_load_dwordx4 {self.areg(s, kb, b).r(4)}, v{V_L16}, s[{SRD_A2}:{SRD_A2 + 3}], s{S_AOFF} offen offset:{b * 1024} {self.opt.get('a_aux', 'sc1')}"

    def a_adv(self, s, kb):
        if s == NF - 1 and kb == 3:
            return [f"s_mov_b32 s{S_AOFF}, s{S_ASSM}"]
        out = [f"s_add_u32 s{S_AOFF}, s{S_AOFF}, 4096"]
        if s < NF:
            out.append([f"s_cmp_eq_u32 s{S_AOFF}, s{S_AOWN}", f"s_cselect_b32 s{S_AOFF}, s{S_AEND}, s{S_AOFF}"])
        return out

    def rd2(self, idx, s, kb, jl):
        w = A_W2 + 4 * (idx % 8)
        so = (s & 1) * ST2
        if s < NF:
            return [f"ds_read_b64_tr_b16 a[{w + 2 * h}:{w + 2 * h + 1}], v{V_RF + jl} offset:{so + kb * 8192 + h * 4096}" for h in range(2)]
        ri, half = kb & 1, kb >> 1
        return [f"ds_read_b128 a[{w}:{w + 3}], v{V_RS + half + 2 * ((s >> 1) & 1)} offset:{so + ri * 16384 + jl * 2048}"]

    def poll_items(self, label, load, reg, red=(), post_=()):
        cmp_ = list(red) + [f"v_cmp_ne_u32 vcc, s{S_TAG}, v{reg}"] + list(post_)
        self.spins.append((label, load, cmp_))
        return It(load, "vm", label), [It(cmp_[0], needs=[("vm", label)])] + [It(x) for x in cmp_[1:]] + [It([f"s_cbranch_vccnz {label}_spin", f"{label}_back:"])]

    def emit_spins(self):
        A = self.A
        for label, load, cmp_ in self.spins:
            A(f"{label}_spin:")
            A(f"s_mov_b32 s{S_T + 6}, 0")
            A(f"{label}_loop:")
            A(load)
            A(f"s_add_u32 s{S_T + 6}, s{S_T + 6}, 1")
            A("s_waitcnt vmcnt(0)")
            A(cmp_)
            A(f"s_cmp_gt_u32 s{S_T + 6}, 0x8000")
            A(f"s_cbranch_scc1 {label}_back")
            A(f"s_cbranch_vccnz {label}_loop")
            A(f"s_branch {label}_back")

    def prologue(self):
        A = self.A
        T = S_T
        A("s_cmp_ge_u32 s2, 256")
        A("s_cbranch_scc1 LF_end")
        self.st.start(A)
        vm = self.vm
        A(f"s_load_dwordx2 s[{SRD_T}:{SRD_T + 1}], s[0:1], {KA['x']}")
        assert SRD_C == SRD_D + 4 and SRD_FL == SRD_P + 4 and SRD_AG == SRD_A2 + 4
        A(f"s_load_dwordx8 s[{SRD_D}:{SRD_D + 7}], s[0:1], {KA['wg']}")
        A(f"s_load_dwordx8 s[{SRD_P}:{SRD_P + 7}], s[0:1], {KA['Lre']}")
        A(f"s_load_dwordx8 s[{SRD_A2}:{SRD_A2 + 7}], s[0:1], {KA['Cre']}")
        A(f"s_load_dwordx2 s[{S_WSP}:{S_WSP + 1}], s[0:1], {KA['ws']}")
        t0, t1, t2, t3, t4 = 64, 65, 66, 67, 68
        A(f"v_lshrrev_b32 v{t0}, 6, v0")
        A(f"v_and_b32 v{V_LANE}, 63, v0")
        A(f"v_readfirstlane_b32 s{S_W}, v{t0}")
        A(f"v_lshlrev_b32 v{V_L16}, 4, v{V_LANE}")
        A(f"s_getpc_b64 s[{T + 1}:{T + 2}]")
        A("LF_pc0:")
        A(f"s_lshr_b32 s{T}, s2, 3")
        A(f"s_lshl_b32 s{T}, s{T}, 11")
        A(f"v_lshrrev_b32 v{t0}, 4, v0")
        A(f"v_lshl_add_u32 v{t0}, v{t0}, 7, s{T}")
        A(f"v_min_u32 v{t0}, LF_end-LF_pc0, v{t0}")
        A(f"v_add_co_u32 v{t0}, vcc, s{T + 1}, v{t0}")
        A(f"v_mov_b32 v{t1}, s{T + 2}")
        A(f"s_and_b32 s{S_sp}, s2, 3")
        A(f"v_addc_co_u32 v{t1}, vcc, 0, v{t1}, vcc")
        A(f"global_load_dword v0, v[{t0}:{t1}], off"); vm.issue("pf")
        A(f"s_bfe_u32 s{S_nt}, s2, 0x30003")
        A(f"s_and_b32 s{S_m}, s2, 4")
        A(f"s_lshr_b32 s{T}, s2, 6")
        A(f"s_add_u32 s{S_m}, s{S_m}, s{T}")
        A(f"s_lshl_b32 s{S_g}, s{S_sp}, 3")
        A(f"s_add_u32 s{S_g}, s{S_g}, s{S_nt}")
        A(f"s_lshl_b32 s{S_G}, s{S_m}, 2")
        A(f"s_add_u32 s{S_G}, s{S_G}, s{S_W}")
        A([f"s_and_b32 s{T}, s{S_W}, 1", f"s_lshr_b32 s{T + 1}, s2, 2", f"s_lshl_b32 s{T + 1}, s{T + 1}, 1", f"s_add_u32 s{T}, s{T}, s{T + 1}",
           f"s_lshl_b32 s{T + 1}, s{S_sp}, 7", f"s_add_u32 s{T + 1}, s{T + 1}, s{T}", f"s_lshl_b32 s{S_PFB}, s{T + 1}, 12",
           f"s_mul_i32 s{T + 1}, s{T}, 4682", f"s_lshr_b32 s{T + 1}, s{T + 1}, 16",
           f"s_mul_i32 s{T + 1}, s{T + 1}, {8 * 56 - 14}", f"s_mul_i32 s{T + 2}, s{S_sp}, 14", f"s_add_u32 s{T + 1}, s{T + 1}, s{T + 2}",
           f"s_add_u32 s{T + 1}, s{T + 1}, s{T}", f"s_lshl_b32 s{S_PF1}, s{T + 1}, 7",
           f"s_cmp_ge_u32 s{T}, 112", f"s_cselect_b32 s{S_PF1}, {hx(OOB >> 1)}, s{S_PF1}",
           f"s_lshl_b32 s{S_PFX}, s{S_G}, 5", f"s_add_u32 s{S_PFX}, s{S_PFX}, s{S_g}", f"s_lshl_b32 s{S_PFX}, s{S_PFX}, 12",
           f"v_lshrrev_b32 v{t2}, 3, v{V_LANE}", f"v_mul_u32_u24 v{V_PW}, {7168 - 128}, v{t2}", f"v_add_u32 v{V_PW}, v{V_PW}, v{V_L16}",
           f"v_lshrrev_b32 v{V_P4}, 5, v{V_LANE}", f"v_mul_u32_u24 v{V_P4}, 1536, v{V_P4}", f"v_add_u32 v{V_P4}, v{V_P4}, v{V_L16}"])
        A(f"s_mov_b32 s{SRD_T + 2}, {2048 * 2048}")
        A(f"s_mov_b32 s{SRD_T + 3}, 0x20000")
        A(f"s_mov_b32 s{SRD_F + 2}, {1024 * 7168}")
        A(f"s_mov_b32 s{SRD_F + 3}, 0x20000")
        A(f"s_mov_b32 s{SRD_S + 2}, {1024 * 2048}")
        A(f"s_mov_b32 s{SRD_S + 3}, 0x20000")
        A(f"s_movk_i32 s{T}, 6944")
        A(f"s_movk_i32 s{T + 1}, 28672")
        fo = [f"v_mul_u32_u24 v{t4}, 4682, v{V_LANE}"]
        for n in range(7):
            if n:
                fo.append(f"v_add_u32 v{t4}, {64 * 4682}, v{t4}")
            fo += [f"v_bfe_u32 v{t2}, v{t4}, 18, 1", f"v_bfe_u32 v{t3}, v{t4}, 19, 1", f"v_lshrrev_b32 v{V_FO + n}, 16, v{t4}", f"v_sub_u32 v{t2}, v{t2}, v{t3}",
                   f"v_mad_u32_u24 v{V_FO + n}, v{V_FO + n}, s{T}, v{V_L16}", f"v_mad_i32_i24 v{V_FO + n}, v{t2}, s{T + 1}, v{V_FO + n}"]
            if n >= 4:
                fo.append(f"v_add_u32 v{V_FO + n}, 4096, v{V_FO + n}")
        for n in range(7):
            for lane in range(64):
                ci = 64 * n + lane
                p = ci // 14
                k = (p & ~12) | ((p & 4) << 1) | ((p & 8) >> 1)
                t = ci * 4682
                got = (t >> 16) * 6944 + lane * 16 + (((t >> 18) & 1) - ((t >> 19) & 1)) * 28672 + (4096 if n >= 4 else 0)
                assert got >= 0 and got + (n & 3) * 1024 == k * 7168 + (ci % 14) * 16
        CA = Asm()
        CA(f"v_lshrrev_b32 v{t2}, 3, v{V_LANE}")
        CA(f"v_lshrrev_b32 v{t3}, 4, v{V_LANE}")
        CA(f"v_and_b32 v{t1}, 7, v{V_LANE}")
        CA(f"v_xor_b32 v{t3}, v{t3}, v{t1}")
        CA(f"v_lshlrev_b32 v{t3}, 4, v{t3}")
        CA(f"v_lshl_add_u32 v{V_X0}, v{t2}, 13, v{t3}")
        CA(f"v_xor_b32 v{V_X0 + 1}, 64, v{V_X0}")
        CA(f"v_add_u32 v{V_X0 + 1}, {8 * 8192 - 1024}, v{V_X0 + 1}")
        CA(f"v_lshl_add_u32 v{V_SO}, v{t2}, 11, v{t3}")
        CA(f"v_xor_b32 v{V_SO + 1}, 64, v{V_SO}")
        CA(f"v_add_u32 v{V_SO + 1}, {8 * 2048 - 1024}, v{V_SO + 1}")
        CA(f"s_lshl_b32 s{S_XOFF0}, s{S_G}, 17")
        CA(f"s_add_u32 s{S_XOFF1}, s{S_XOFF0}, 4096")
        CA(f"s_lshl_b32 s{S_LX}, s{S_W}, 13")
        CA(f"s_add_u32 s{S_LX}, s{S_LX}, {L_X}")

        CA(fo)
        CA(f"s_and_b32 s{T}, s{S_W}, 1")
        CA(f"s_mul_i32 s{S_FOFF}, s{T}, {32 * 7168}")
        CA(f"s_mul_i32 s{T + 1}, s{S_g}, 224")
        CA(f"s_add_u32 s{S_FOFF}, s{S_FOFF}, s{T + 1}")
        CA(f"s_lshl_b32 s{S_SOFF}, s{S_g}, 16")
        CA(f"s_lshl_b32 s{T}, s{T}, 15")
        CA(f"s_add_u32 s{S_SOFF}, s{S_SOFF}, s{T}")
        CA(f"s_lshr_b32 s{T}, s{S_W}, 1")
        CA(f"s_mul_i32 s{S_DF}, s{T}, 7168")
        CA(f"s_lshl_b32 s{S_DS}, s{S_W}, 11")
        CA(f"s_add_u32 s{S_DS}, s{S_DS}, {T_SSM}")
        CA(f"s_mov_b32 s{S_DST}, {RA2}")
        CA(f"s_mov_b32 s{S_DBO}, {RB0}")
        for x in self.dma1_dst():
            CA([It(x)])

        ncalc = self.opt.get("calc_pre", 20)
        A(CA.l[:ncalc])
        if self.opt.get("abl_pro"):
            A(f"s_mov_b32 s15, {hx(OOB)}")
        A(f"s_cmp_lt_u32 s{S_W}, 2")
        A("s_waitcnt lgkmcnt(0)")
        A(f"s_cselect_b32 s{SRD_F}, s{SRD_D}, s{SRD_D + 2}")
        A(f"s_cselect_b32 s{SRD_F + 1}, s{SRD_D + 1}, s{SRD_D + 3}")
        A(f"s_cselect_b32 s{SRD_S}, s{SRD_FL}, s{SRD_FL + 2}")
        A(f"s_cselect_b32 s{SRD_S + 1}, s{SRD_FL + 1}, s{SRD_FL + 3}")

        def emit(items):
            for x in items:
                if isinstance(x, It):
                    if x.needs:
                        A(waitcnt(vm.need(*[t for c, t in x.needs])))
                    ab = self.opt.get("abl_pro", "")
                    k = {"sr": "r", "sw": "w", "XS": "x", "D": "d", "p": "p"}.get(x.tag[0]) if x.cnt else None
                    if k and k in ab:
                        A([re.sub(r"s\d+ offen", "s15 offen", t) for t in x.text])
                    else:
                        A(x.text)
                    if x.cnt:
                        vm.issue(x.tag)
                else:
                    A(x)
        side0 = self.sj_rows(0, V_QC, V_QD) + self.sj_w(V_CSA + 4, 0) + self.sj_w(V_QA, 1)
        order = self.opt.get("order", "side")
        if order == "side":
            emit(side0)
        A(self.st.stamp("karg"))
        W = Asm()
        W(CA.l[ncalc:])
        n_calc = len(W.l)
        W(srd_items(SRD_FL, S_WSP, WS_STATS, M_SIZE))
        W(f"s_load_dword s{S_TAG}, s[{SRD_FL}:{SRD_FL + 1}], {M_EPOCH}")
        q, r, c, i, u = t0, t1, t2, t3, t4
        W(f"s_and_b32 s{S_odd}, s{S_g}, 1")
        W(f"v_lshrrev_b32 v{q}, 4, v{V_LANE}")
        W(f"v_bfe_u32 v{r}, v{V_LANE}, 2, 3")
        W(f"v_and_b32 v{c}, 3, v{V_LANE}")
        W(f"v_and_b32 v{i}, 15, v{V_LANE}")
        W(f"v_lshrrev_b32 v{u}, 5, v{V_LANE}")
        W(f"v_lshl_add_u32 v{u}, v{u}, 4, v{r}")
        W(f"v_mul_u32_u24 v{u}, 224, v{u}")
        W(f"v_lshl_add_u32 v{u}, v{c}, 3, v{u}")
        W(f"s_lshl_b32 s{T}, s{S_odd}, 5")
        W(f"s_mul_i32 s{T + 1}, s{S_odd}, 192")
        W(f"s_sub_u32 s{T + 1}, {RA2 + 192}, s{T + 1}")
        W(f"s_add_u32 s{T}, s{T}, {RA2}")
        W(f"v_add_u32 v{V_RD}, s{T}, v{u}")
        W(f"v_add_u32 v{V_RD + 1}, s{T + 1}, v{u}")
        W(f"v_subrev_u32 v{V_RD + 4}, {RA2 - RB0}, v{V_RD}")
        W(f"v_subrev_u32 v{V_RD + 5}, {RA2 - RB0}, v{V_RD + 1}")
        W(f"v_lshrrev_b32 v{u}, 1, v{i}")
        W(f"v_xor_b32 v{u}, v{u}, v{q}")
        W(f"v_lshlrev_b32 v{u}, 4, v{u}")
        W(f"v_lshl_add_u32 v{u}, v{i}, 7, v{u}")
        W(f"v_add_u32 v{V_RD + 2}, {RA2}, v{u}")
        W(f"v_xor_b32 v{V_RD + 3}, 64, v{V_RD + 2}")
        W(f"v_add_u32 v{V_XR}, s{S_LX}, v{u}")
        W(f"v_xor_b32 v{V_XR + 1}, 64, v{V_XR}")
        W(f"s_mov_b32 s{S_RST}, {RA2}")
        W(f"s_mov_b32 s{S_RBO}, {RB0}")
        W(f"s_mov_b32 s{S_IT}, 0")

        def walk():
            if self.opt.get("walk", 1):
                A("s_mov_b64 exec, 0")
                for w in range(3):
                    A(f"s_cmp_eq_u32 s{S_W}, {w}")
                    A(f"s_cbranch_scc1 LF_pad{w}")
                A("s_branch LF_pad3")
            A("LF_walked:")
            A("s_mov_b64 exec, -1")
            A(self.st.stamp("walk"))
        W(self.setup_items())
        W([f"s_lshl_b32 s{S_V}, s2, 2", f"s_add_u32 s{S_V}, s{S_V}, {FL_C}", It([f"s_cmp_eq_u32 s{S_W}, 0", f"s_cselect_b32 s{S_V}, s{S_V}, {hx(OOB)}"]),
           f"s_lshr_b32 s{S_PFC}, s{S_PFB}, 2", f"s_lshr_b32 s{S_PFD}, s{S_PFX}, 2", f"v_mov_b32 v{V_ZR}, 0"] + self.sj_addr())
        work = W.l
        dm = []
        for hb in range(2):
            m, lds, adv = self.xstage(hb)
            dm += [It(([m, "s_nop 0"] if j == 0 else []) + [x] + ([adv] if j == 3 else []), "vm", ("XS", 0, hb)) for j, x in enumerate(lds)]
        for n in range(9):
            m, ld = self.dma1(n)
            dm.append(It(([m, "s_nop 0"] if m else []) + [ld], "vm", ("D", 0)))
        pace, walk_at, lead = self.opt.get("pace", 12), self.opt.get("walk_at", 8), self.opt.get("lead", 0)

        def main_page():
            walk()
            A("s_branch LF_main")
            A(".p2align 12")
            A("LF_main:")
        if order == "side":
            emit(work[:lead]); work = work[lead:]
            done = lead
            for j, x in enumerate(dm):
                if j == 8 and done < n_calc:
                    emit(work[:n_calc - done]); work = work[n_calc - done:]
                if j == walk_at:
                    main_page()
                emit([x] + work[:pace]); work = work[pace:]; done += pace
        else:
            emit(work[:n_calc]); work = work[n_calc:]
            A(f"s_add_u32 s{S_R0}, s{S_m}, s{S_nt}")

            def half(k):
                A(f"s_bitcmp{k}_b32 s{S_R0}, 0")
                A(f"s_cbranch_scc1 LF_hd{k}")
                for x in dm[:8]:
                    A(x.text); vm.issue(("D", 0))
                A(f"s_branch LF_he{k}")
                A(f"LF_hd{k}:")
                for x in dm[8:]:
                    A(x.text)
                A(f"LF_he{k}:")
            half(1)
            if order == "dma1":
                emit(side0)
            emit(work); work = []
            main_page()
            half(0)
            if order == "dma2":
                emit(side0)
            walk_at = None
        emit(work + self.dma1_adv())
        A(self.st.stamp("issued"))
        if walk_at == 17:
            main_page()
        acc_late = self.acc_late = order == "dma2"
        if not acc_late:
            emit(self.sj_acc_q(0, V_QC, V_QD) + self.sj_rows(1, V_QC, V_QD) + self.sj_acc_w(V_CSA + 4, 0) + self.sj_acc_w(V_QA, 1))
        A(self.st.stamp("shadow"))
        A(waitcnt(vm.need(("D", 0) if order != "side" else ("XS", 0, 1))))
        A(self.xs_reads(0, 0) + self.xs_reads(0, 1))
        A(waitcnt(vm.need(("D", 0)), 0))
        A("s_barrier")
        for f in range(self.PD):
            for ins in self.rd1(f):
                A(ins); self.lg.issue(("W", 0, f))
        A(f"s_mul_i32 s{S_TAG}, s{S_TAG}, 1664525")
        A(f"s_add_u32 s{S_TAG}, s{S_TAG}, 1013904223")
        A(f"v_mov_b32 v{V_TG}, s{S_TAG}")

    def xstage(self, hb):
        return (f"s_add_u32 m0, s{S_LX}, 4096" if hb else f"s_mov_b32 m0, s{S_LX}",
                [f"buffer_load_dwordx4 v{V_X0 + (j & 1)}, s[{SRD_T}:{SRD_T + 3}], s{S_XOFF0 + hb} offen offset:{1024 * j} lds" for j in range(4)],
                f"s_add_u32 s{S_XOFF0 + hb}, s{S_XOFF0 + hb}, 128")

    def xs_reads(self, step, hb):
        return [f"ds_read_b128 a[{self.xreg(step & 1, kk, b)}:{self.xreg(step & 1, kk, b) + 3}], v{V_XR + kk} offset:{b * 2048}" for b in (2 * hb, 2 * hb + 1) for kk in range(2)]

    def sj_w(self, lw, tag):
        return [It(f"buffer_load_dwordx4 v[{lw}:{lw + 3}], v{V_PW}, s[{SRD_F}:{SRD_F + 3}], s{S_PF1} offen", "vm", ("sw", tag)),
                f"s_add_u32 s{S_PF1}, s{S_PF1}, {64 * 7168}"]

    def sj_rows(self, c, qb, qx):
        return [It(f"buffer_load_dwordx4 v[{qx}:{qx + 3}], v{V_P4}, s[{SRD_T}:{SRD_T + 3}], s{S_PFX} offen offset:{512 * c}", "vm", ("sr", c)),
                It(f"buffer_load_dwordx4 v[{qb}:{qb + 3}], v{V_P4}, s[{SRD_S}:{SRD_S + 3}], s{S_PFB} offen offset:{512 * c}", "vm", ("sr", c))]

    def sj_acc_w(self, lw, tag):
        o = []
        for j in range(4):
            if lw == V_CSA + 4:
                o += [f"v_lshlrev_b32 v{V_CSA + 2 * j}, 16, v{lw + j}", f"v_and_b32 v{V_CSA + 2 * j + 1}, 0xffff0000, v{lw + j}"]
            else:
                o += [f"v_lshlrev_b32 v{V_J0}, 16, v{lw + j}", f"v_and_b32 v{lw + j}, 0xffff0000, v{lw + j}",
                      f"v_add_f32 v{V_CSA + 2 * j}, v{V_CSA + 2 * j}, v{V_J0}", f"v_add_f32 v{V_CSA + 2 * j + 1}, v{V_CSA + 2 * j + 1}, v{lw + j}"]
        o[0] = It(o[0], needs=[("vm", ("sw", tag))])
        return o

    def sj_acc_q(self, c, qb, qx):
        o = []
        if c == 0:
            o += [f"v_lshlrev_b32 v{V_XP}, 16, v{qx}", f"v_mov_b32 v{V_BSA}, 0", f"v_mov_b32 v{V_XS}, 0", f"v_mov_b32 v{V_XQ}, 0"]
        for j in range(4):
            o += self.sj_acc_rows(qb + j, qx + j)
        o[0] = It(o[0], needs=[("vm", ("sr", c))])
        return o

    def sj_acc_rows(self, lb, lx):
        j = V_J1
        return [f"v_lshlrev_b32 v{j}, 16, v{lb}", f"v_and_b32 v{lb}, 0xffff0000, v{lb}",
                f"v_add_f32 v{V_BSA}, v{V_BSA}, v{j}", f"v_add_f32 v{V_BSA}, v{V_BSA}, v{lb}",
                f"v_lshlrev_b32 v{j}, 16, v{lx}", f"v_and_b32 v{lx}, 0xffff0000, v{lx}",
                f"v_sub_f32 v{j}, v{j}, v{V_XP}", f"v_sub_f32 v{lx}, v{lx}, v{V_XP}",
                f"v_add_f32 v{V_XS}, v{V_XS}, v{j}", f"v_fmac_f32 v{V_XQ}, v{j}, v{j}",
                f"v_add_f32 v{V_XS}, v{V_XS}, v{lx}", f"v_fmac_f32 v{V_XQ}, v{lx}, v{lx}"]

    def sj_addr(self):
        T = S_T
        return [f"s_bfe_u32 s{T + 1}, s{S_PFB}, 0x7000c", f"s_mul_i32 s{T + 2}, s{T + 1}, 4682", f"s_lshr_b32 s{T + 2}, s{T + 2}, 16",
                f"s_mul_i32 s{T + 2}, s{T + 2}, {112 - 14}", f"s_mul_i32 s{T}, s{S_sp}, 14", f"s_add_u32 s{T}, s{T}, s{T + 2}", f"s_add_u32 s{T}, s{T}, s{T + 1}",
                f"s_lshr_b32 s{T + 7}, s{S_W}, 1", f"s_mul_i32 s{T + 2}, s{T + 7}, 56", f"s_add_u32 s{T}, s{T}, s{T + 2}",
                f"s_lshl_b32 s{T}, s{T}, 8", f"s_add_u32 s{T}, s{T}, {M_CS}",
                [f"s_cmp_ge_u32 s{T + 1}, 112", f"s_cselect_b32 s{T}, {hx(OOB)}, s{T}"],
                f"s_lshl_b32 s{T + 7}, s{T + 7}, 12", f"s_lshr_b32 s{T + 1}, s{S_PFB}, 9", f"s_add_u32 s{T + 1}, s{T + 1}, s{T + 7}", f"s_add_u32 s{T + 1}, s{T + 1}, {M_BS}",
                f"s_lshr_b32 s{T + 2}, s{S_PFX}, 8"]

    def dpp(self, r, ctl):
        return f"v_add_f32_dpp v{r}, v{r}, v{r} {ctl} row_mask:0xf bank_mask:0xf"

    def sj_finish_rows(self):
        T = S_T
        a, b_, t = V_QA, V_QA + 1, V_QA + 2

        def half_sum(*regs):
            o = []
            for ctl in ["quad_perm:[1,0,3,2]", "quad_perm:[2,3,0,1]", "row_half_mirror", "row_mirror"]:
                o += [self.dpp(r, ctl) for r in regs]
            o += [f"v_mov_b32 v{t + j}, v{r}" for j, r in enumerate(regs)]
            o += [f"v_permlane16_swap_b32 v{r}, v{t + j}" for j, r in enumerate(regs)]
            o += [f"v_add_f32 v{r}, v{r}, v{t + j}" for j, r in enumerate(regs)]
            return o
        o = [f"v_fmamk_f32 v{a}, v{V_XP}, {hx(f2u(32.0))}, v{V_XS}"]
        o += half_sum(a, V_BSA)
        o += [f"v_mul_f32 v{a}, {hx(f2u(1.0 / 1024))}, v{a}",
              f"v_sub_f32 v{V_XP}, v{a}, v{V_XP}",
              f"v_mul_f32 v{V_XS}, -2.0, v{V_XS}",
              f"v_fmamk_f32 v{V_XS}, v{V_XP}, {hx(f2u(32.0))}, v{V_XS}",
              f"v_fmac_f32 v{V_XQ}, v{V_XP}, v{V_XS}"]
        o += interleave(half_sum(V_XQ), [f"v_lshrrev_b32 v{V_XS}, 5, v{V_LANE}", f"v_lshlrev_b32 v{V_XP}, 3, v{V_XS}", f"v_lshlrev_b32 v{V_XS}, 2, v{V_XS}"])
        rb = lambda r: [f"v_cvt_pk_bf16_f32 v{r}, v{r}, v{r}", f"v_lshlrev_b32 v{r}, 16, v{r}"]
        o += [f"v_mul_f32 v{b_}, {hx(f2u(1.0 / 1024))}, v{V_XQ}"] + rb(b_) + [f"v_add_f32 v{b_}, {hx(f2u(1e-5))}, v{b_}"] + rb(b_)
        o += [f"v_sqrt_f32 v{b_}, v{b_}"] + rb(a) + rb(b_) + [f"v_rcp_f32 v{b_}, v{b_}"]
        o += [It(f"buffer_store_dword v{V_BSA}, v{V_XS}, s[{SRD_FL}:{SRD_FL + 3}], s{T + 1} offen sc1", "vm", "pub"),
              It(f"buffer_store_dwordx2 v[{a}:{b_}], v{V_XP}, s[{SRD_FL}:{SRD_FL + 3}], s{T + 2} offen sc1", "vm", "pub")]
        return o

    def sj_finish_cols(self):
        T = S_T
        C = V_CSA
        o = self.sj_addr()[:13]
        o += [f"v_permlane32_swap_b32 v{C + j}, v{C + 4 + j}" for j in range(4)]
        o += [f"v_add_f32 v{C + j}, v{C + j}, v{C + 4 + j}" for j in range(4)]
        o += [f"v_and_b32 v{C + 4}, 7, v{V_LANE}", f"v_lshrrev_b32 v{C + 5}, 4, v{V_LANE}"]
        o += [f"v_permlane16_swap_b32 v{C + j}, v{C + 2 + j}" for j in range(2)]
        o += [f"v_add_f32 v{C + j}, v{C + j}, v{C + 2 + j}" for j in range(2)]
        o += [f"v_lshlrev_b32 v{C + 4}, 5, v{C + 4}", f"v_lshl_add_u32 v{C + 4}, v{C + 5}, 3, v{C + 4}"]
        o += [self.dpp(C, "row_ror:8"), self.dpp(C + 1, "row_ror:8"),
              It(f"buffer_store_dwordx2 v[{C}:{C + 1}], v{C + 4}, s[{SRD_FL}:{SRD_FL + 3}], s{T} offen sc1", "vm", "cspub")]
        return o

    def setup_items(self):
        T = S_T
        it = []
        it += srd_items(SRD_D, SRD_C, 0, 3584 * 2048)
        it += srd_items(SRD_O, SRD_C + 2, 0, 2048 * 4096)
        it += [[f"s_cmp_lt_u32 s{S_W}, 2", f"s_cselect_b32 s{SRD_C}, s{SRD_A2}, s{SRD_A2 + 2}", f"s_cselect_b32 s{SRD_C + 1}, s{SRD_A2 + 1}, s{SRD_A2 + 3}"],
               f"s_mov_b32 s{SRD_C + 2}, {1024 * 2048}", f"s_mov_b32 s{SRD_C + 3}, 0x20000"]
        it += [f"v_and_b32 v{V_ZR}, 15, v{V_LANE}", f"v_lshlrev_b32 v{V_ZR}, 1, v{V_ZR}", f"s_lshl_b32 s{T}, s{S_g}, 6"]
        for j, p in enumerate([SRD_P, SRD_P + 2, SRD_AG]):
            it += srd_items(SRD_A2, p, 0, 2048)
            for sb in range(2):
                it.append(It(f"buffer_load_ushort a{A_PAR + 2 * j + sb}, v{V_ZR}, s[{SRD_A2}:{SRD_A2 + 3}], s{T} offen offset:{32 * sb}", "vm", "par"))
        it += [[f"s_mov_b32 s{S_KP}, s{SRD_AG + 2}", f"s_mov_b32 s{S_KP + 1}, s{SRD_AG + 3}"]]
        it += srd_items(SRD_A2, S_WSP, WS_A2, A2_SIZE)
        it += srd_items(SRD_P, S_WSP, WS_PART, PART_SIZE)
        it += [f"s_lshl_b32 s{T}, s{S_g}, 13", f"s_add_u32 s{T}, s{T}, {hx(WS_AGG)}",
               [f"s_add_u32 s{SRD_AG}, s{S_WSP}, s{T}", f"s_addc_u32 s{SRD_AG + 1}, s{S_WSP + 1}, 0"],
               f"s_mov_b32 s{SRD_AG + 2}, 8192", f"s_mov_b32 s{SRD_AG + 3}, 0x20000"]
        self.setup_split = len(it)
        it += [f"s_lshl_b32 s{S_tile}, s{S_m}, 3", f"s_add_u32 s{S_tile}, s{S_tile}, s{S_nt}"]
        it += [f"s_mul_i32 s{T}, s{S_G}, {A2_G}",
               f"s_lshl_b32 s{T + 1}, s{S_sp}, 16",
               f"s_add_u32 s{S_ASSM}, s{T}, s{T + 1}",
               f"s_add_u32 s{S_ASSM}, s{S_ASSM}, {112 * 4096}",
               f"s_mul_i32 s{T + 1}, s{S_sp}, {28 * 4096}",
               f"s_add_u32 s{S_AOFF}, s{T}, s{T + 1}",
               f"s_mul_i32 s{S_DOWN}, s{S_nt}, 3",
               f"s_lshl_b32 s{T + 1}, s{S_DOWN}, 12",
               f"s_add_u32 s{S_AOWN}, s{S_AOFF}, s{T + 1}",
               f"s_add_u32 s{S_AEND}, s{S_AOWN}, {3 * 4096}",
               [f"s_cmp_eq_u32 s{S_AOFF}, s{S_AOWN}", f"s_cselect_b32 s{S_AOFF}, s{S_AEND}, s{S_AOFF}"],
               f"s_mul_i32 s{T + 1}, s{S_sp}, {896 * 2048}",
               f"s_lshl_b32 s{T + 2}, s{S_nt}, 8",
               f"s_add_u32 s{S_DBASE}, s{T + 1}, s{T + 2}",
               f"s_sub_u32 s{S_DP}, s{S_W}, 3",
               f"s_add_u32 s{S_DOFF}, s{S_DOWN}, s{S_W}",
               [f"s_cmp_eq_u32 s{S_W}, 3", f"s_cselect_b32 s{T}, s{S_nt}, 0"],
               [f"s_cmp_lg_u32 s{T}, 0", f"s_cselect_b32 s{S_DOFF}, 0, s{S_DOFF}"]] + self.dma2_row2()
        it += [f"s_lshl_b32 s{S_DSSM}, s{S_nt}, 18",
               f"s_lshl_b32 s{T}, s{S_sp}, 9",
               f"s_add_u32 s{S_DSSM}, s{S_DSSM}, s{T}"]
        return it

    def param_items(self):
        PL = V_RAW
        lre, lim, dt = PL, PL + 2, PL + 4
        zr, zi, nq, tm = V_T, V_T + 2, V_T + 4, V_T + 5
        o = [It(f"v_accvgpr_read_b32 v{PL + j}, a{A_PAR + j}", needs=[("vm", "par")] if j == 0 else ()) for j in range(6)]
        o += [f"v_lshlrev_b32 v{PL + j}, 16, v{PL + j}" for j in range(6)]
        o += [f"v_lshrrev_b32 v{nq}, 4, v{V_LANE}", f"v_cvt_f32_u32 v{nq}, v{nq}"]
        o += [f"v_mul_f32 v{dt + sb}, {hx(f2u(LOG2E))}, v{dt + sb}" for sb in range(2)]
        o += [f"v_exp_f32 v{dt + sb}, v{dt + sb}" for sb in range(2)]
        o += [f"v_cvt_pk_bf16_f32 v{tm}, v{dt}, v{dt + 1}", f"v_lshlrev_b32 v{dt}, 16, v{tm}", f"v_and_b32 v{dt + 1}, 0xffff0000, v{tm}"]
        for sb in range(2):
            o += [f"v_mul_f32 v{zr + sb}, v{dt + sb}, v{lre + sb}", f"v_mul_f32 v{zi + sb}, v{dt + sb}, v{lim + sb}"]
        for sb in range(2):
            o += [f"v_mul_f32 v{zr + sb}, {hx(f2u(LOG2E))}, v{zr + sb}", f"v_mul_f32 v{zi + sb}, {hx(f2u(1.0 / (2 * math.pi)))}, v{zi + sb}"]
        for k, (n, byq) in {P_L1: (1, False), P_L16: (16, False), P_L64: (64, False), P_L16Q: (16, True), P_L512Q: (512, True)}.items():
            if k == P_L16Q:
                self.par_split = len(o)
            if byq:
                o.append(f"v_mul_f32 v{tm + 6}, {hx(f2u(float(n)))}, v{nq}")
                mul = f"v{tm + 6}"
            else:
                mul = hx(f2u(float(n)))
            for sb in range(2):
                o += [f"v_mul_f32 v{tm + sb}, {mul}, v{zr + sb}", f"v_mul_f32 v{tm + 2 + sb}, {mul}, v{zi + sb}"]
            o += [f"v_rndne_f32 v{tm + 4 + sb}, v{tm + 2 + sb}" for sb in range(2)]
            o += [f"v_sub_f32 v{tm + 2 + sb}, v{tm + 2 + sb}, v{tm + 4 + sb}" for sb in range(2)]
            o += [f"v_exp_f32 v{tm + sb}, v{tm + sb}" for sb in range(2)]
            if k == P_L1:
                self.par_first = len(o)
            for sb in range(2):
                o += [It(f"v_cos_f32 v{par(sb, k)}, v{tm + 2 + sb}"), f"v_sin_f32 v{par(sb, k) + 1}, v{tm + 2 + sb}"]
            for sb in range(2):
                p = par(sb, k)
                o += [f"v_mul_f32 v{p}, v{p}, v{tm + sb}", f"v_mul_f32 v{p + 1}, v{p + 1}, v{tm + sb}"]
        for sb in range(2):
            l1, cf = par(sb, P_L1), par(sb, P_CF)
            o += [f"v_mul_f32 v{tm}, v{lre + sb}, v{lre + sb}",
                  f"v_fma_f32 v{tm}, v{lim + sb}, v{lim + sb}, v{tm}",
                  f"v_rcp_f32 v{tm}, v{tm}",
                  f"v_add_f32 v{tm + 1}, -1.0, v{l1}",
                  f"v_mul_f32 v{cf}, v{tm + 1}, v{lre + sb}",
                  f"v_fma_f32 v{cf}, v{l1 + 1}, v{lim + sb}, v{cf}",
                  f"v_mul_f32 v{cf + 1}, v{l1 + 1}, v{lre + sb}",
                  f"v_fma_f32 v{cf + 1}, -v{tm + 1}, v{lim + sb}, v{cf + 1}",
                  f"v_add_f32 v{tm}, v{tm}, v{tm}",
                  f"v_mul_f32 v{cf}, v{cf}, v{tm}",
                  f"v_mul_f32 v{cf + 1}, v{cf + 1}, v{tm}"]
        return o

    def fo2_items(self):
        T = S_T
        t0, t1, t2, t3 = V_RAW + 6, V_RAW + 7, V_SO + 1, V_FO2 + 7
        o = [f"s_lshl_b32 s{T}, s{S_sp}, 2", f"s_lshl_b32 s{S_DB}, s{S_W}, 13",
             f"v_lshrrev_b32 v{t0}, 4, v{V_LANE}", f"v_and_b32 v{t1}, 15, v{V_LANE}"]
        for e in range(2):
            o += [f"v_add_u32 v{t2}, {4 * e}, v{t0}",
                  f"v_lshlrev_b32 v{t3}, 1, v{t2}",
                  f"v_xor_b32 v{t3}, v{t3}, v{t1}",
                  f"v_add_u32 v{t3}, s{T}, v{t3}",
                  f"v_and_b32 v{t3}, 15, v{t3}",
                  f"v_lshlrev_b32 v{t3}, 4, v{t3}",
                  f"v_lshl_add_u32 v{V_FO2 + e}, v{t2}, 11, v{t3}"]
        for e in range(7, 0, -1):
            d = (e // 2) * 8 * 2048 - (e & 3) * 1024
            o.append(f"v_add_u32 v{V_FO2 + e}, {hx(d)}, v{V_FO2 + (e & 1)}")
        return o

    def res_items(self):
        T = S_T
        t0, t1 = V_RAW + 6, V_RAW + 7
        o = [f"s_lshl_b32 s{S_U0}, s{S_nt}, 2", f"s_add_u32 s{S_U0}, s{S_U0}, s{S_sp}",
             f"s_lshl_b32 s{T + 1}, s{S_U0}, 6", f"s_lshl_b32 s{T}, s{S_G}, 17", f"s_add_u32 s{T}, s{T}, s{T + 1}", f"s_add_u32 m0, s{S_LX}, {TB_X}",
             f"v_lshrrev_b32 v{t0}, 2, v{V_LANE}", f"v_and_b32 v{t1}, 3, v{V_LANE}", f"v_lshlrev_b32 v{t1}, 4, v{t1}", f"v_lshl_add_u32 v{t0}, v{t0}, 13, v{t1}"]
        for b in range(4):
            o += [It(f"buffer_load_dwordx4 v{t0}, s[{SRD_T}:{SRD_T + 3}], s{T} offen offset:{b * 1024} lds", "vm", "res", needs=[("lg", self.last_xr)] if b == 0 else ()),
                  f"s_add_u32 s{T}, s{T}, 1024"]
        o += srd_items(SRD_T, S_KP, 0, 2048) + [f"s_lshl_b32 s{T + 1}, s{S_U0}, 6", f"v_lshrrev_b32 v{t1}, 4, v{V_LANE}", f"v_lshlrev_b32 v{t1}, 3, v{t1}"]
        o += [It(f"buffer_load_dwordx2 a[{A_RES + 2 * jl}:{A_RES + 1 + 2 * jl}], v{t1}, s[{SRD_T}:{SRD_T + 3}], s{T + 1} offen offset:{32 * jl}", "vm", "res") for jl in range(2)]
        o += [f"s_lshl_b32 s{S_FA}, s{S_G}, 2", f"s_add_u32 s{S_FA}, s{S_FA}, s{S_sp}", f"s_lshl_b32 s{S_FA}, s{S_FA}, 7", f"s_add_u32 s{S_FA}, s{S_FA}, {FL_A}",
              f"s_lshl_b32 s{T}, s{S_tile}, 2", f"s_add_u32 s{T}, s{T}, s{S_sp}", f"s_lshl_b32 s{T}, s{T}, 2", f"s_add_u32 s{T}, s{T}, s{S_W}",
              f"s_lshl_b32 s{T}, s{T}, 7", f"s_add_u32 s{T}, s{T}, {FL_P}",
              It(f"buffer_load_dword v0, v{t1}, s[{SRD_FL}:{SRD_FL + 3}], s{S_FA} offen sc1", "vm", "pf"),
              It(f"buffer_load_dword v0, v{t1}, s[{SRD_FL}:{SRD_FL + 3}], s{T} offen sc1", "vm", "pf")]
        return o

    def rows_in(self):
        T = S_T
        a0, a1 = 40, 41
        o = [f"s_lshl_b32 s{T}, s2, 2", f"s_add_u32 s{T}, s{T}, s{S_W}", f"s_mov_b32 s{T + 1}, {M_EPOCH}",
             [f"s_cmp_eq_u32 s{T}, 0", f"s_cselect_b32 s{T}, s{T + 1}, {hx(OOB)}"],
             f"v_mov_b32 v{a0}, 0", f"v_mov_b32 v{a1}, s{S_TAG}",
             It(f"buffer_store_dword v{a1}, v{a0}, s[{SRD_FL}:{SRD_FL + 3}], s{T} offen sc1", "vm", "ep"),
             f"s_lshl_b32 s{T}, s{S_g}, 7", f"s_add_u32 s{T}, s{T}, {M_BS}", f"s_add_u32 s{T + 1}, s{T}, 4096", f"s_lshl_b32 s{T + 2}, s{S_G}, 9",
             f"v_and_b32 v{a0}, 15, v{V_LANE}", f"v_lshlrev_b32 v{a0}, 2, v{a0}", f"v_lshlrev_b32 v{a1}, 3, v{V_LANE}"]
        o += [It(f"buffer_load_dword a{A_BS + 2 * sb + ri}, v{a0}, s[{SRD_FL}:{SRD_FL + 3}], s{T + ri} offen offset:{64 * sb} sc1", "vm", "rows") for sb in range(2) for ri in range(2)]
        o += [It(f"buffer_load_dwordx2 a[{A_ST}:{A_ST + 1}], v{a1}, s[{SRD_FL}:{SRD_FL + 3}], s{T + 2} offen sc1", "vm", "rows")]
        return o

    def tables(self):
        a0, a1 = 62, 63
        return [f"v_and_b32 v{a0}, 3, v{V_LANE}", f"v_bfe_u32 v{a1}, v{V_LANE}, 2, 2", f"v_sub_u32 v{a0}, v{a0}, v{a1}", f"v_mul_i32_i24 v{a0}, 24, v{a0}",
                f"v_lshl_add_u32 v{a1}, v{V_LANE}, 3, s{S_LX}", f"v_add_u32 v{a0}, v{a0}, v{a1}",
                It(f"ds_write_b64 v{a1}, a[{A_ST}:{A_ST + 1}] offset:{TB_S1}", "lg", "tb", needs=[("vm", "rows")]),
                It(f"ds_write_b64 v{a0}, a[{A_ST}:{A_ST + 1}] offset:{TB_S2}", "lg", "tb")]

    def cols_in(self):
        T = S_T
        a0, a1, P0 = 62, 63, 44
        o = [f"v_min_u32 v{a0}, 55, v{V_LANE}", f"v_cmp_lt_u32 vcc, 27, v{a0}", f"v_lshlrev_b32 v{a0}, 4, v{a0}", f"v_mov_b32 v{a1}, {14336 - 448}",
             f"v_cndmask_b32 v{a1}, 0, v{a1}, vcc", f"v_add_u32 v{a0}, v{a0}, v{a1}", f"v_add_u32 v{a1}, s{S_LX}, v{V_L16}"]
        ld = [f"s_mul_i32 s{T}, s{S_g}, 448", f"s_add_u32 s{T}, s{T}, {M_CS}"]
        dst = lambda j: (A_TMP if j < 4 else A_RES + 4 - 16) + 4 * j
        for j in range(8):
            ld += [It(f"buffer_load_dwordx4 a[{dst(j)}:{dst(j) + 3}], v{a0}, s[{SRD_FL}:{SRD_FL + 3}], s{T} offen sc1", "vm", "cols")]
            if j < 7:
                ld += [f"s_add_u32 s{T}, s{T}, 28672"]
        sm = [f"v_accvgpr_read_b32 v{P0 + r}, a{dst(0) + r}" for r in range(4)]
        for j in range(1, 8):
            sm += [f"v_accvgpr_read_b32 v{P0 + 4 + r}, a{dst(j) + r}" for r in range(4)]
            sm += [f"v_add_f32 v{P0 + r}, v{P0 + r}, v{P0 + 4 + r}" for r in range(4)]
        sm += [f"v_cmp_u_f32 s[{T + 1}:{T + 2}], v{P0}, v{P0 + 1}", f"v_cmp_u_f32 vcc, v{P0 + 2}, v{P0 + 3}", f"s_or_b64 vcc, vcc, s[{T + 1}:{T + 2}]"]
        self.spins.append(("LF_cs", [x.text[0] if isinstance(x, It) else x for x in ld], sm))
        u = [It(sm[0], needs=[("vm", "cols")])] + sm[1:] + [It(["s_cbranch_vccnz LF_cs_spin", "LF_cs_back:"])]
        u += [It(f"ds_write_b128 v{a1}, v[{P0}:{P0 + 3}] offset:{TB_CS}", "lg", "tb")]
        u += [f"v_and_b32 v0, 48, v{V_LANE}", f"v_lshl_add_u32 v0, v0, 3, s{S_LX}",
              f"v_lshlrev_b32 v{V_L8}, 3, v{V_LANE}"]
        return o + ld, u

    def k_items(self):
        o = [It(f"v_accvgpr_read_b32 v{56 + j}, a{A_BS + j}", needs=[("vm", "rows")] if j == 0 else ()) for j in range(4)]
        for sb in range(2):
            cf, k, x = par(sb, P_CF), 52 + 2 * sb, 56 + 2 * sb
            o += [f"v_mul_f32 v{k}, v{cf}, v{x}", f"v_mul_f32 v{k + 1}, v{cf}, v{x + 1}",
                  f"v_fma_f32 v{k}, -v{cf + 1}, v{x + 1}, v{k}", f"v_fmac_f32 v{k + 1}, v{cf + 1}, v{x}"]
        return o

    def prefetch_items(self):
        T = S_T
        t0, t1 = V_RAW + 6, V_RAW + 7
        o = []
        if self.opt.get("pf_code", 1):
            o += [[f"s_getpc_b64 s[{T + 3}:{T + 4}]", "LF_pc:"],
                  f"s_lshr_b32 s{T}, s2, 3", f"s_lshl_b32 s{T}, s{T}, 2", f"s_add_u32 s{T}, s{T}, s{S_W}",
                  f"s_lshl_b32 s{T}, s{T}, 9",
                  f"v_lshrrev_b32 v{t0}, 4, v{V_LANE}", f"v_lshl_add_u32 v{t0}, v{t0}, 7, s{T}",
                  f"v_min_u32 v{t0}, LF_end-LF_pc, v{t0}",
                  f"v_mov_b32 v{t1}, s{T + 4}",
                  f"v_add_co_u32 v{t0}, vcc, s{T + 3}, v{t0}",
                  "s_nop 0",
                  f"v_addc_co_u32 v{t1}, vcc, 0, v{t1}, vcc",
                  It(f"global_load_dword v0, v[{t0}:{t1}], off", "vm", "pf")]
        return o

    def gemm1(self):
        A, PD = self.A, self.PD
        S = Stream(self.vm, self.lg)
        S.strict = bool(self.opt.get('strict', 0))
        T = S_T
        NV = 10
        for s in range(NV):
            for f in range(0, 36, 2):
                needs = [("lg", ("W", s, f)), ("lg", ("W", s, f + 1))]
                if f == 0:
                    needs += [("lg", ("XR", s, 0)), ("lg", ("XR", s, 1))]
                bar = s + 1 < NV and f + PD == 36
                if bar:
                    needs.append(("vm", ("D", s + 1)))
                    if s >= 3:
                        needs.append(("vm", "pub"))
                for j, (h, b) in enumerate(zig(f // 2)):
                    S.mfma(self.mfma1(s, f + h, b), needs if j == 0 else (), bar and j == 0)
        opt = self.opt
        sj_at = {}
        S.thin = True

        adv_end = {}

        def tile(t, n, st):
            n = max(n, adv_end.get(t - 1, 0) + 2)
            for k in range(9):
                m, ld = self.dma1(k)
                last = self.put_dma(S, m, ld, ("D", t), n)
                n = last + st
            thin, S.thin = S.thin, t != 2
            adv_end[t] = S.seq(self.dma1_adv(), last + 1)
            S.thin = thin
            assert adv_end[t] // 144 == last // 144
            return n

        def stage(step, hb, n, st):
            m, lds, adv = self.xstage(hb)
            for j, x in enumerate(lds):
                last = self.put_dma(S, m if j == 0 else None, x, ("XS", step, hb), n)
                if j == 0:
                    S.g[last]["V"][-1].needs.append(("lg", ("XR", step - 1, hb)))
                n = last + st
            S.place(adv, last + 1)
            return n

        def xreads(step, hb, n):
            for j, x in enumerate(self.xs_reads(step, hb)):
                n = S.place(It(x, "lg", ("XR", step, hb), needs=[("vm", ("XS", step, hb))] if j == 0 else ()), n) + 2
            assert n < 144 * step - 8
            return n

        def side(s, n):
            if s & 1 or s == 0:
                x = [It(f"buffer_load_dword v0, v{V_L16}, s[{SRD_D}:{SRD_D + 3}], s{S_PFD} offen", "vm", "pf"), f"s_add_u32 s{S_PFD}, s{S_PFD}, {1 << 20}"]
            else:
                x = [It(f"buffer_load_dword v0, v{V_L16}, s[{SRD_C}:{SRD_C + 3}], s{S_PFC} offen", "vm", "pf"), f"s_add_u32 s{S_PFC}, s{S_PFC}, {1 << 19}"]
            sj_at[s] = n
            n = S.seq(self.sj_w(V_LW, "s") + x, n)
            assert n < 144 * s + 143, (s, n - 144 * s)
            return n
        for s in range(NV):
            base = 144 * s
            do_next = s + 1 < NV
            for f in range(36):
                nxt = f + PD
                if nxt < 36 or do_next:
                    tag = ("W", s, nxt) if nxt < 36 else ("W", s + 1, nxt - 36)
                    for i, ins in enumerate(self.rd1(nxt % 36)):
                        S.force(It(ins, "lg", tag), base + 4 * (f & ~1) + RD_GAPS[2 * (f & 1) + i])
            if do_next:
                n = S.seq(self.ring_a(S_R0, S_RST) + [f"s_sub_u32 s{S_RST}, s{S_R0}, s{S_RST}"] + [f"v_add_u32 v{V_RD + j}, s{S_RST}, v{V_RD + j}" for j in range(4)] +
                          [f"s_mov_b32 s{S_RST}, s{S_R0}"] + self.ring_b(S_R0, S_RBO) + [f"s_sub_u32 s{S_R1}, s{S_R0}, s{S_RBO}", f"s_mov_b32 s{S_RBO}, s{S_R0}"], base + 4 * 19)
                assert n < base + 4 * (36 - PD)
                n = S.seq([f"v_add_u32 v{V_RD + j}, s{S_R1}, v{V_RD + j}" for j in (4, 5)], base + 4 * (36 - PD))
                assert n < base + 144
            x0, x1 = opt.get("xr0", 54), opt.get("xr1", 84)
            DA = opt.get("d_ahead", 1)
            if DA <= s < NV - DA:
                n = tile(s + DA, base + 2, opt.get("w_stride", 6))
                n_tile = n
            if s >= 2 or s == 1:
                if s == 1 and DA == 2:
                    x0, x1 = opt.get("xr0_1", 66), opt.get("xr1_1", 88)
                    hs = opt.get("head_stride", 3)
                    n = tile(3, tile(2, base + 2, hs), hs)
                if s < NV - 1:
                    xreads(s + 1, 0, base + x0)
                    self.n_xr = xreads(s + 1, 1, base + x1)
                    self.last_xr = ("XR", s + 1, 1)
                if s < NV - 2:
                    xst = opt.get("x_stride", 4) if (s > 1 or DA == 1) else 3
                    n = stage(s + 2, 0, max(n, base + x0 + 20), xst)
                    n = stage(s + 2, 1, max(n, base + x1 + 20), xst)
            if 0 < s < NV - 3:
                n = side(s, max(n - xst + 2, base + 126))
            if s == 2:
                S.place(It(f"buffer_load_dword v0, v{V_ZR}, s[{SRD_FL}:{SRD_FL + 3}], s{S_V} offen sc1", "vm", "pf"), n, base + 142)
            if s in (4, 6):
                S.place(f"s_add_u32 s{S_IT}, s{S_IT}, 1", base + 4)
                n = S.seq([It(f"buffer_store_dword v{V_TG}, v{V_ZR}, s[{SRD_FL}:{SRD_FL + 3}], s{S_V} offen sc1", "vm", "fc"),
                       f"s_mov_b32 s{S_V}, {hx(OOB)}"], n)
                assert n < base + 144
        hs = opt.get("head_stride", 3)
        n = S.seq(self.sj_w(V_QB, 2) + self.sj_w(V_LW, 3), 0) + 1
        n = stage(1, 1, stage(1, 0, n, hs), hs)
        n = tile(1, n, hs)
        x0, x1 = opt.get("xr0_0", 66), opt.get("xr1_0", 84)
        xreads(1, 0, x0); xreads(1, 1, x1)
        n = stage(2, 0, max(n, x0 + 20), hs)
        n = stage(2, 1, max(n, x1 + 20), hs)
        self.n_head = [n]
        side(0, max(n - hs + 2, 130))
        if self.acc_late:
            n = S.seq(self.sj_acc_w(V_CSA + 4, 0) + self.sj_acc_w(V_QA, 1), 40)
            assert n < opt.get("w23_at", 84)
        n = S.seq(self.sj_acc_w(V_QB, 2) + self.sj_acc_w(V_LW, 3), opt.get("w23_at", 84))
        assert n < sj_at[0], n
        for s in range(1, NV - 3):
            n = S.seq(self.sj_acc_w(V_LW, "s"), sj_at[s] - 24)
            assert n < sj_at[s], (s, n, sj_at[s])
        S.seq(self.sj_rows(2, V_QA, V_QE), opt.get("q2_ld", 90 if self.acc_late else 120))
        if self.acc_late:
            n = S.seq(self.sj_acc_q(0, V_QC, V_QD) + self.sj_rows(1, V_QC, V_QD), 10)
            n = S.seq(self.sj_acc_q(2, V_QA, V_QE) + self.sj_rows(3, V_QA, V_QE) + self.sj_acc_q(1, V_QC, V_QD) +
                      [It(f"buffer_load_dword v0, v{V_ZR}, s[{SRD_FL}:{SRD_FL + 3}], s{T + j} offen sc1", "vm", "pf") for j in (1, 2)], max(n + 1, 144 + 20))
            q3 = self.sj_acc_q(3, V_QA, V_QE)
        else:
          q3 = self.sj_acc_q(3, V_QC, V_QD)
          n = S.seq(self.sj_acc_q(1, V_QC, V_QD), opt.get("q1_at", 24))
          n = S.seq(self.sj_rows(3, V_QC, V_QD), max(n + 1, opt.get("q3_ld", 144 + 30)))
          n = S.seq(self.sj_acc_q(2, V_QA, V_QE) +
                  [It(f"buffer_load_dword v0, v{V_ZR}, s[{SRD_FL}:{SRD_FL + 3}], s{T + j} offen sc1", "vm", "pf") for j in (1, 2)], max(n + 1, 144 + opt.get("q2_at", 70)))
        o = [f"v_mov_b32 v{V_QB + j}, -1" for j in range(4)] + [f"v_and_b32 v{V_QA}, 0xff, v{V_L16}",
             It(f"buffer_store_dwordx4 v[{V_QB}:{V_QB + 3}], v{V_QA}, s[{SRD_FL}:{SRD_FL + 3}], s{T} offen sc1", "vm", "pub"),
             f"s_sub_u32 s{T}, 31, s{S_G}", f"s_lshl_b32 s{T}, s{T}, 8",
             It(f"buffer_store_dwordx4 v[{V_QB}:{V_QB + 3}], v{V_QA}, s[{SRD_AG}:{SRD_AG + 3}], s{T} offen sc1", "vm", "pub")]
        n = S.seq(q3 + o + self.sj_finish_rows(), n + 1)
        self.n_pub = n - 288
        assert n < 432
        B13, B14, B15 = 144 * (NV - 3), 144 * (NV - 2), 144 * (NV - 1)
        FC, FM = 28, 42
        ld, chk = self.poll_items("LF_c", f"buffer_load_dwordx4 v[{FC}:{FC + 3}], v{V_L16}, s[{SRD_FL}:{SRD_FL + 3}], s{S_V} offen sc1", FM + 1,
                                  [f"v_min3_u32 v{FM}, v{FC}, v{FC + 1}, v{FC + 2}", f"v_max3_u32 v{FM + 1}, v{FC}, v{FC + 1}, v{FC + 2}",
                                   f"v_min_u32 v{FM}, v{FM}, v{FC + 3}", f"v_max_u32 v{FM + 1}, v{FM + 1}, v{FC + 3}",
                                   f"v_cmp_ne_u32 s[{T + 3}:{T + 4}], s{S_TAG}, v{FM}"],
                                  [f"s_or_b64 vcc, vcc, s[{T + 3}:{T + 4}]"])
        S.thin = False
        n = B15
        for t in range(2):
            for e in range(8):
                m, x = self.dma2(t, e)
                n = self.put_dma(S, m, x, ("D2", t), n + opt.get("d2_stride", 5))
            n = S.seq(self.dma2_adv(t), n + 1)
        self.n_tail = [n - B15]
        n_cs = S.seq([f"s_mov_b32 s{S_V}, {FL_C}", ld] + self.sj_finish_cols(), B13)
        n_rows = S.seq(chk + self.rows_in(), max(n_cs + 1, B13 + opt.get("fc_chk", 70)))
        n = S.seq(self.prefetch_items(), max(n_rows + 1, B14))
        n = S.seq(self.fo2_items(), max(n + 1, adv_end[NV - 1] + 1))
        n = S.seq(self.res_items() + self.tables(), max(n + 1, self.n_xr))
        assert n < B15
        cl, cu = self.cols_in()
        n_cols = S.seq(cl, max(n + 1, B14 + opt.get("cols_at", 120)))
        pi = self.param_items()
        pi[self.par_first].needs.append(("vm", ("sw", "s")))
        n = S.seq(pi[:self.par_split], n_cs + 1)
        n = S.seq(pi[self.par_split:] + self.k_items(), max(n, n_rows) + 1)
        self.n_tail += [n - B14, n_cols - B15]
        n = S.seq(cu, max(n + 1, n_cols + opt.get("cols_lat", 56)))
        self.n_tail.append(n - B15)
        pre, segs = S.emit()
        flat = lambda a, b: [x for s in segs[a:b] for x in s]
        body, body2 = flat(432, 720), flat(720, 1008)
        if body != body2:
            assert len(body) == len(body2)
            for x, y in zip(body, body2):
                if x != y:
                    assert x.startswith("s_waitcnt") and y.startswith("s_waitcnt"), (x, y)
                    cx, cy = dict(re.findall(r"(\w+)\((\d+)\)", x)), dict(re.findall(r"(\w+)\((\d+)\)", y))
                    assert all(k in cy and int(cy[k]) <= int(v) for k, v in cx.items()), (x, y)
        A(pre)
        A(self.st.stamp("tile0"))
        A(flat(0, 144))
        A(self.st.stamp("step0"))
        cuts = [144] + sorted(self.opt.get("cuts", [])) + [432]
        for a, b in zip(cuts, cuts[1:]):
            A(flat(a, b))
            A(self.st.stamp("step2" if b == 432 else f"c{b}"))
        A(".p2align 5")
        A("LF_loop:")
        abl = self.opt.get("abl", "")
        if abl:
            def keep(l):
                if l.startswith("ds_read"): return "W" not in abl
                if l.startswith("buffer_load") and l.endswith("lds"): return "D" not in abl
                if re.match(r"s_\w+ m0,", l): return "D" not in abl
                if l.startswith("buffer_load_dwordx4"): return "X" not in abl
                if l.startswith("buffer_load_dword "): return "P" not in abl
                if l.startswith("s_barrier"): return "B" not in abl
                return True
            body2 = [l if keep(l) else "s_nop 0" for l in body2]
        A(body2)
        A(f"s_cmp_lt_u32 s{S_IT}, 5")
        A("s_cbranch_scc1 LF_loop")
        A(self.st.stamp("loop12"))
        A(flat(B13, B14))
        A(self.st.stamp("step13"))
        A(flat(B14, B15))
        A(self.st.stamp("step14"))
        A(flat(B15, 144 * NV))
        bad = hazard.check(body2 + body2)
        assert not bad, bad
        self.over1 = S.over

    def transition(self):
        A = self.A
        T = S_T
        vm = self.vm
        A(self.st.stamp("loopend"))
        lg = self.lg
        p = lambda x: f"v[{x}:{x + 1}]"
        SB = [44, 12]

        def st_read(b):
            for j in range(2):
                d = SB[b & 1] + 4 * j
                A(f"ds_read_b128 v[{d}:{d + 3}], v0 offset:{TB_S2 + 32 * b + 16 * j}"); lg.issue(("st", b))
        st_read(0); st_read(1)
        for b in range(4):
            first = True
            for sb in range(2):
                cf, k = par(sb, P_CF), 52 + 2 * sb
                l1, l2, l3, l4 = [], [], [], []
                for r in range(4):
                    d, st = uu(sb, 4 * r + b), SB[b & 1] + 2 * r
                    a_re, a_im, s = accS(0, sb, b).i + r, accS(1, sb, b).i + r, r & 1
                    l1.append(f"v_pk_mul_f32 {p(d)}, {p(cf)}, {p(a_re - s)} op_sel:[0,{s}] op_sel_hi:[1,{s}]")
                    l2.append(f"v_pk_fma_f32 {p(d)}, {p(cf)}, {p(a_im - s)}, {p(d)} op_sel:[1,{s},0] op_sel_hi:[0,{s},1] neg_lo:[1,0,0]")
                    l3.append(f"v_pk_fma_f32 {p(d)}, {p(k)}, {p(st)}, {p(d)} op_sel_hi:[1,0,1] neg_lo:[0,1,0] neg_hi:[0,1,0]")
                    l4.append(f"v_pk_mul_f32 {p(d)}, {p(d)}, {p(st)} op_sel:[0,1]")
                A(l1); A(l2)
                if first:
                    A(waitcnt(None, lg.need(("st", b))))
                first = False
                A(l3); A(l4)
            if b < 2:
                st_read(b + 2)
        CB = [44, 48, 12, 16]
        vc0, vc6 = par(0, P_CF), par(0, P_CF) + 1
        A(f"v_and_b32 v0, 15, v{V_LANE}")
        A(f"v_lshl_add_u32 v0, v0, 5, s{S_LX}")
        A(f"v_and_b32 v{vc6}, 48, v{V_LANE}")
        A(f"s_lshl_b32 s{T}, s{S_odd}, 6")
        A(f"s_add_u32 s{T}, s{T}, s{S_LX}")
        A(f"s_mul_i32 s{T + 1}, s{S_odd}, 384")
        A(f"s_sub_u32 s{T + 1}, s{S_LX}, s{T + 1}")
        A(f"v_add_u32 v{vc0}, s{T}, v{vc6}")
        A(f"v_add_u32 v{vc6}, s{T + 1}, v{vc6}")

        def cb_read(b):
            A(f"ds_read_b64 {p(CB[b] + 2)}, v0 offset:{TB_S1 + 8 * b}"); lg.issue(("cb", b))

        def cs_read(t, jb, d):
            A(f"ds_read_b128 v[{d}:{d + 3}], v{vc0 if jb < 6 else vc6} offset:{TB_CS + 448 * t + 64 * jb}"); lg.issue(("cs", t, jb))
        cb_read(0); cb_read(1)
        Q0, Q1 = 120, 124
        cur = [uu(0, 0), uu(1, 0)]
        for tau in range(1, 16):
            dst = Q0 if tau & 1 else Q1
            A(interleave(*[cmul_add(dst + 2 * sb, par(sb, P_L1), cur[sb], uu(sb, tau)) for sb in range(2)]))
            cur = [dst, dst + 2]
        g0, g1, g2, g3, PQ = Q0, Q1, 12, 16, 52
        A([f"v_mov_b64 v[{g2 + j}:{g2 + j + 1}], v[{g0 + j}:{g0 + j + 1}]" for j in (0, 2)])
        A(f"s_sub_u32 s{T}, 31, s{S_G}")
        A(f"s_lshl_b32 s{T}, s{T}, 8")
        A([f"v_permlane32_swap_b32 v{g0 + j}, v{g2 + j}" for j in range(4)])
        A([f"v_mov_b64 v[{g1 + j}:{g1 + j + 1}], v[{g0 + j}:{g0 + j + 1}]" for j in (0, 2)])
        A([f"v_mov_b64 v[{g3 + j}:{g3 + j + 1}], v[{g2 + j}:{g2 + j + 1}]" for j in (0, 2)])
        A([f"v_permlane16_swap_b32 v{g0 + j}, v{g1 + j}" for j in range(4)])
        A([f"v_permlane16_swap_b32 v{g2 + j}, v{g3 + j}" for j in range(4)])
        for prev, nx in [(g0, g1), (g1, g2), (g2, g3)]:
            A(interleave(*[cmul_add(nx + 2 * sb, par(sb, P_L16), prev + 2 * sb, nx + 2 * sb) for sb in range(2)]))
        A("s_mov_b64 exec, 0xffff")
        A(f"buffer_store_dwordx4 v[{g3}:{g3 + 3}], v{V_L16}, s[{SRD_AG}:{SRD_AG + 3}], s{T} offen sc1"); vm.issue("agg")
        A(f"v_mov_b64 v[{PQ}:{PQ + 1}], 0")
        A(f"v_mov_b64 v[{PQ + 2}:{PQ + 3}], 0")
        for src in (g0, g1, g2):
            A("s_lshl_b64 exec, exec, 16")
            A(f"v_mov_b64 v[{PQ}:{PQ + 1}], v[{src}:{src + 1}]")
            A(f"v_mov_b64 v[{PQ + 2}:{PQ + 3}], v[{src + 2}:{src + 3}]")
        A("s_mov_b64 exec, -1")
        A(self.st.stamp("publish"))
        cb_read(2); cb_read(3)
        cs_read(0, 0, 120); cs_read(0, 1, 124)
        A(f"s_mov_b32 s{T}, s{S_AOWN}")
        A(f"s_lshr_b32 s{T + 2}, s{S_nt}, 1")
        A(f"s_sub_u32 s{T + 2}, s{T + 2}, s{S_DOWN}")
        A(f"s_add_u32 s{T + 2}, s{T + 2}, 24")
        A(f"s_lshl_b32 s{T + 2}, s{T + 2}, 3")
        A(f"s_add_u32 s{T + 2}, s{T + 2}, s{S_odd}")
        A(f"s_lshl_b32 s{T + 2}, s{T + 2}, 9")
        A(f"s_add_u32 s{T + 2}, s{T + 2}, s{T}")
        c0 = -2.0 * LOG2E * math.sqrt(2.0 / math.pi)
        A(waitcnt(None, lg.need(("cb", 3))))
        A([f"v_mul_f32 v{c}, v{c + 3}, v{c + 3}" for c in CB])
        A([f"v_mul_f32 v{c + 1}, {hx(f2u(c0))}, v{c + 3}" for c in CB])
        A([f"v_rcp_f32 v{c + 3}, v{c}" for c in CB])
        A([f"v_mul_f32 v{c}, v{c}, v{c + 1}" for c in CB])
        A([f"v_mul_f32 v{c}, {hx(f2u(0.044715))}, v{c}" for c in CB])
        demean = lambda x, cs, b: f"v_pk_fma_f32 {p(x)}, {p(cs)}, {p(CB[b] + 2)}, {p(x)} op_sel_hi:[1,0,1] neg_lo:[0,1,0] neg_hi:[0,1,0]"

        def demean_block(t, jb, cs):
            A(waitcnt(None, lg.need(("cs", t, jb))))
            A([demean(accF(t, jb, b).i + j, cs + j, b) for b in range(4) for j in (0, 2)])
        CSQ = {(0, 2): 192, (0, 3): 196, (1, 2): 200, (1, 3): 204, (0, 4): 176, (0, 5): 180, (1, 4): 184, (1, 5): 188, (0, 6): 248, (1, 6): 252}
        demean_block(0, 0, 120); cs_read(1, 0, 120)
        demean_block(0, 1, 124); cs_read(1, 1, 124)
        demean_block(1, 0, 120)
        demean_block(1, 1, 124)
        Z = 120
        GT, UT = 224, 232

        def gelu(blk, out):
            g, u, cb = [], [], []
            gq, uq = [accF(0, jb, b) for jb, b in blk], [accF(1, jb, b) for jb, b in blk]
            ag = gq[0].t == "a"
            for h in range(2):
                cb += [CB[blk[h][1]]] * 2
                if ag:
                    A([f"v_accvgpr_read_b32 v{GT + 4 * h + r}, a{gq[h].i + r}" for r in range(4)])
                    g += [GT + 4 * h, GT + 4 * h + 2]; u += [UT + 4 * h, UT + 4 * h + 2]
                else:
                    g += [gq[h].i, gq[h].i + 2]; u += [uq[h].i, uq[h].i + 2]
            if ag:
                A(waitcnt(None, lg.need(*[("cs", t, jb) for t in range(2) for jb, b in blk])))
                A([demean(g[j], CSQ[(0, blk[j >> 1][0])] + 2 * (j & 1), blk[j >> 1][1]) for j in range(4)])
            A([f"v_pk_mul_f32 {p(Z + 2 * j)}, {p(g[j])}, {p(g[j])}" for j in range(4)])
            A([f"v_pk_fma_f32 {p(Z + 2 * j)}, {p(Z + 2 * j)}, {p(cb[j])}, {p(cb[j])} op_sel:[0,0,1] op_sel_hi:[1,0,1]" for j in range(4)])
            A([f"v_pk_mul_f32 {p(Z + 2 * j)}, {p(Z + 2 * j)}, {p(g[j])}" for j in range(4)])
            A([f"v_exp_f32 v{Z + j}, v{Z + j}" for j in range(8)])
            if ag:
                for h in range(2):
                    A([f"v_accvgpr_read_b32 v{UT + 4 * h + r}, a{uq[h].i + r}" for r in range(4)])
                A([demean(u[j], CSQ[(1, blk[j >> 1][0])] + 2 * (j & 1), blk[j >> 1][1]) for j in range(4)])
            A([f"v_pk_fma_f32 {p(Z + 2 * j)}, {p(Z + 2 * j)}, {p(cb[j] + 2)}, {p(cb[j] + 2)} op_sel:[0,1,1] op_sel_hi:[1,1,1]" for j in range(4)])
            A([f"v_rcp_f32 v{Z + j}, v{Z + j}" for j in range(8)])
            A([f"v_pk_mul_f32 {p(u[j])}, {p(u[j])}, {p(g[j])}" for j in range(4)])
            A([f"v_pk_mul_f32 {p(u[j])}, {p(u[j])}, {p(Z + 2 * j)}" for j in range(4)])
            A([f"v_cvt_pk_bf16_f32 v{out + j}, v{u[j]}, v{u[j] + 1}" for j in range(4)])

        A(f"s_lshl_b32 s{T + 3}, s{S_nt}, 2")
        assert V_T2 + 2 == par(1, P_CF)
        A(f"v_mov_b32 v{V_T2 + 2}, s{T + 3}")
        A(f"v_mov_b32 v{V_T2 + 3}, s{S_TAG}")

        def emit_fa(where):
            if where != self.opt.get("fa_at", "horner"):
                return
            A(self.st.stamp("prefa"))
            A(waitcnt(vm.need("act")))
            A("s_mov_b64 exec, 1")
            A(f"buffer_store_dword v{V_T2 + 3}, v{V_T2 + 2}, s[{SRD_FL}:{SRD_FL + 3}], s{S_FA} offen sc1"); vm.issue("fa")
            A("s_mov_b64 exec, -1")
            A(self.st.stamp("faflag"))

        LB = 192
        va, vx = 0, Z
        lb_loads = [f"buffer_load_dwordx4 v[{LB + 4 * e}:{LB + 4 * e + 3}], v{va}, s[{SRD_AG}:{SRD_AG + 3}], 0 offen offset:{e * 256} sc1" for e in range(8)]
        for pp in range(3):
            for b in range(4):
                o = own(pp, b)
                gelu([(2 * pp, b), (2 * pp + 1, b)], o)
                A(f"buffer_store_dwordx4 v[{o}:{o + 3}], v{V_L16}, s[{SRD_A2}:{SRD_A2 + 3}], s{T} offen offset:{b * 1024} sc1"); vm.issue("act")
            if pp < 2:
                A(f"s_add_u32 s{T}, s{T}, 4096")
            for (t, jb), d in CSQ.items():
                if (pp == 0 and jb < 4) or (pp == 1 and jb >= 4):
                    cs_read(t, jb, d)
            if pp == 0:
                A(waitcnt(vm.need(("D2", 0), ("D2", 1), "res")))
                A("s_barrier")
                for e in range(8):
                    m, ld = self.dma2(2, e)
                    if m:
                        A(m); A("s_nop 0")
                    A(ld); vm.issue(("D2", 2))
                for x in self.dma2_adv(2):
                    A(x)
                for t in range(2):
                    for jb in (2, 3):
                        demean_block(t, jb, CSQ[(t, jb)])
            if pp == 1:
                A(f"v_lshrrev_b32 v{va}, 4, v{V_LANE}")
                A(f"v_and_b32 v{vx}, 15, v{V_LANE}")
                A(f"v_lshlrev_b32 v{va}, 11, v{va}")
                A(f"v_lshl_add_u32 v{va}, v{vx}, 4, v{va}")
                A(f"s_sub_u32 s{T + 3}, 32, s{S_G}")
                A(f"s_lshl_b32 s{T + 3}, s{T + 3}, 8")
                A(f"v_add_u32 v{va}, s{T + 3}, v{va}")
                for x in lb_loads:
                    A(x); vm.issue("lb")
        for b2 in range(2):
            o = 240 + 4 * b2
            gelu([(6, 2 * b2), (6, 2 * b2 + 1)], o)
            for h in range(2):
                A(f"buffer_store_dwordx2 v[{o + 2 * h}:{o + 2 * h + 1}], v{V_L8}, s[{SRD_A2}:{SRD_A2 + 3}], s{T + 2} offen offset:{(2 * b2 + h) * 1024} sc1"); vm.issue("hst")
        A(self.st.stamp("gelu"))
        emit_fa("gelu")
        A(f"s_mov_b32 s{T + 4}, 0")
        A(waitcnt(vm.need("lb")))
        A("LF_lbchk:")
        A(f"v_max_u32 v{vx}, v{LB}, v{LB + 1}")
        for j in range(2, 32, 2):
            A(f"v_max3_u32 v{vx}, v{vx}, v{LB + j}, v{LB + j + 1}")
        A(f"v_cmp_eq_u32 vcc, -1, v{vx}")
        A(f"s_add_u32 s{T + 4}, s{T + 4}, 1")
        A("s_cbranch_vccnz LF_lbspin")
        A("LF_lbok:")
        self.lb_loads = lb_loads
        for e in range(6, -1, -1):
            A(interleave(*[cmul_add(LB + 4 * e + 2 * sb, par(sb, P_L64), LB + 4 * (e + 1) + 2 * sb, LB + 4 * e + 2 * sb) for sb in range(2)]))
        Sx, St = LB + 4, LB + 8
        A(interleave(*[cmul(Sx + 2 * sb, par(sb, P_L512Q), LB + 2 * sb) for sb in range(2)]))
        for swp in ["v_permlane32_swap_b32", "v_permlane16_swap_b32"]:
            A([f"v_mov_b64 v[{St + j}:{St + j + 1}], v[{Sx + j}:{Sx + j + 1}]" for j in (0, 2)])
            A("s_nop 1")
            A([f"{swp} v{Sx + j}, v{St + j}" for j in range(4)])
            A([f"v_pk_add_f32 v[{Sx + j}:{Sx + j + 1}], v[{Sx + j}:{Sx + j + 1}], v[{St + j}:{St + j + 1}]" for j in (0, 2)])
        A(interleave(*[cmul_add(PQ + 2 * sb, par(sb, P_L16Q), Sx + 2 * sb, PQ + 2 * sb) for sb in range(2)]))
        emit_fa("horner")
        cur = [PQ, PQ + 2]
        for tau in range(16):
            A(interleave(*[cmul_add(uu(sb, tau), par(sb, P_L1), cur[sb], uu(sb, tau)) for sb in range(2)]))
            cur = [uu(0, tau), uu(1, tau)]
        vw, vrd, q, i = V_T + 2, V_T + 3, V_T2, V_T2 + 1
        emit_fa("p2")
        A(f"v_and_b32 v{i}, 15, v{V_LANE}")
        A(f"v_lshrrev_b32 v{q}, 4, v{V_LANE}")
        A(f"s_add_u32 s{T + 3}, s{S_DB}, {L_H}")
        t0, t1 = V_T, V_T + 1
        A(f"v_lshrrev_b32 v{t0}, 2, v{i}")
        A(f"v_xor_b32 v{t0}, v{t0}, v{q}")
        A(f"v_lshl_add_u32 v{vw}, v{i}, 5, s{T + 3}")
        A(f"v_lshl_add_u32 v{vw}, v{t0}, 3, v{vw}")
        k = 0
        for ri in range(2):
            ng = "-" if ri else ""
            cv, wr = [], []
            for b in range(4):
                for sb in range(2):
                    d = V_FR + 2 * k; k += 1
                    cv.append(f"v_cvt_pk_bf16_f32 v{d}, {ng}v{uu(sb, b) + ri}, {ng}v{uu(sb, 4 + b) + ri}")
                    cv.append(f"v_cvt_pk_bf16_f32 v{d + 1}, {ng}v{uu(sb, 8 + b) + ri}, {ng}v{uu(sb, 12 + b) + ri}")
                    wr.append(f"ds_write_b64 v{vw}, v[{d}:{d + 1}] offset:{(ri * 4 + b) * 1024 + sb * 512}")
            A(cv); A(wr)
            for x in wr:
                self.lg.issue("hwr")
        A(f"v_lshlrev_b32 v{t0}, 1, v{q}")
        A(f"v_and_b32 v{t0}, 2, v{t0}")
        A(f"v_xor_b32 v{t0}, v{t0}, v{i}")
        A(f"v_lshl_add_u32 v{vrd}, v{t0}, 3, s{T + 3}")
        A(f"v_lshl_add_u32 v{vrd}, v{q}, 8, v{vrd}")
        A(f"v_xor_b32 v{vw}, 8, v{vrd}")
        for ri in range(2):
            for b in range(4):
                for h in range(2):
                    d = V_FR + (ri * 4 + b) * 4 + 2 * h
                    A(f"ds_read_b64_tr_b16 v[{d}:{d + 1}], v{vw if h else vrd} offset:{(ri * 4 + b) * 1024 + h * 128}")
                    self.lg.issue(("hrd", ri, b))
        A(f"v_lshrrev_b32 v{t0}, 2, v{V_LANE}")
        A(f"v_and_b32 v{t1}, 7, v{t0}")
        A(f"v_lshlrev_b32 v{t0}, 8, v{t0}")
        A(f"v_lshl_add_u32 v{t0}, v{t1}, 5, v{t0}")
        A(f"v_and_b32 v{t1}, 3, v{V_LANE}")
        A(f"v_lshl_add_u32 v{V_RF}, v{t1}, 3, v{t0}")
        for jl in range(1, 8):
            A(f"v_xor_b32 v{V_RF + jl}, {jl * 32}, v{V_RF}")
        A(f"v_and_b32 v{V_FLG + 1}, 7, v{V_LANE}")
        A(f"v_lshlrev_b32 v{V_FLG + 1}, 2, v{V_FLG + 1}")
        A(f"s_lshl_b32 s{S_HO}, s{S_nt}, 13")
        A(f"s_add_u32 s{S_HO}, s{S_HO}, s{S_ASSM}")
        A(f"s_add_u32 s{S_U4}, s{S_HO}, 4096")

    def gemm2(self):
        A, PD, opt = self.A, self.PD, self.opt
        T = S_T
        TK, PM = opt.get("TK", 3), opt.get("PM", 2)
        assert PM <= TK <= 3
        G = []
        for s in range(NSTEP - PM):
            G += [(s, kb, jl) for kb in range(4) for jl in range(0 if s < NSTEP - TK else 2, 8)]
        pair_end = {}
        for d in (1, 2, 3):
            G += [(s, kb, jl) for s in range(NSTEP - PM, NSTEP) for kb in range(4) for jl in (2 * d, 2 * d + 1)]
            pair_end[d] = len(G)
        G += [(s, kb, jl) for s in range(NSTEP - TK, NSTEP) for kb in range(4) for jl in (0, 1)]
        first_s, first_a, last_a = {}, {}, {}
        for idx, (s, kb, jl) in enumerate(G):
            first_s.setdefault(s, idx); first_a.setdefault((s, kb), idx); last_a[(s, kb)] = idx
        bar_at = {first_s[t] - PD: t for t in range(1, NSTEP)}
        S = Stream(self.vm, self.lg)
        S.strict = bool(self.opt.get('strict', 0))
        for idx in range(0, len(G), 2):
            s, kb, jl = G[idx]
            assert G[idx + 1] == (s, kb, jl + 1)
            needs = [("lg", ("W2", idx)), ("lg", ("W2", idx + 1))]
            if first_a[(s, kb)] == idx and not (s == 0 and kb < 3):
                needs.append(("vm", ("A", s, kb)))
            if idx in bar_at:
                needs.append(("vm", ("D2", bar_at[idx])))
            for j, (h, b) in enumerate(zig(idx // 2)):
                w = A_W2 + 4 * ((idx + h) % 8)
                c = acc2(jl + h, b)
                sc = "0" if (s == 0 and kb == 0) else f"v[{c}:{c + 3}]"
                S.mfma(f"v_mfma_f32_16x16x32_bf16 v[{c}:{c + 3}], a[{w}:{w + 3}], {self.areg(s, kb, b).r(4)}, {sc}", needs if j == 0 else (), idx in bar_at and j == 0)
        NG = len(G)
        RXr = lambda k, b: V_OWN + 16 * k + 4 * b
        rx_m = {}
        for k in range(3):
            for b in range(4):
                for jl in range(2):
                    c, sel = acc2(jl, b), V_SEL + (2 if jl == 0 else 0)
                    n = S.mfma(f"v_mfma_f32_16x16x32_bf16 v[{c}:{c + 3}], v[{sel}:{sel + 3}], v[{RXr(k, b)}:{RXr(k, b) + 3}], v[{c}:{c + 3}]",
                               [("vm", ("RX", k, b))] if jl == 0 else ())
                    rx_m.setdefault(k, n)
        A(self.st.stamp("g2start"))
        for idx in range(PD):
            for ins in self.rd2(idx, *G[idx]):
                A(ins); self.lg.issue(("W2", idx))
        last_rf = {}
        for idx in range(NG - PD):
            s, kb, jl = G[idx + PD]
            for i, ins in enumerate(self.rd2(idx + PD, s, kb, jl)):
                n = S.force(It(ins, "lg", ("W2", idx + PD)), 4 * (idx & ~1) + RD_GAPS[2 * (idx & 1) + i])
            last_rf[(s, jl)] = n
        for s in (1, 3, 5):
            for jl in range(8):
                S.place(f"v_xor_b32 v{V_RF + jl}, 0x10000, v{V_RF + jl}", last_rf[(s, jl)], last_rf[(s, jl)] + 3)
        n = 0
        for ri in range(2):
            for b in range(4):
                d = V_FR + (ri * 4 + b) * 4
                x = It(f"buffer_store_dwordx4 v[{d}:{d + 3}], v{V_L16}, s[{SRD_A2}:{SRD_A2 + 3}], s{S_U4 if ri else S_HO} offen offset:{b * 1024} sc1",
                       "vm", "hst", needs=[("lg", ("hrd", ri, b))])
                n = S.place(x, n) + opt.get("hst_gap", 2)
        ld, chk = self.poll_items("LF_fa", f"buffer_load_dword v{V_FLG}, v{V_FLG + 1}, s[{SRD_FL}:{SRD_FL + 3}], s{S_FA} offen sc1", V_FLG)
        n = S.place(ld, max(n, opt.get("fa_ld", 30)))
        p_fa = S.seq(chk, max(n + 1, opt.get("fa_chk", 60)))
        x = self.st.stamp("fapoll")
        if x:
            S.place(It(x), p_fa + 1)
        for t in range(1, NSTEP):
            x = self.st.stamp(f"s{t}")
            if x:
                S.place(It(x), 4 * first_s[t])
        fs_ld, fs_chk = self.poll_items("LF_fs", f"buffer_load_dword v{V_FLG}, v{V_FLG + 1}, s[{SRD_FL}:{SRD_FL + 3}], s{S_FA} offen offset:32 sc1", V_FLG)
        Q = []
        for s in range(NSTEP):
            for kb in range(4):
                if s == 0 and kb < 3:
                    continue
                early = 4 * last_a[(s - 3, kb)] + 4 if s >= 3 else 0
                Q.append((4 * first_a[(s, kb)], "A", s, kb, early))
        for t in range(3, NSTEP):
            early = 4 * (first_s[t - 2] - PD)
            Q.append((4 * (first_s[t] - PD), "D", t, 0, early))
        Q.sort(key=lambda x: x[0])
        rate, burst = opt.get("rate", 5), opt.get("burst", 4)
        n = p_fa + 1
        slack = []
        q, i = V_T2, V_T2 + 1
        pos = {}
        for need, kind, a, b_, early in Q:
            step = rate if need - n > opt.get("ahead", 128) else (burst if need - n > 80 else opt.get("burst0", 2))
            n = max(n, early)
            if kind == "A":
                if (a, b_) == (NF - 1, 0):
                    n = S.seq(fs_chk, n) + 1
                lds_ = self.a_loads(a, b_)
                for j, x in enumerate(lds_):
                    n = S.place(It(x, "vm", ("A", a, b_)), n)
                    last = n
                    n += step if len(lds_) == 4 else (step + (j & 1)) // 2
                slack.append((kind, a, b_, need - last))
                n = max(n, S.seq(self.a_adv(a, b_), last + 1))
                pos[(a, b_)] = n
                if (a, b_) == tuple(opt.get("fs_at", (2, 3))):
                    p_fs = S.place(It([f"buffer_store_dword v{V_T2 + 3}, v{V_T2 + 2}, s[{SRD_FL}:{SRD_FL + 3}], s{S_FA} offen offset:32 sc1"], "vm", "fs", needs=[("vm", "hst")]), n)
                    n = p_fs + 1
                if (a, b_) == (NF - 2, opt.get("fs_kb", 0)):
                    n = S.place(fs_ld, n) + 1
            else:
                for e in range(8):
                    m, ldi = self.dma2(a, e)
                    n = self.put_dma(S, m, ldi, ("D2", a), n)
                    last = n
                    n += step
                slack.append((kind, a, 0, need - last))
                n = max(n, S.seq(self.dma2_adv(a), last + 1))
                pos[("D", a)] = n
        self.slack = slack
        assert min(x[3] for x in slack) > 1, slack
        t0, t1, t2, t3 = V_T2 + 4, V_T2 + 5, V_T2 + 6, V_T2 + 7
        o = [f"s_and_b32 s{T}, s{S_W}, 1", f"s_lshl_b32 s{T}, s{T}, 1", f"s_add_u32 s{T}, s{T}, s{S_sp}", f"s_lshl_b32 s{T}, s{T}, 5",
             f"v_lshrrev_b32 v{t0}, 3, v{V_LANE}", f"v_and_b32 v{t1}, 7, v{V_LANE}"]
        for e in range(8):
            o += [f"v_add_u32 v{t2}, {8 * e}, v{t0}",
                  f"v_bfe_u32 v{t3}, v{t2}, 1, 3",
                  f"v_xor_b32 v{t3}, v{t3}, v{t1}",
                  f"v_lshlrev_b32 v{t3}, 4, v{t3}",
                  f"v_add_u32 v{t2}, s{T}, v{t2}",
                  f"v_and_b32 v{t2}, 127, v{t2}",
                  f"v_lshl_add_u32 v{V_SO2 + e}, v{t2}, 11, v{t3}"]
            if e & 3:
                o.append(f"v_subrev_u32 v{V_SO2 + e}, {(e & 3) * 1024}, v{V_SO2 + e}")
        o += [f"v_lshrrev_b32 v{t0}, 1, v{i}", f"v_xor_b32 v{t0}, v{t0}, v{q}", f"v_lshlrev_b32 v{t0}, 4, v{t0}",
              f"v_lshl_add_u32 v{V_RS}, v{i}, 7, v{t0}", f"v_xor_b32 v{V_RS + 1}, 64, v{V_RS}",
              f"v_add_u32 v{V_RS + 2}, 0x10000, v{V_RS}", f"v_add_u32 v{V_RS + 3}, 0x10000, v{V_RS + 1}"]
        o += [f"v_mov_b32 v{V_SEL + j}, 0" for j in (0, 1, 4, 5)]
        o += [f"v_lshlrev_b32 v{t0}, 2, v{q}", f"v_sub_u32 v{t0}, v{i}, v{t0}",
              f"v_and_b32 v{t1}, 1, v{t0}", f"v_lshlrev_b32 v{t1}, 4, v{t1}", f"v_mov_b32 v{t2}, 0x3f80", f"v_lshlrev_b32 v{t1}, v{t1}, v{t2}",
              f"v_lshrrev_b32 v{t0}, 1, v{t0}",
              f"v_cmp_eq_u32 s[{T + 1}:{T + 2}], 0, v{t0}", f"v_cmp_eq_u32 s[{T + 3}:{T + 4}], 1, v{t0}", f"v_mov_b32 v{t2}, 0", f"v_mov_b32 v{t3}, 0",
              f"v_cndmask_b32 v{V_SEL + 2}, v{t2}, v{t1}, s[{T + 1}:{T + 2}]", f"v_cndmask_b32 v{V_SEL + 3}, v{t2}, v{t1}, s[{T + 3}:{T + 4}]"]
        n = S.seq(o, p_fa + 2)
        assert n < pos[("D", NF - 1)] - 64
        ST, DKr, XR, DK, NM, XT = V_OWN, V_OWN + 8, V_OWN + 12, V_OWN + 28, V_OWN + 36, V_OWN + 40
        n = max(n + 1, 4 * first_s[1], p_fs + 1)
        o = [f"v_lshl_add_u32 v{t3}, v{i}, 5, s{S_LX}"]
        o += [It(f"ds_read_b128 v[{ST + 4 * j}:{ST + 4 * j + 3}], v{t3} offset:{TB_S1 + 16 * j}", "lg", "xr") for j in range(2)]
        o += [f"v_lshl_add_u32 v{t3}, v{i}, 6, s{S_LX}", f"v_lshl_add_u32 v{t3}, v{q}, 3, v{t3}"]
        o += [It(f"ds_read_b64 v[{XR + (b * 2 + jl) * 2}:{XR + (b * 2 + jl) * 2 + 1}], v{t3} offset:{TB_X + b * 1024 + jl * 32}", "lg", "xr") for b in range(4) for jl in range(2)]
        o += [f"v_accvgpr_read_b32 v{DKr + j}, a{A_RES + j}" for j in range(4)]
        n = S.seq(o, n) + 1
        o = []
        for j in range(4):
            o += [f"v_lshlrev_b32 v{DK + 2 * j}, 16, v{DKr + j}", f"v_and_b32 v{DK + 2 * j + 1}, 0xffff0000, v{DKr + j}"]
        o += [It(f"v_mul_f32 v{NM + b}, v{ST + 2 * b}, v{ST + 2 * b + 1}", needs=[("lg", "xr")] if b == 0 else ()) for b in range(4)]
        Rr = lambda jl, b: V_FR + (jl * 4 + b) * 4
        first = True
        for b in range(4):
            for jl in range(2):
                d = XR + (b * 2 + jl) * 2
                for r in range(4):
                    un = f"v_and_b32 v{XT}, 0xffff0000, v{d + (r >> 1)}" if r & 1 else f"v_lshlrev_b32 v{XT}, 16, v{d + (r >> 1)}"
                    o += [It(un, needs=[("lg", "xr")] if first else ()),
                          f"v_fma_f32 v{XT + 1}, v{XT}, v{ST + 2 * b + 1}, -v{NM + b}",
                          f"v_fma_f32 v{Rr(jl, b) + r}, v{XT + 1}, v{DK + 4 * jl + r}, v{XT}"]
                    first = False
        vo, fz = t0, t1
        o += [f"v_lshlrev_b32 v{vo}, 14, v{i}", f"v_lshl_add_u32 v{vo}, v{q}, 4, v{vo}", f"v_mov_b32 v{fz}, 0",
              f"s_lshl_b32 s{S_U0}, s{S_U0}, 7", f"s_lshl_b32 s{T}, s{S_G}, 18", f"s_add_u32 s{S_U0}, s{S_U0}, s{T}",
              f"s_lshl_b32 s{S_U1}, s{S_tile}, 11", f"s_lshl_b32 s{T}, s{S_W}, 7", f"s_add_u32 s{S_U1}, s{S_U1}, s{T}", f"s_add_u32 s{S_U1}, s{S_U1}, {FL_P}",
              f"s_mul_i32 s{S_U2}, s{S_tile}, {12 * 16384}", f"s_lshl_b32 s{T}, s{S_W}, 12", f"s_add_u32 s{S_U2}, s{S_U2}, s{T}"]
        n = S.seq(o, n + 8)
        o = []
        for d in (1, 2, 3):
            sd, sf = T + 2 * (d - 1), T + 2 * (d - 1) + 1
            o += [f"s_add_u32 s{sf}, s{S_sp}, {d}", f"s_and_b32 s{sf}, s{sf}, 3",
                  f"s_mul_i32 s{sd}, s{sf}, {3 * 16384}", f"s_add_u32 s{sd}, s{sd}, {(d - 1) * 16384}", f"s_add_u32 s{sd}, s{sd}, s{S_U2}",
                  f"s_lshl_b32 s{sf}, s{sf}, 9", f"s_add_u32 s{sf}, s{sf}, s{S_U1}"]
        o += [f"s_lshl_b32 s{S_U3}, s{S_sp}, 9", f"s_add_u32 s{S_U1}, s{S_U1}, s{S_U3}",
              f"s_mul_i32 s{S_U3}, s{S_sp}, {3 * 16384}", f"s_add_u32 s{S_U2}, s{S_U2}, s{S_U3}",
              f"s_add_u32 s{S_U3}, s{S_U2}, 16384", f"s_add_u32 s{S_U4}, s{S_U2}, 32768"]
        n = S.seq(o, n + 1)
        assert n < 4 * pair_end[1], (n, pair_end)
        end_keep = 4 * NG - 1
        for nm, at in [("send1", 4 * pair_end[1]), ("send2", 4 * pair_end[2]), ("send3", 4 * pair_end[3]), ("keepend", end_keep - 2)]:
            x = self.st.stamp(nm)
            if x:
                S.place(It(x), at)
        sent = {}
        for d in (1, 2, 3):
            n = 4 * pair_end[d] + 6
            for b in range(4):
                c0, c1 = acc2(2 * d, b), acc2(2 * d + 1, b)
                n = S.seq([f"v_cvt_pk_bf16_f32 v{c0}, v{c0}, v{c0 + 1}", f"v_cvt_pk_bf16_f32 v{c0 + 1}, v{c0 + 2}, v{c0 + 3}",
                           f"v_cvt_pk_bf16_f32 v{c0 + 2}, v{c1}, v{c1 + 1}", f"v_cvt_pk_bf16_f32 v{c0 + 3}, v{c1 + 2}, v{c1 + 3}",
                           It(f"buffer_store_dwordx4 v[{c0}:{c0 + 3}], v{V_L16}, s[{SRD_P}:{SRD_P + 3}], s{T + 2 * (d - 1)} offen offset:{b * 1024} sc1", "vm", ("S", d))], n)
            sent[d] = n
        fd = opt.get("flag_delay", 64)
        lim = rx_m[0] - 1
        for d in (1, 2, 3):
            x = It(f"buffer_store_dword v{V_T2 + 3}, v{fz}, s[{SRD_FL}:{SRD_FL + 3}], s{T + 2 * (d - 1) + 1} offen offset:{4 * (d - 1)} sc1", "vm", ("F", d), needs=[("vm", ("S", d))])
            S.place(x, min(sent[d] + fd, lim - 3), lim - 1)
        rx_pos = opt.get("rx", [[98, 56], [40, 0], [0, 0]])
        tail = []
        for k in range(3):
            fr = [V_FLG, V_FLG + 1, t2][k]
            ld, chk = self.poll_items(f"LF_rx{k}", f"buffer_load_dword v{fr}, v{fz}, s[{SRD_FL}:{SRD_FL + 3}], s{S_U1} offen offset:{4 * k} sc1", fr)
            rxl = [It(f"buffer_load_dwordx4 v[{RXr(k, b)}:{RXr(k, b) + 3}], v{V_L16}, s[{SRD_P}:{SRD_P + 3}], s{[S_U2, S_U3, S_U4][k]} offen offset:{b * 1024} sc1", "vm", ("RX", k, b)) for b in range(4)]
            a, c = rx_pos[k]
            if a:
                n = S.place(ld, lim - a, lim - 1)
            else:
                tail.insert(0, ld)
            if c:
                assert a > c
                n = S.seq(chk + rxl, max(n + 1, lim - c))
                assert n < lim
            else:
                tail += [chk[0], It(["s_nop 0"] + chk[-1].text)] + rxl
        for x in tail:
            x.scalar = False
            S.g[lim]["V"].append(x)
        pre, segs = S.emit()
        A(pre)
        for s in segs:
            A(s)
        self.over2 = S.over
        for k in range(3):
            f = [j for j, l in enumerate(A.l) if l.startswith(f"buffer_store_dword v{V_T2 + 3}, v{fz},") and f"offset:{4 * k} " in l]
            assert len(f) == 1 and f[0] < A.l.index(f"LF_rx{k}_back:")
        A(self.st.stamp("rxdone"))
        A("s_nop 6")
        aux = opt.get("out_st", "sc1")
        for b in range(4):
            for jl in range(2):
                c, r = acc2(jl, b), Rr(jl, b)
                A([f"v_pk_add_f32 v[{c + j}:{c + j + 1}], v[{c + j}:{c + j + 1}], v[{r + j}:{r + j + 1}]" for j in (0, 2)])
                A(f"buffer_store_dwordx4 v[{c}:{c + 3}], v{vo}, s[{SRD_O}:{SRD_O + 3}], s{S_U0} offen offset:{jl * 64} {aux}")
            if b < 3:
                A(f"s_add_u32 s{S_U0}, s{S_U0}, 4096")

    def gen(self):
        A = self.A
        self.prologue()
        self.gemm1()
        self.transition()
        self.gemm2()
        self.st.dump(A, S_WSP, S_W, V_OWN, SRD_T)
        A("s_endpgm")
        A("LF_lbspin:")
        A(f"s_cmp_gt_u32 s{S_T + 4}, 0x40000")
        A("s_cbranch_scc1 LF_lbok")
        A(self.lb_loads)
        A("s_waitcnt vmcnt(0)")
        A("s_branch LF_lbchk")
        self.emit_spins()
        A("LF_end:")
        A("s_endpgm")
        A.l, pads, size = post.layout(A.l, "LF_main", "LF_pad", "LF_walked", 4)
        assert len(pads) >= 4
        self.size = size
        bad = hazard.check(A.l)
        assert not bad, "\n".join(bad)
        fresh, prev = False, None
        for l in A.l:
            if re.match(r"s_\w+ m0,", l):
                assert not fresh, l
                fresh = True
            elif l.startswith("buffer_load") and l.endswith(" lds"):
                off = int(re.search(r"offset:(\d+)", l).group(1))
                srdn = re.search(r"s\[(\d+):", l).group(1)
                assert fresh == (off == 0), l
                assert off == 0 or prev == (srdn, off - 1024), l
                fresh, prev = False, (srdn, off)
        if self.opt.get("verbose"):
            print("over1", self.over1, "over2", self.over2, "size", self.size, "pub", self.n_pub, "head", self.n_head, "tail", self.n_tail)
            print("slack", self.slack)
        return dict(text=kernel_head(self.name) + A.text(), desc=kernel_desc(self.name, 512, 256), lds=163840, grid=256, block=256, stamps=self.st.names)


def gen_f(name, opt):
    return F(name, opt).gen()
```

```python
from gen_common import *
import hazard, re

TRANS = ("v_exp_f32", "v_log_f32", "v_rcp_f32", "v_rsq_f32", "v_sqrt_f32", "v_sin_f32", "v_cos_f32")


class It:
    def __init__(self, text, cnt=None, tag=None, needs=(), cost=None):
        self.text = text if isinstance(text, list) else [text]
        self.cnt = cnt
        self.tag = tag
        self.needs = list(needs)
        first = self.text[0]
        self.mem = first.startswith(("ds_", "buffer_", "global_"))
        self.scalar = all(t.startswith("s_") or t.endswith(":") for t in self.text)
        if cost is None:
            cost = sum(0 if t.endswith(":") else (2 if t.split()[0] in TRANS else 1) for t in self.text)
        self.wait = 1 if self.needs else 0
        if re.match(r"buffer_\w+ .*\], s\d+ offen", first):
            cost = 2
        self.cost = cost


class Stream:
    def __init__(self, vm, lg):
        self.g = []
        self.vm, self.lg = vm, lg
        self.over = 0
        self.thin = False
        self.strict = False

    def mfma(self, text, needs=(), bar=False):
        self.g.append(dict(m=text, needs=list(needs), bar=bar, S=[], V=[]))
        return len(self.g) - 1

    def used(self, n):
        g = self.g[n]
        s = sum(i.cost for i in g["S"])
        if n + 1 < len(self.g):
            nx = self.g[n + 1]
            s += (1 if nx["needs"] else 0) + (1 if nx["bar"] else 0)
        v = sum(i.cost for i in g["V"]) + sum(i.wait for i in g["V"][1:])
        if g["V"]:
            s += g["V"][0].wait
        return s, v

    def fits(self, n, it):
        s, v = self.used(n)
        if it.scalar:
            if self.thin and s:
                return False
            if self.strict and any(x.mem and x.cost == 2 for x in self.g[n]["V"]):
                return False
            return s + it.cost + v <= 3
        if it.mem and self.g[n]["V"]:
            return False
        if it.mem and it.cost == 2 and self.strict and s:
            return False
        if self.g[n]["V"]:
            return v + it.cost + it.wait <= 2 and s + v + it.cost + it.wait <= 3
        return it.cost <= 2 and s + it.cost + it.wait <= 3

    def place(self, it, at, last=None):
        if isinstance(it, (str, list)):
            it = It(it)
        end = len(self.g) - 1 if last is None else last
        n = at
        while n <= end and not self.fits(n, it):
            n += 1
        if n > end:
            n = end
            self.over += it.cost
        (self.g[n]["S"] if it.scalar else self.g[n]["V"]).append(it)
        return n

    def force(self, it, n):
        if isinstance(it, (str, list)):
            it = It(it)
        if not self.fits(n, it):
            self.over += it.cost
        (self.g[n]["S"] if it.scalar else self.g[n]["V"]).append(it)
        return n

    def seq(self, items, at, stride=0):
        n = at
        prev = None
        hist = []
        for it in items:
            if isinstance(it, (str, list)):
                it = It(it)
            lo = n
            if prev is not None:
                if it.scalar and not prev.scalar:
                    lo = n + 1
                elif prev.text[-1].split()[0] in TRANS:
                    lo = n + 1
                lo = max(lo, n + stride)
            cur = [hazard.I(t) for t in it.text if not t.endswith(":")]
            for k, (gp, pi) in enumerate(hist[-6:]):
                between = len(hist[-6:]) - 1 - k
                w = max(hazard.need(pi, c) for c in cur)
                if w > between:
                    lo = max(lo, gp + w - between)
            assert lo < len(self.g), "sequence ran off the stream"
            n = self.place(it, lo)
            hist += [(n, c) for c in cur]
            prev = it
        return n

    def dma(self, m0set, load, tag, at):
        ld, ms = It(load, "vm", tag), It(m0set)
        n = max(at, 1)
        while True:
            prev_has_dma = any("lds" in x.text[-1].split() for x in self.g[n - 1]["V"] + self.g[n]["V"])
            m0_here = any("m0" in t for x in self.g[n]["S"] + self.g[n - 1]["S"] for t in x.text)
            thin, self.thin = self.thin, False
            ok = self.fits(n, ld) and self.fits(n - 1, ms)
            self.thin = thin
            if ok and not prev_has_dma and not m0_here:
                break
            n += 1
        self.g[n - 1]["S"].append(ms)
        self.g[n]["V"].append(ld)
        return n

    def _wait(self, needs):
        vmw = self.vm.need(*[t for c, t in needs if c == "vm"]) if any(c == "vm" for c, t in needs) else None
        lgw = self.lg.need(*[t for c, t in needs if c == "lg"]) if any(c == "lg" for c, t in needs) else None
        return waitcnt(vmw, lgw)

    def _emit_item(self, out, it):
        out.extend(self._wait(it.needs))
        out.extend(it.text)
        if it.cnt:
            (self.vm if it.cnt == "vm" else self.lg).issue(it.tag)

    def emit(self):
        pre = self._wait(self.g[0]["needs"]) + (["s_barrier"] if self.g[0]["bar"] else [])
        segs = []
        for n, g in enumerate(self.g):
            out = [g["m"]]
            nx = self.g[n + 1] if n + 1 < len(self.g) else None
            late = False
            if nx:
                tags = {(c, t) for c, t in nx["needs"]}
                late = any((x.cnt, x.tag) in tags for x in g["V"])
            for it in g["S"]:
                self._emit_item(out, it)
            if nx and not late:
                out.extend(self._wait(nx["needs"]))
                if nx["bar"]:
                    out.append("s_barrier")
            for it in g["V"]:
                self._emit_item(out, it)
            if nx and late:
                out.extend(self._wait(nx["needs"]))
                if nx["bar"]:
                    out.append("s_barrier")
            segs.append(out)
        return pre, segs
```

```python
import math, re
from gen_common import *
from sched import *
import hazard, post

LOG2E = 1.4426950408889634
SA, SB_ = 22528, 14336
RB0 = 2 * SA
RA2 = RB0 + 4 * SB_
T_UP, T_SSM = 7168, 14336
ST2 = 32768
L_X = 4 * ST2
L_H = 3 * ST2
NF, NS = 7, 4
NSTEP = NF + NS
M_STATS, M_EPOCH, M_AGG = 0, 0x8000, WS_AGG - WS_STATS
FL_P = WS_FLAG - WS_STATS
FL_A = FL_P + 0x20000
FL_X = FL_P + 0x28000
FL_C = FL_P + 0x2C000
M_CS = FL_P + 0x40000
M_BS = M_CS + 0x38000
M_SIZE = M_BS + 0x2000
OOB = 0x7ff00000
TB_CS, TB_S1, TB_S2, TB_X = 0, 1024, 1536, 4096

SRD_F, SRD_S, SRD_X, SRD_A2, SRD_AG, SRD_D, SRD_C, SRD_P, SRD_FL, SRD_O, SRD_T = 4, 8, 12, 16, 20, 24, 28, 32, 36, 40, 44
S_W, S_G, S_g, S_m, S_odd, S_sp, S_nt, S_tile = range(48, 56)
S_FOFF, S_SOFF, S_XOFF0, S_XOFF1, S_DF, S_DS, S_DST, S_DFS, S_DSS, S_RST, S_IT = range(56, 67)
S_AOFF, S_AEND, S_AOWN, S_ASSM, S_DOFF, S_DOWN, S_DSSM = range(67, 74)
S_DP = 3
S_PF1, S_PFD, S_PFC = 84, 85, 86
S_TAG = 80
S_LX = 78
S_V = 79
S_DBO, S_RBO, S_R0, S_R1 = 12, 13, 14, 15
S_DBASE = 89
S_PFB, S_PFX = 74, 75
S_WSP, S_KP = 76, 0
S_T = 81
S_DB, S_FA, S_HO, S_U0, S_U1, S_U2, S_U3, S_U4 = S_DF, S_DS, S_DST, S_FOFF, S_SOFF, S_XOFF0, S_XOFF1, S_DFS

V_LANE, V_L16 = 1, 2
V_FO, V_SO, V_RD, V_XR = 3, 10, 12, 18
V_PAR = 20
V_T = 44
V_RAW = 56
V_SACC = 64
V_FACC = 128
A_FACC, A_X, A_W, A_TMP = 0, 96, 160, 184
V_CSA, V_BSA, V_XS, V_XQ, V_XP, V_LW, V_P4, V_TG, V_J0, V_J1, V_PW, V_ZR = 20, 28, 29, 30, 31, 32, 36, 37, 38, 39, 40, 41
V_QA, V_QB, V_QC, V_QD, V_QE, V_X0 = 42, 46, 50, 54, 58, 62
A_PAR, A_ST, A_BS = 200, 206, 208
V_L8 = 11
V_FO2, V_RF, V_SO2, V_RS, V_SEL, V_FLG, V_T2 = 3, 12, 20, 28, 32, 38, 40
V_OWN, V_PK, V_FR = 128, 176, 208
A_BUF, A_W2, A_RES = 0, 192, 224
ACC2 = [48 + 4 * i for i in range(20)] + [176 + 4 * i for i in range(8)] + [240 + 4 * i for i in range(4)]

P_L1, P_L16, P_L64, P_L16Q, P_L512Q, P_CF = range(6)


def accF(t, jb, b):
    if jb < 4:
        return R("v", V_FACC + (t * 4 + jb) * 16 + b * 4)
    return R("a", A_FACC + (t * 3 + jb - 4) * 16 + b * 4)


def accS(ri, sb, b):
    return R("v", V_SACC + (b * 2 + sb) * 8 + ri * 4)


def uu(sb, tau):
    r, b = tau >> 2, tau & 3
    return V_SACC - 8 + (b * 2 + sb) * 8 + 2 * r


def par(sb, k):
    return V_PAR + sb * 12 + 2 * k


def acc2(jl, b):
    return ACC2[jl * 4 + b]


def own(p, b):
    return V_OWN + [0, 32, 16][p] + 4 * b


def cmul_add(dst, lam, h, add):
    return [
        f"v_pk_fma_f32 v[{dst}:{dst + 1}], v[{lam}:{lam + 1}], v[{h}:{h + 1}], v[{add}:{add + 1}] op_sel_hi:[1,0,1]",
        f"v_pk_fma_f32 v[{dst}:{dst + 1}], v[{lam}:{lam + 1}], v[{h}:{h + 1}], v[{dst}:{dst + 1}] op_sel:[1,1,0] op_sel_hi:[0,1,1] neg_lo:[1,0,0]",
    ]


def cmul(dst, lam, h):
    return [
        f"v_pk_mul_f32 v[{dst}:{dst + 1}], v[{lam}:{lam + 1}], v[{h}:{h + 1}] op_sel_hi:[1,0]",
        f"v_pk_fma_f32 v[{dst}:{dst + 1}], v[{lam}:{lam + 1}], v[{h}:{h + 1}], v[{dst}:{dst + 1}] op_sel:[1,1,0] op_sel_hi:[0,1,1] neg_lo:[1,0,0]",
    ]


def interleave(*lists):
    out = []
    for i in range(max(len(x) for x in lists)):
        for x in lists:
            if i < len(x):
                out.append(x[i])
    return out


def zig(pair):
    bs = range(4) if pair % 2 == 0 else range(3, -1, -1)
    return [(h, b) for k, b in enumerate(bs) for h in ((0, 1) if k % 2 == 0 else (1, 0))]


RD_GAPS = (0, 1, 3, 4)


def srd_items(d, ptr, off, size):
    A = Asm()
    srd(A, d, ptr, off, size)
    return [It(A.l[:2]), It(A.l[2]), It(A.l[3])]


class F:
    def __init__(self, name, opt):
        self.name, self.opt = name, opt
        self.A = Asm()
        self.vm, self.lg = Cnt("vm", 63), Cnt("lgkm", 15)
        self.PD = 4
        self.st = Stamps(opt.get("diag"), opt.get("kidx", 0), opt.get("stamps", "tile0 loopend gelu g2start s1 s8 keepend rxdone").split())
        self.order = [("S", 0, 0), ("S", 1, 0), ("S", 0, 1), ("S", 1, 1)] + [("F", t, jb) for jb in range(7) for t in range(2)]
        self.spins = []

    def frag(self, f):
        return (f // 18,) + self.order[f % 18]

    def rd1(self, f):
        kk, kind, p, q = self.frag(f)
        w = A_W + 4 * (f % 6)
        if kind == "S":
            return [f"ds_read_b128 a[{w}:{w + 3}], v{V_RD + 2 + kk} offset:{T_SSM + p * 4096 + q * 2048}"]
        off = p * T_UP + (q * 32 if q < 6 else 0)
        a = V_RD + 4 * kk + (0 if q < 6 else 1)
        return [f"ds_read_b64_tr_b16 a[{w + 2 * h}:{w + 2 * h + 1}], v{a} offset:{off + h * 1792}" for h in range(2)]

    def xreg(self, par_, kk, b):
        return A_X + ((par_ * 2 + kk) * 4 + b) * 4

    def dma1(self, n):
        if n < 7:
            m = None if n & 3 else (f"s_add_u32 m0, s{S_DFS}, 4096" if n else f"s_mov_b32 m0, s{S_DFS}")
            return m, f"buffer_load_dwordx4 v{V_FO + n}, s[{SRD_F}:{SRD_F + 3}], s{S_FOFF} offen offset:{(n & 3) * 1024} {self.opt.get('w_aux', '')} lds"
        e = n - 7
        return (None if e else f"s_mov_b32 m0, s{S_DSS}"), f"buffer_load_dwordx4 v{V_SO + e}, s[{SRD_S}:{SRD_S + 3}], s{S_SOFF} offen offset:{e * 1024} {self.opt.get('w_aux', '')} lds"

    def ring_a(self, dst, src):
        return [f"s_add_u32 s{dst}, s{src}, {SA}",
                [f"s_cmp_eq_u32 s{dst}, {RB0}", f"s_cselect_b32 s{dst}, {RA2}, s{dst}"],
                [f"s_cmp_eq_u32 s{dst}, {RA2 + SA}", f"s_cselect_b32 s{dst}, 0, s{dst}"]]

    def ring_b(self, dst, src):
        return [f"s_add_u32 s{dst}, s{src}, {SB_}", [f"s_cmp_eq_u32 s{dst}, {RA2}", f"s_cselect_b32 s{dst}, {RB0}, s{dst}"]]

    def dma1_dst(self):
        return [[f"s_bitcmp1_b32 s{S_W}, 0", f"s_cselect_b32 s{S_DFS}, s{S_DBO}, s{S_DST}"],
                f"s_add_u32 s{S_DFS}, s{S_DFS}, s{S_DF}",
                f"s_add_u32 s{S_DSS}, s{S_DS}, s{S_DST}"]

    def dma1_adv(self):
        return [f"s_add_u32 s{S_FOFF}, s{S_FOFF}, {64 * 7168}", f"s_add_u32 s{S_SOFF}, s{S_SOFF}, 128"] + \
            self.ring_a(S_DST, S_DST) + self.ring_b(S_DBO, S_DBO) + self.dma1_dst()

    def mfma1(self, s, f, b):
        kk, kind, p, q = self.frag(f)
        w = A_W + 4 * (f % 6)
        x = self.xreg(s & 1, kk, b)
        c = (accS(p, q, b) if kind == "S" else accF(p, q, b)).r(4)
        sc = "0" if (s == 0 and kk == 0) else c
        if kind == "S":
            return f"v_mfma_f32_16x16x32_bf16 {c}, a[{x}:{x + 3}], a[{w}:{w + 3}], {sc}"
        return f"v_mfma_f32_16x16x32_bf16 {c}, a[{w}:{w + 3}], a[{x}:{x + 3}], {sc}"

    def put_dma(self, S, m, ld, tag, at):
        if m:
            return S.dma(m, ld, tag, at)
        return S.place(It(ld, "vm", tag), at)

    def dma2(self, t, e):
        m = None if e & 3 else f"s_add_u32 m0, s{S_DB}, {(t % 4) * ST2 + e * 1024}"
        if t < NF:
            return m, f"buffer_load_dwordx4 v{V_FO2 + e}, s[{SRD_D}:{SRD_D + 3}], s{S_DOFF} offen offset:{(e & 3) * 1024} {self.opt.get('w_aux', '')} lds"
        return m, f"buffer_load_dwordx4 v{V_SO2 + e}, s[{SRD_C}:{SRD_C + 3}], s{S_DOFF} offen offset:{(e & 3) * 1024} {self.opt.get('w_aux', '')} lds"

    def dma2_adv(self, t):
        if t == NF - 1:
            return [f"s_mov_b32 s{S_DOFF}, s{S_DSSM}"]
        if t >= NF:
            return [f"s_add_u32 s{S_DOFF}, s{S_DOFF}, 128"]
        if t == NF - 2:
            return [f"s_mul_i32 s{S_DOFF}, s{S_W}, {7 * 65536}", f"s_add_u32 s{S_DOFF}, s{S_DOFF}, {3 * 65536}", f"s_add_u32 s{S_DOFF}, s{S_DOFF}, s{S_DBASE}"]
        return [f"s_add_u32 s{S_DP}, s{S_DP}, 4"] + self.dma2_row()

    def dma2_row(self):
        t = S_T + 7
        return [f"s_add_u32 s{t}, s{S_DP}, 3",
                [f"s_cmp_ge_u32 s{S_DP}, s{S_DOWN}", f"s_cselect_b32 s{S_DOFF}, s{t}, s{S_DP}"]] + self.dma2_row2()

    def dma2_row2(self):
        t = S_T + 7
        for j in range(24):
            assert ((j + 3) * 43) >> 8 == (j + 3) // 6
        return [f"s_add_u32 s{t}, s{S_DOFF}, 3", f"s_mul_i32 s{t}, s{t}, 43", f"s_lshr_b32 s{t}, s{t}, 8",
                f"s_add_u32 s{S_DOFF}, s{S_DOFF}, s{t}", f"s_lshl_b32 s{S_DOFF}, s{S_DOFF}, 16", f"s_add_u32 s{S_DOFF}, s{S_DOFF}, s{S_DBASE}"]

    def areg(self, s, kb, b):
        if s == 0 and kb < 3:
            return R("v", own(kb, b))
        return R("a", A_BUF + ((s % 3) * 16 + kb * 4 + b) * 4)

    def a_loads(self, s, kb):
        if s != NF - 1:
            return [self.a_load(s, kb, b) for b in range(4)]
        return [f"buffer_load_dwordx2 {(self.areg(s, kb, b) + 2 * h).r(2)}, v{V_L8}, s[{SRD_A2}:{SRD_A2 + 3}], s{S_AOFF} offen offset:{b * 1024 + h * 512} {self.opt.get('a_aux', 'sc1')}"
                for b in range(4) for h in range(2)]

    def a_load(self, s, kb, b):
        return f"buffer_load_dwordx4 {self.areg(s, kb, b).r(4)}, v{V_L16}, s[{SRD_A2}:{SRD_A2 + 3}], s{S_AOFF} offen offset:{b * 1024} {self.opt.get('a_aux', 'sc1')}"

    def a_adv(self, s, kb):
        if s == NF - 1 and kb == 3:
            return [f"s_mov_b32 s{S_AOFF}, s{S_ASSM}"]
        out = [f"s_add_u32 s{S_AOFF}, s{S_AOFF}, 4096"]
        if s < NF:
            out.append([f"s_cmp_eq_u32 s{S_AOFF}, s{S_AOWN}", f"s_cselect_b32 s{S_AOFF}, s{S_AEND}, s{S_AOFF}"])
        return out

    def rd2(self, idx, s, kb, jl):
        w = A_W2 + 4 * (idx % 8)
        so = (s & 1) * ST2
        if s < NF:
            return [f"ds_read_b64_tr_b16 a[{w + 2 * h}:{w + 2 * h + 1}], v{V_RF + jl} offset:{so + kb * 8192 + h * 4096}" for h in range(2)]
        ri, half = kb & 1, kb >> 1
        return [f"ds_read_b128 a[{w}:{w + 3}], v{V_RS + half + 2 * ((s >> 1) & 1)} offset:{so + ri * 16384 + jl * 2048}"]

    def poll_items(self, label, load, reg, red=(), post_=()):
        cmp_ = list(red) + [f"v_cmp_ne_u32 vcc, s{S_TAG}, v{reg}"] + list(post_)
        self.spins.append((label, load, cmp_))
        return It(load, "vm", label), [It(cmp_[0], needs=[("vm", label)])] + [It(x) for x in cmp_[1:]] + [It([f"s_cbranch_vccnz {label}_spin", f"{label}_back:"])]

    def emit_spins(self):
        A = self.A
        for label, load, cmp_ in self.spins:
            A(f"{label}_spin:")
            A(f"s_mov_b32 s{S_T + 6}, 0")
            A(f"{label}_loop:")
            A(load)
            A(f"s_add_u32 s{S_T + 6}, s{S_T + 6}, 1")
            A("s_waitcnt vmcnt(0)")
            A(cmp_)
            A(f"s_cmp_gt_u32 s{S_T + 6}, 0x8000")
            A(f"s_cbranch_scc1 {label}_back")
            A(f"s_cbranch_vccnz {label}_loop")
            A(f"s_branch {label}_back")

    def prologue(self):
        A = self.A
        T = S_T
        A("s_cmp_ge_u32 s2, 256")
        A("s_cbranch_scc1 LF_end")
        self.st.start(A)
        vm = self.vm
        A(f"s_load_dwordx2 s[{SRD_T}:{SRD_T + 1}], s[0:1], {KA['x']}")
        assert SRD_C == SRD_D + 4 and SRD_FL == SRD_P + 4 and SRD_AG == SRD_A2 + 4
        A(f"s_load_dwordx8 s[{SRD_D}:{SRD_D + 7}], s[0:1], {KA['wg']}")
        A(f"s_load_dwordx8 s[{SRD_P}:{SRD_P + 7}], s[0:1], {KA['Lre']}")
        A(f"s_load_dwordx8 s[{SRD_A2}:{SRD_A2 + 7}], s[0:1], {KA['Cre']}")
        A(f"s_load_dwordx2 s[{S_WSP}:{S_WSP + 1}], s[0:1], {KA['ws']}")
        t0, t1, t2, t3, t4 = 64, 65, 66, 67, 68
        A(f"v_lshrrev_b32 v{t0}, 6, v0")
        A(f"v_and_b32 v{V_LANE}, 63, v0")
        A(f"v_readfirstlane_b32 s{S_W}, v{t0}")
        A(f"v_lshlrev_b32 v{V_L16}, 4, v{V_LANE}")
        A(f"s_getpc_b64 s[{T + 1}:{T + 2}]")
        A("LF_pc0:")
        A(f"s_lshr_b32 s{T}, s2, 3")
        A(f"s_lshl_b32 s{T}, s{T}, 11")
        A(f"v_lshrrev_b32 v{t0}, 4, v0")
        A(f"v_lshl_add_u32 v{t0}, v{t0}, 7, s{T}")
        A(f"v_min_u32 v{t0}, LF_end-LF_pc0, v{t0}")
        A(f"v_add_co_u32 v{t0}, vcc, s{T + 1}, v{t0}")
        A(f"v_mov_b32 v{t1}, s{T + 2}")
        A(f"s_and_b32 s{S_sp}, s2, 3")
        A(f"v_addc_co_u32 v{t1}, vcc, 0, v{t1}, vcc")
        A(f"global_load_dword v0, v[{t0}:{t1}], off"); vm.issue("pf")
        A(f"s_bfe_u32 s{S_nt}, s2, 0x30003")
        A(f"s_and_b32 s{S_m}, s2, 4")
        A(f"s_lshr_b32 s{T}, s2, 6")
        A(f"s_add_u32 s{S_m}, s{S_m}, s{T}")
        A(f"s_lshl_b32 s{S_g}, s{S_sp}, 3")
        A(f"s_add_u32 s{S_g}, s{S_g}, s{S_nt}")
        A(f"s_lshl_b32 s{S_G}, s{S_m}, 2")
        A(f"s_add_u32 s{S_G}, s{S_G}, s{S_W}")
        A([f"s_and_b32 s{T}, s{S_W}, 1", f"s_lshr_b32 s{T + 1}, s2, 2", f"s_lshl_b32 s{T + 1}, s{T + 1}, 1", f"s_add_u32 s{T}, s{T}, s{T + 1}",
           f"s_lshl_b32 s{T + 1}, s{S_sp}, 7", f"s_add_u32 s{T + 1}, s{T + 1}, s{T}", f"s_lshl_b32 s{S_PFB}, s{T + 1}, 12",
           f"s_mul_i32 s{T + 1}, s{T}, 4682", f"s_lshr_b32 s{T + 1}, s{T + 1}, 16",
           f"s_mul_i32 s{T + 1}, s{T + 1}, {8 * 56 - 14}", f"s_mul_i32 s{T + 2}, s{S_sp}, 14", f"s_add_u32 s{T + 1}, s{T + 1}, s{T + 2}",
           f"s_add_u32 s{T + 1}, s{T + 1}, s{T}", f"s_lshl_b32 s{S_PF1}, s{T + 1}, 7",
           f"s_cmp_ge_u32 s{T}, 112", f"s_cselect_b32 s{S_PF1}, {hx(OOB >> 1)}, s{S_PF1}",
           f"s_lshl_b32 s{S_PFX}, s{S_G}, 5", f"s_add_u32 s{S_PFX}, s{S_PFX}, s{S_g}", f"s_lshl_b32 s{S_PFX}, s{S_PFX}, 12",
           f"v_lshrrev_b32 v{t2}, 3, v{V_LANE}", f"v_mul_u32_u24 v{V_PW}, {7168 - 128}, v{t2}", f"v_add_u32 v{V_PW}, v{V_PW}, v{V_L16}",
           f"v_lshrrev_b32 v{V_P4}, 5, v{V_LANE}", f"v_mul_u32_u24 v{V_P4}, 1536, v{V_P4}", f"v_add_u32 v{V_P4}, v{V_P4}, v{V_L16}"])
        A(f"s_mov_b32 s{SRD_T + 2}, {2048 * 2048}")
        A(f"s_mov_b32 s{SRD_T + 3}, 0x20000")
        A(f"s_mov_b32 s{SRD_F + 2}, {1024 * 7168}")
        A(f"s_mov_b32 s{SRD_F + 3}, 0x20000")
        A(f"s_mov_b32 s{SRD_S + 2}, {1024 * 2048}")
        A(f"s_mov_b32 s{SRD_S + 3}, 0x20000")
        A(f"s_movk_i32 s{T}, 6944")
        A(f"s_movk_i32 s{T + 1}, 28672")
        fo = [f"v_mul_u32_u24 v{t4}, 4682, v{V_LANE}"]
        for n in range(7):
            if n:
                fo.append(f"v_add_u32 v{t4}, {64 * 4682}, v{t4}")
            fo += [f"v_bfe_u32 v{t2}, v{t4}, 18, 1", f"v_bfe_u32 v{t3}, v{t4}, 19, 1", f"v_lshrrev_b32 v{V_FO + n}, 16, v{t4}", f"v_sub_u32 v{t2}, v{t2}, v{t3}",
                   f"v_mad_u32_u24 v{V_FO + n}, v{V_FO + n}, s{T}, v{V_L16}", f"v_mad_i32_i24 v{V_FO + n}, v{t2}, s{T + 1}, v{V_FO + n}"]
            if n >= 4:
                fo.append(f"v_add_u32 v{V_FO + n}, 4096, v{V_FO + n}")
        for n in range(7):
            for lane in range(64):
                ci = 64 * n + lane
                p = ci // 14
                k = (p & ~12) | ((p & 4) << 1) | ((p & 8) >> 1)
                t = ci * 4682
                got = (t >> 16) * 6944 + lane * 16 + (((t >> 18) & 1) - ((t >> 19) & 1)) * 28672 + (4096 if n >= 4 else 0)
                assert got >= 0 and got + (n & 3) * 1024 == k * 7168 + (ci % 14) * 16
        CA = Asm()
        CA(f"v_lshrrev_b32 v{t2}, 3, v{V_LANE}")
        CA(f"v_lshrrev_b32 v{t3}, 4, v{V_LANE}")
        CA(f"v_and_b32 v{t1}, 7, v{V_LANE}")
        CA(f"v_xor_b32 v{t3}, v{t3}, v{t1}")
        CA(f"v_lshlrev_b32 v{t3}, 4, v{t3}")
        CA(f"v_lshl_add_u32 v{V_X0}, v{t2}, 13, v{t3}")
        CA(f"v_xor_b32 v{V_X0 + 1}, 64, v{V_X0}")
        CA(f"v_add_u32 v{V_X0 + 1}, {8 * 8192 - 1024}, v{V_X0 + 1}")
        CA(f"v_lshl_add_u32 v{V_SO}, v{t2}, 11, v{t3}")
        CA(f"v_xor_b32 v{V_SO + 1}, 64, v{V_SO}")
        CA(f"v_add_u32 v{V_SO + 1}, {8 * 2048 - 1024}, v{V_SO + 1}")
        CA(f"s_lshl_b32 s{S_XOFF0}, s{S_G}, 17")
        CA(f"s_add_u32 s{S_XOFF1}, s{S_XOFF0}, 4096")
        CA(f"s_lshl_b32 s{S_LX}, s{S_W}, 13")
        CA(f"s_add_u32 s{S_LX}, s{S_LX}, {L_X}")

        CA(fo)
        CA(f"s_and_b32 s{T}, s{S_W}, 1")
        CA(f"s_mul_i32 s{S_FOFF}, s{T}, {32 * 7168}")
        CA(f"s_mul_i32 s{T + 1}, s{S_g}, 224")
        CA(f"s_add_u32 s{S_FOFF}, s{S_FOFF}, s{T + 1}")
        CA(f"s_lshl_b32 s{S_SOFF}, s{S_g}, 16")
        CA(f"s_lshl_b32 s{T}, s{T}, 15")
        CA(f"s_add_u32 s{S_SOFF}, s{S_SOFF}, s{T}")
        CA(f"s_lshr_b32 s{T}, s{S_W}, 1")
        CA(f"s_mul_i32 s{S_DF}, s{T}, 7168")
        CA(f"s_lshl_b32 s{S_DS}, s{S_W}, 11")
        CA(f"s_add_u32 s{S_DS}, s{S_DS}, {T_SSM}")
        CA(f"s_mov_b32 s{S_DST}, {RA2}")
        CA(f"s_mov_b32 s{S_DBO}, {RB0}")
        for x in self.dma1_dst():
            CA([It(x)])

        ncalc = self.opt.get("calc_pre", 20)
        A(CA.l[:ncalc])
        if self.opt.get("abl_pro"):
            A(f"s_mov_b32 s15, {hx(OOB)}")
        A(f"s_cmp_lt_u32 s{S_W}, 2")
        A("s_waitcnt lgkmcnt(0)")
        A(f"s_cselect_b32 s{SRD_F}, s{SRD_D}, s{SRD_D + 2}")
        A(f"s_cselect_b32 s{SRD_F + 1}, s{SRD_D + 1}, s{SRD_D + 3}")
        A(f"s_cselect_b32 s{SRD_S}, s{SRD_FL}, s{SRD_FL + 2}")
        A(f"s_cselect_b32 s{SRD_S + 1}, s{SRD_FL + 1}, s{SRD_FL + 3}")

        def emit(items):
            for x in items:
                if isinstance(x, It):
                    if x.needs:
                        A(waitcnt(vm.need(*[t for c, t in x.needs])))
                    ab = self.opt.get("abl_pro", "")
                    k = {"sr": "r", "sw": "w", "XS": "x", "D": "d", "p": "p"}.get(x.tag[0]) if x.cnt else None
                    if k and k in ab:
                        A([re.sub(r"s\d+ offen", "s15 offen", t) for t in x.text])
                    else:
                        A(x.text)
                    if x.cnt:
                        vm.issue(x.tag)
                else:
                    A(x)
        side0 = self.sj_rows(0, V_QC, V_QD) + self.sj_w(V_CSA + 4, 0) + self.sj_w(V_QA, 1)
        order = self.opt.get("order", "side")
        if order == "side":
            emit(side0)
        A(self.st.stamp("karg"))
        W = Asm()
        W(CA.l[ncalc:])
        n_calc = len(W.l)
        W(srd_items(SRD_FL, S_WSP, WS_STATS, M_SIZE))
        W(f"s_load_dword s{S_TAG}, s[{SRD_FL}:{SRD_FL + 1}], {M_EPOCH}")
        q, r, c, i, u = t0, t1, t2, t3, t4
        W(f"s_and_b32 s{S_odd}, s{S_g}, 1")
        W(f"v_lshrrev_b32 v{q}, 4, v{V_LANE}")
        W(f"v_bfe_u32 v{r}, v{V_LANE}, 2, 3")
        W(f"v_and_b32 v{c}, 3, v{V_LANE}")
        W(f"v_and_b32 v{i}, 15, v{V_LANE}")
        W(f"v_lshrrev_b32 v{u}, 5, v{V_LANE}")
        W(f"v_lshl_add_u32 v{u}, v{u}, 4, v{r}")
        W(f"v_mul_u32_u24 v{u}, 224, v{u}")
        W(f"v_lshl_add_u32 v{u}, v{c}, 3, v{u}")
        W(f"s_lshl_b32 s{T}, s{S_odd}, 5")
        W(f"s_mul_i32 s{T + 1}, s{S_odd}, 192")
        W(f"s_sub_u32 s{T + 1}, {RA2 + 192}, s{T + 1}")
        W(f"s_add_u32 s{T}, s{T}, {RA2}")
        W(f"v_add_u32 v{V_RD}, s{T}, v{u}")
        W(f"v_add_u32 v{V_RD + 1}, s{T + 1}, v{u}")
        W(f"v_subrev_u32 v{V_RD + 4}, {RA2 - RB0}, v{V_RD}")
        W(f"v_subrev_u32 v{V_RD + 5}, {RA2 - RB0}, v{V_RD + 1}")
        W(f"v_lshrrev_b32 v{u}, 1, v{i}")
        W(f"v_xor_b32 v{u}, v{u}, v{q}")
        W(f"v_lshlrev_b32 v{u}, 4, v{u}")
        W(f"v_lshl_add_u32 v{u}, v{i}, 7, v{u}")
        W(f"v_add_u32 v{V_RD + 2}, {RA2}, v{u}")
        W(f"v_xor_b32 v{V_RD + 3}, 64, v{V_RD + 2}")
        W(f"v_add_u32 v{V_XR}, s{S_LX}, v{u}")
        W(f"v_xor_b32 v{V_XR + 1}, 64, v{V_XR}")
        W(f"s_mov_b32 s{S_RST}, {RA2}")
        W(f"s_mov_b32 s{S_RBO}, {RB0}")
        W(f"s_mov_b32 s{S_IT}, 0")

        def walk():
            if self.opt.get("walk", 1):
                A("s_mov_b64 exec, 0")
                for w in range(3):
                    A(f"s_cmp_eq_u32 s{S_W}, {w}")
                    A(f"s_cbranch_scc1 LF_pad{w}")
                A("s_branch LF_pad3")
            A("LF_walked:")
            A("s_mov_b64 exec, -1")
            A(self.st.stamp("walk"))
        W(self.setup_items())
        W([f"s_lshl_b32 s{S_V}, s2, 2", f"s_add_u32 s{S_V}, s{S_V}, {FL_C}", It([f"s_cmp_eq_u32 s{S_W}, 0", f"s_cselect_b32 s{S_V}, s{S_V}, {hx(OOB)}"]),
           f"s_lshr_b32 s{S_PFC}, s{S_PFB}, 2", f"s_lshr_b32 s{S_PFD}, s{S_PFX}, 2", f"v_mov_b32 v{V_ZR}, 0"] + self.sj_addr())
        work = W.l
        dm = []
        for hb in range(2):
            m, lds, adv = self.xstage(hb)
            dm += [It(([m, "s_nop 0"] if j == 0 else []) + [x] + ([adv] if j == 3 else []), "vm", ("XS", 0, hb)) for j, x in enumerate(lds)]
        for n in range(9):
            m, ld = self.dma1(n)
            dm.append(It(([m, "s_nop 0"] if m else []) + [ld], "vm", ("D", 0)))
        pace, walk_at, lead = self.opt.get("pace", 12), self.opt.get("walk_at", 8), self.opt.get("lead", 0)

        def main_page():
            walk()
            A("s_branch LF_main")
            A(".p2align 12")
            A("LF_main:")
        if order == "side":
            emit(work[:lead]); work = work[lead:]
            done = lead
            for j, x in enumerate(dm):
                if j == 8 and done < n_calc:
                    emit(work[:n_calc - done]); work = work[n_calc - done:]
                if j == walk_at:
                    main_page()
                emit([x] + work[:pace]); work = work[pace:]; done += pace
        else:
            emit(work[:n_calc]); work = work[n_calc:]
            A(f"s_add_u32 s{S_R0}, s{S_m}, s{S_nt}")

            def half(k):
                A(f"s_bitcmp{k}_b32 s{S_R0}, 0")
                A(f"s_cbranch_scc1 LF_hd{k}")
                for x in dm[:8]:
                    A(x.text); vm.issue(("D", 0))
                A(f"s_branch LF_he{k}")
                A(f"LF_hd{k}:")
                for x in dm[8:]:
                    A(x.text)
                A(f"LF_he{k}:")
            half(1)
            if order == "dma1":
                emit(side0)
            emit(work); work = []
            main_page()
            half(0)
            if order == "dma2":
                emit(side0)
            walk_at = None
        emit(work + self.dma1_adv())
        A(self.st.stamp("issued"))
        if walk_at == 17:
            main_page()
        acc_late = self.acc_late = order == "dma2"
        if not acc_late:
            emit(self.sj_acc_q(0, V_QC, V_QD) + self.sj_rows(1, V_QC, V_QD) + self.sj_acc_w(V_CSA + 4, 0) + self.sj_acc_w(V_QA, 1))
        A(self.st.stamp("shadow"))
        A(waitcnt(vm.need(("D", 0) if order != "side" else ("XS", 0, 1))))
        A(self.xs_reads(0, 0) + self.xs_reads(0, 1))
        A(waitcnt(vm.need(("D", 0)), 0))
        A("s_barrier")
        for f in range(self.PD):
            for ins in self.rd1(f):
                A(ins); self.lg.issue(("W", 0, f))
        A(f"s_mul_i32 s{S_TAG}, s{S_TAG}, 1664525")
        A(f"s_add_u32 s{S_TAG}, s{S_TAG}, 1013904223")
        A(f"v_mov_b32 v{V_TG}, s{S_TAG}")

    def xstage(self, hb):
        return (f"s_add_u32 m0, s{S_LX}, 4096" if hb else f"s_mov_b32 m0, s{S_LX}",
                [f"buffer_load_dwordx4 v{V_X0 + (j & 1)}, s[{SRD_T}:{SRD_T + 3}], s{S_XOFF0 + hb} offen offset:{1024 * j} lds" for j in range(4)],
                f"s_add_u32 s{S_XOFF0 + hb}, s{S_XOFF0 + hb}, 128")

    def xs_reads(self, step, hb):
        return [f"ds_read_b128 a[{self.xreg(step & 1, kk, b)}:{self.xreg(step & 1, kk, b) + 3}], v{V_XR + kk} offset:{b * 2048}" for b in (2 * hb, 2 * hb + 1) for kk in range(2)]

    def sj_w(self, lw, tag):
        return [It(f"buffer_load_dwordx4 v[{lw}:{lw + 3}], v{V_PW}, s[{SRD_F}:{SRD_F + 3}], s{S_PF1} offen", "vm", ("sw", tag)),
                f"s_add_u32 s{S_PF1}, s{S_PF1}, {64 * 7168}"]

    def sj_rows(self, c, qb, qx):
        return [It(f"buffer_load_dwordx4 v[{qx}:{qx + 3}], v{V_P4}, s[{SRD_T}:{SRD_T + 3}], s{S_PFX} offen offset:{512 * c}", "vm", ("sr", c)),
                It(f"buffer_load_dwordx4 v[{qb}:{qb + 3}], v{V_P4}, s[{SRD_S}:{SRD_S + 3}], s{S_PFB} offen offset:{512 * c}", "vm", ("sr", c))]

    def sj_acc_w(self, lw, tag):
        o = []
        for j in range(4):
            if lw == V_CSA + 4:
                o += [f"v_lshlrev_b32 v{V_CSA + 2 * j}, 16, v{lw + j}", f"v_and_b32 v{V_CSA + 2 * j + 1}, 0xffff0000, v{lw + j}"]
            else:
                o += [f"v_lshlrev_b32 v{V_J0}, 16, v{lw + j}", f"v_and_b32 v{lw + j}, 0xffff0000, v{lw + j}",
                      f"v_add_f32 v{V_CSA + 2 * j}, v{V_CSA + 2 * j}, v{V_J0}", f"v_add_f32 v{V_CSA + 2 * j + 1}, v{V_CSA + 2 * j + 1}, v{lw + j}"]
        o[0] = It(o[0], needs=[("vm", ("sw", tag))])
        return o

    def sj_acc_q(self, c, qb, qx):
        o = []
        if c == 0:
            o += [f"v_lshlrev_b32 v{V_XP}, 16, v{qx}", f"v_mov_b32 v{V_BSA}, 0", f"v_mov_b32 v{V_XS}, 0", f"v_mov_b32 v{V_XQ}, 0"]
        for j in range(4):
            o += self.sj_acc_rows(qb + j, qx + j)
        o[0] = It(o[0], needs=[("vm", ("sr", c))])
        return o

    def sj_acc_rows(self, lb, lx):
        j = V_J1
        return [f"v_lshlrev_b32 v{j}, 16, v{lb}", f"v_and_b32 v{lb}, 0xffff0000, v{lb}",
                f"v_add_f32 v{V_BSA}, v{V_BSA}, v{j}", f"v_add_f32 v{V_BSA}, v{V_BSA}, v{lb}",
                f"v_lshlrev_b32 v{j}, 16, v{lx}", f"v_and_b32 v{lx}, 0xffff0000, v{lx}",
                f"v_sub_f32 v{j}, v{j}, v{V_XP}", f"v_sub_f32 v{lx}, v{lx}, v{V_XP}",
                f"v_add_f32 v{V_XS}, v{V_XS}, v{j}", f"v_fmac_f32 v{V_XQ}, v{j}, v{j}",
                f"v_add_f32 v{V_XS}, v{V_XS}, v{lx}", f"v_fmac_f32 v{V_XQ}, v{lx}, v{lx}"]

    def sj_addr(self):
        T = S_T
        return [f"s_bfe_u32 s{T + 1}, s{S_PFB}, 0x7000c", f"s_mul_i32 s{T + 2}, s{T + 1}, 4682", f"s_lshr_b32 s{T + 2}, s{T + 2}, 16",
                f"s_mul_i32 s{T + 2}, s{T + 2}, {112 - 14}", f"s_mul_i32 s{T}, s{S_sp}, 14", f"s_add_u32 s{T}, s{T}, s{T + 2}", f"s_add_u32 s{T}, s{T}, s{T + 1}",
                f"s_lshr_b32 s{T + 7}, s{S_W}, 1", f"s_mul_i32 s{T + 2}, s{T + 7}, 56", f"s_add_u32 s{T}, s{T}, s{T + 2}",
                f"s_lshl_b32 s{T}, s{T}, 8", f"s_add_u32 s{T}, s{T}, {M_CS}",
                [f"s_cmp_ge_u32 s{T + 1}, 112", f"s_cselect_b32 s{T}, {hx(OOB)}, s{T}"],
                f"s_lshl_b32 s{T + 7}, s{T + 7}, 12", f"s_lshr_b32 s{T + 1}, s{S_PFB}, 9", f"s_add_u32 s{T + 1}, s{T + 1}, s{T + 7}", f"s_add_u32 s{T + 1}, s{T + 1}, {M_BS}",
                f"s_lshr_b32 s{T + 2}, s{S_PFX}, 8"]

    def dpp(self, r, ctl):
        return f"v_add_f32_dpp v{r}, v{r}, v{r} {ctl} row_mask:0xf bank_mask:0xf"

    def sj_finish_rows(self):
        T = S_T
        a, b_, t = V_QA, V_QA + 1, V_QA + 2

        def half_sum(*regs):
            o = []
            for ctl in ["quad_perm:[1,0,3,2]", "quad_perm:[2,3,0,1]", "row_half_mirror", "row_mirror"]:
                o += [self.dpp(r, ctl) for r in regs]
            o += [f"v_mov_b32 v{t + j}, v{r}" for j, r in enumerate(regs)]
            o += [f"v_permlane16_swap_b32 v{r}, v{t + j}" for j, r in enumerate(regs)]
            o += [f"v_add_f32 v{r}, v{r}, v{t + j}" for j, r in enumerate(regs)]
            return o
        o = [f"v_fmamk_f32 v{a}, v{V_XP}, {hx(f2u(32.0))}, v{V_XS}"]
        o += half_sum(a, V_BSA)
        o += [f"v_mul_f32 v{a}, {hx(f2u(1.0 / 1024))}, v{a}",
              f"v_sub_f32 v{V_XP}, v{a}, v{V_XP}",
              f"v_mul_f32 v{V_XS}, -2.0, v{V_XS}",
              f"v_fmamk_f32 v{V_XS}, v{V_XP}, {hx(f2u(32.0))}, v{V_XS}",
              f"v_fmac_f32 v{V_XQ}, v{V_XP}, v{V_XS}"]
        o += interleave(half_sum(V_XQ), [f"v_lshrrev_b32 v{V_XS}, 5, v{V_LANE}", f"v_lshlrev_b32 v{V_XP}, 3, v{V_XS}", f"v_lshlrev_b32 v{V_XS}, 2, v{V_XS}"])
        rb = lambda r: [f"v_cvt_pk_bf16_f32 v{r}, v{r}, v{r}", f"v_lshlrev_b32 v{r}, 16, v{r}"]
        o += [f"v_mul_f32 v{b_}, {hx(f2u(1.0 / 1024))}, v{V_XQ}"] + rb(b_) + [f"v_add_f32 v{b_}, {hx(f2u(1e-5))}, v{b_}"] + rb(b_)
        o += [f"v_sqrt_f32 v{b_}, v{b_}"] + rb(a) + rb(b_) + [f"v_rcp_f32 v{b_}, v{b_}"]
        o += [It(f"buffer_store_dword v{V_BSA}, v{V_XS}, s[{SRD_FL}:{SRD_FL + 3}], s{T + 1} offen sc1", "vm", "pub"),
              It(f"buffer_store_dwordx2 v[{a}:{b_}], v{V_XP}, s[{SRD_FL}:{SRD_FL + 3}], s{T + 2} offen sc1", "vm", "pub")]
        return o

    def sj_finish_cols(self):
        T = S_T
        C = V_CSA
        o = self.sj_addr()[:13]
        o += [f"v_permlane32_swap_b32 v{C + j}, v{C + 4 + j}" for j in range(4)]
        o += [f"v_add_f32 v{C + j}, v{C + j}, v{C + 4 + j}" for j in range(4)]
        o += [f"v_and_b32 v{C + 4}, 7, v{V_LANE}", f"v_lshrrev_b32 v{C + 5}, 4, v{V_LANE}"]
        o += [f"v_permlane16_swap_b32 v{C + j}, v{C + 2 + j}" for j in range(2)]
        o += [f"v_add_f32 v{C + j}, v{C + j}, v{C + 2 + j}" for j in range(2)]
        o += [f"v_lshlrev_b32 v{C + 4}, 5, v{C + 4}", f"v_lshl_add_u32 v{C + 4}, v{C + 5}, 3, v{C + 4}"]
        o += [self.dpp(C, "row_ror:8"), self.dpp(C + 1, "row_ror:8"),
              It(f"buffer_store_dwordx2 v[{C}:{C + 1}], v{C + 4}, s[{SRD_FL}:{SRD_FL + 3}], s{T} offen sc1", "vm", "cspub")]
        return o

    def setup_items(self):
        T = S_T
        it = []
        it += srd_items(SRD_D, SRD_C, 0, 3584 * 2048)
        it += srd_items(SRD_O, SRD_C + 2, 0, 2048 * 4096)
        it += [[f"s_cmp_lt_u32 s{S_W}, 2", f"s_cselect_b32 s{SRD_C}, s{SRD_A2}, s{SRD_A2 + 2}", f"s_cselect_b32 s{SRD_C + 1}, s{SRD_A2 + 1}, s{SRD_A2 + 3}"],
               f"s_mov_b32 s{SRD_C + 2}, {1024 * 2048}", f"s_mov_b32 s{SRD_C + 3}, 0x20000"]
        it += [f"v_and_b32 v{V_ZR}, 15, v{V_LANE}", f"v_lshlrev_b32 v{V_ZR}, 1, v{V_ZR}", f"s_lshl_b32 s{T}, s{S_g}, 6"]
        for j, p in enumerate([SRD_P, SRD_P + 2, SRD_AG]):
            it += srd_items(SRD_A2, p, 0, 2048)
            for sb in range(2):
                it.append(It(f"buffer_load_ushort a{A_PAR + 2 * j + sb}, v{V_ZR}, s[{SRD_A2}:{SRD_A2 + 3}], s{T} offen offset:{32 * sb}", "vm", "par"))
        it += [[f"s_mov_b32 s{S_KP}, s{SRD_AG + 2}", f"s_mov_b32 s{S_KP + 1}, s{SRD_AG + 3}"]]
        it += srd_items(SRD_A2, S_WSP, WS_A2, A2_SIZE)
        it += srd_items(SRD_P, S_WSP, WS_PART, PART_SIZE)
        it += [f"s_lshl_b32 s{T}, s{S_g}, 13", f"s_add_u32 s{T}, s{T}, {hx(WS_AGG)}",
               [f"s_add_u32 s{SRD_AG}, s{S_WSP}, s{T}", f"s_addc_u32 s{SRD_AG + 1}, s{S_WSP + 1}, 0"],
               f"s_mov_b32 s{SRD_AG + 2}, 8192", f"s_mov_b32 s{SRD_AG + 3}, 0x20000"]
        self.setup_split = len(it)
        it += [f"s_lshl_b32 s{S_tile}, s{S_m}, 3", f"s_add_u32 s{S_tile}, s{S_tile}, s{S_nt}"]
        it += [f"s_mul_i32 s{T}, s{S_G}, {A2_G}",
               f"s_lshl_b32 s{T + 1}, s{S_sp}, 16",
               f"s_add_u32 s{S_ASSM}, s{T}, s{T + 1}",
               f"s_add_u32 s{S_ASSM}, s{S_ASSM}, {112 * 4096}",
               f"s_mul_i32 s{T + 1}, s{S_sp}, {28 * 4096}",
               f"s_add_u32 s{S_AOFF}, s{T}, s{T + 1}",
               f"s_mul_i32 s{S_DOWN}, s{S_nt}, 3",
               f"s_lshl_b32 s{T + 1}, s{S_DOWN}, 12",
               f"s_add_u32 s{S_AOWN}, s{S_AOFF}, s{T + 1}",
               f"s_add_u32 s{S_AEND}, s{S_AOWN}, {3 * 4096}",
               [f"s_cmp_eq_u32 s{S_AOFF}, s{S_AOWN}", f"s_cselect_b32 s{S_AOFF}, s{S_AEND}, s{S_AOFF}"],
               f"s_mul_i32 s{T + 1}, s{S_sp}, {896 * 2048}",
               f"s_lshl_b32 s{T + 2}, s{S_nt}, 8",
               f"s_add_u32 s{S_DBASE}, s{T + 1}, s{T + 2}",
               f"s_sub_u32 s{S_DP}, s{S_W}, 3",
               f"s_add_u32 s{S_DOFF}, s{S_DOWN}, s{S_W}",
               [f"s_cmp_eq_u32 s{S_W}, 3", f"s_cselect_b32 s{T}, s{S_nt}, 0"],
               [f"s_cmp_lg_u32 s{T}, 0", f"s_cselect_b32 s{S_DOFF}, 0, s{S_DOFF}"]] + self.dma2_row2()
        it += [f"s_lshl_b32 s{S_DSSM}, s{S_nt}, 18",
               f"s_lshl_b32 s{T}, s{S_sp}, 9",
               f"s_add_u32 s{S_DSSM}, s{S_DSSM}, s{T}"]
        return it

    def param_items(self):
        PL = V_RAW
        lre, lim, dt = PL, PL + 2, PL + 4
        zr, zi, nq, tm = V_T, V_T + 2, V_T + 4, V_T + 5
        o = [It(f"v_accvgpr_read_b32 v{PL + j}, a{A_PAR + j}", needs=[("vm", "par")] if j == 0 else ()) for j in range(6)]
        o += [f"v_lshlrev_b32 v{PL + j}, 16, v{PL + j}" for j in range(6)]
        o += [f"v_lshrrev_b32 v{nq}, 4, v{V_LANE}", f"v_cvt_f32_u32 v{nq}, v{nq}"]
        o += [f"v_mul_f32 v{dt + sb}, {hx(f2u(LOG2E))}, v{dt + sb}" for sb in range(2)]
        o += [f"v_exp_f32 v{dt + sb}, v{dt + sb}" for sb in range(2)]
        o += [f"v_cvt_pk_bf16_f32 v{tm}, v{dt}, v{dt + 1}", f"v_lshlrev_b32 v{dt}, 16, v{tm}", f"v_and_b32 v{dt + 1}, 0xffff0000, v{tm}"]
        for sb in range(2):
            o += [f"v_mul_f32 v{zr + sb}, v{dt + sb}, v{lre + sb}", f"v_mul_f32 v{zi + sb}, v{dt + sb}, v{lim + sb}"]
        for sb in range(2):
            o += [f"v_mul_f32 v{zr + sb}, {hx(f2u(LOG2E))}, v{zr + sb}", f"v_mul_f32 v{zi + sb}, {hx(f2u(1.0 / (2 * math.pi)))}, v{zi + sb}"]
        for k, (n, byq) in {P_L1: (1, False), P_L16: (16, False), P_L64: (64, False), P_L16Q: (16, True), P_L512Q: (512, True)}.items():
            if k == P_L16Q:
                self.par_split = len(o)
            if byq:
                o.append(f"v_mul_f32 v{tm + 6}, {hx(f2u(float(n)))}, v{nq}")
                mul = f"v{tm + 6}"
            else:
                mul = hx(f2u(float(n)))
            for sb in range(2):
                o += [f"v_mul_f32 v{tm + sb}, {mul}, v{zr + sb}", f"v_mul_f32 v{tm + 2 + sb}, {mul}, v{zi + sb}"]
            o += [f"v_rndne_f32 v{tm + 4 + sb}, v{tm + 2 + sb}" for sb in range(2)]
            o += [f"v_sub_f32 v{tm + 2 + sb}, v{tm + 2 + sb}, v{tm + 4 + sb}" for sb in range(2)]
            o += [f"v_exp_f32 v{tm + sb}, v{tm + sb}" for sb in range(2)]
            if k == P_L1:
                self.par_first = len(o)
            for sb in range(2):
                o += [It(f"v_cos_f32 v{par(sb, k)}, v{tm + 2 + sb}"), f"v_sin_f32 v{par(sb, k) + 1}, v{tm + 2 + sb}"]
            for sb in range(2):
                p = par(sb, k)
                o += [f"v_mul_f32 v{p}, v{p}, v{tm + sb}", f"v_mul_f32 v{p + 1}, v{p + 1}, v{tm + sb}"]
        for sb in range(2):
            l1, cf = par(sb, P_L1), par(sb, P_CF)
            o += [f"v_mul_f32 v{tm}, v{lre + sb}, v{lre + sb}",
                  f"v_fma_f32 v{tm}, v{lim + sb}, v{lim + sb}, v{tm}",
                  f"v_rcp_f32 v{tm}, v{tm}",
                  f"v_add_f32 v{tm + 1}, -1.0, v{l1}",
                  f"v_mul_f32 v{cf}, v{tm + 1}, v{lre + sb}",
                  f"v_fma_f32 v{cf}, v{l1 + 1}, v{lim + sb}, v{cf}",
                  f"v_mul_f32 v{cf + 1}, v{l1 + 1}, v{lre + sb}",
                  f"v_fma_f32 v{cf + 1}, -v{tm + 1}, v{lim + sb}, v{cf + 1}",
                  f"v_add_f32 v{tm}, v{tm}, v{tm}",
                  f"v_mul_f32 v{cf}, v{cf}, v{tm}",
                  f"v_mul_f32 v{cf + 1}, v{cf + 1}, v{tm}"]
        return o

    def fo2_items(self):
        T = S_T
        t0, t1, t2, t3 = V_RAW + 6, V_RAW + 7, V_SO + 1, V_FO2 + 7
        o = [f"s_lshl_b32 s{T}, s{S_sp}, 2", f"s_lshl_b32 s{S_DB}, s{S_W}, 13",
             f"v_lshrrev_b32 v{t0}, 4, v{V_LANE}", f"v_and_b32 v{t1}, 15, v{V_LANE}"]
        for e in range(2):
            o += [f"v_add_u32 v{t2}, {4 * e}, v{t0}",
                  f"v_lshlrev_b32 v{t3}, 1, v{t2}",
                  f"v_xor_b32 v{t3}, v{t3}, v{t1}",
                  f"v_add_u32 v{t3}, s{T}, v{t3}",
                  f"v_and_b32 v{t3}, 15, v{t3}",
                  f"v_lshlrev_b32 v{t3}, 4, v{t3}",
                  f"v_lshl_add_u32 v{V_FO2 + e}, v{t2}, 11, v{t3}"]
        for e in range(7, 0, -1):
            d = (e // 2) * 8 * 2048 - (e & 3) * 1024
            o.append(f"v_add_u32 v{V_FO2 + e}, {hx(d)}, v{V_FO2 + (e & 1)}")
        return o

    def res_items(self):
        T = S_T
        t0, t1 = V_RAW + 6, V_RAW + 7
        o = [f"s_lshl_b32 s{S_U0}, s{S_nt}, 2", f"s_add_u32 s{S_U0}, s{S_U0}, s{S_sp}",
             f"s_lshl_b32 s{T + 1}, s{S_U0}, 6", f"s_lshl_b32 s{T}, s{S_G}, 17", f"s_add_u32 s{T}, s{T}, s{T + 1}", f"s_add_u32 m0, s{S_LX}, {TB_X}",
             f"v_lshrrev_b32 v{t0}, 2, v{V_LANE}", f"v_and_b32 v{t1}, 3, v{V_LANE}", f"v_lshlrev_b32 v{t1}, 4, v{t1}", f"v_lshl_add_u32 v{t0}, v{t0}, 13, v{t1}"]
        for b in range(4):
            o += [It(f"buffer_load_dwordx4 v{t0}, s[{SRD_T}:{SRD_T + 3}], s{T} offen offset:{b * 1024} lds", "vm", "res", needs=[("lg", self.last_xr)] if b == 0 else ()),
                  f"s_add_u32 s{T}, s{T}, 1024"]
        o += srd_items(SRD_T, S_KP, 0, 2048) + [f"s_lshl_b32 s{T + 1}, s{S_U0}, 6", f"v_lshrrev_b32 v{t1}, 4, v{V_LANE}", f"v_lshlrev_b32 v{t1}, 3, v{t1}"]
        o += [It(f"buffer_load_dwordx2 a[{A_RES + 2 * jl}:{A_RES + 1 + 2 * jl}], v{t1}, s[{SRD_T}:{SRD_T + 3}], s{T + 1} offen offset:{32 * jl}", "vm", "res") for jl in range(2)]
        o += [f"s_lshl_b32 s{S_FA}, s{S_G}, 2", f"s_add_u32 s{S_FA}, s{S_FA}, s{S_sp}", f"s_lshl_b32 s{S_FA}, s{S_FA}, 7", f"s_add_u32 s{S_FA}, s{S_FA}, {FL_A}",
              f"s_lshl_b32 s{T}, s{S_tile}, 2", f"s_add_u32 s{T}, s{T}, s{S_sp}", f"s_lshl_b32 s{T}, s{T}, 2", f"s_add_u32 s{T}, s{T}, s{S_W}",
              f"s_lshl_b32 s{T}, s{T}, 7", f"s_add_u32 s{T}, s{T}, {FL_P}",
              It(f"buffer_load_dword v0, v{t1}, s[{SRD_FL}:{SRD_FL + 3}], s{S_FA} offen sc1", "vm", "pf"),
              It(f"buffer_load_dword v0, v{t1}, s[{SRD_FL}:{SRD_FL + 3}], s{T} offen sc1", "vm", "pf")]
        return o

    def rows_in(self):
        T = S_T
        a0, a1 = 40, 41
        o = [f"s_lshl_b32 s{T}, s2, 2", f"s_add_u32 s{T}, s{T}, s{S_W}", f"s_mov_b32 s{T + 1}, {M_EPOCH}",
             [f"s_cmp_eq_u32 s{T}, 0", f"s_cselect_b32 s{T}, s{T + 1}, {hx(OOB)}"],
             f"v_mov_b32 v{a0}, 0", f"v_mov_b32 v{a1}, s{S_TAG}",
             It(f"buffer_store_dword v{a1}, v{a0}, s[{SRD_FL}:{SRD_FL + 3}], s{T} offen sc1", "vm", "ep"),
             f"s_lshl_b32 s{T}, s{S_g}, 7", f"s_add_u32 s{T}, s{T}, {M_BS}", f"s_add_u32 s{T + 1}, s{T}, 4096", f"s_lshl_b32 s{T + 2}, s{S_G}, 9",
             f"v_and_b32 v{a0}, 15, v{V_LANE}", f"v_lshlrev_b32 v{a0}, 2, v{a0}", f"v_lshlrev_b32 v{a1}, 3, v{V_LANE}"]
        o += [It(f"buffer_load_dword a{A_BS + 2 * sb + ri}, v{a0}, s[{SRD_FL}:{SRD_FL + 3}], s{T + ri} offen offset:{64 * sb} sc1", "vm", "rows") for sb in range(2) for ri in range(2)]
        o += [It(f"buffer_load_dwordx2 a[{A_ST}:{A_ST + 1}], v{a1}, s[{SRD_FL}:{SRD_FL + 3}], s{T + 2} offen sc1", "vm", "rows")]
        return o

    def tables(self):
        a0, a1 = 62, 63
        return [f"v_and_b32 v{a0}, 3, v{V_LANE}", f"v_bfe_u32 v{a1}, v{V_LANE}, 2, 2", f"v_sub_u32 v{a0}, v{a0}, v{a1}", f"v_mul_i32_i24 v{a0}, 24, v{a0}",
                f"v_lshl_add_u32 v{a1}, v{V_LANE}, 3, s{S_LX}", f"v_add_u32 v{a0}, v{a0}, v{a1}",
                It(f"ds_write_b64 v{a1}, a[{A_ST}:{A_ST + 1}] offset:{TB_S1}", "lg", "tb", needs=[("vm", "rows")]),
                It(f"ds_write_b64 v{a0}, a[{A_ST}:{A_ST + 1}] offset:{TB_S2}", "lg", "tb")]

    def cols_in(self):
        T = S_T
        a0, a1, P0 = 62, 63, 44
        o = [f"v_min_u32 v{a0}, 55, v{V_LANE}", f"v_cmp_lt_u32 vcc, 27, v{a0}", f"v_lshlrev_b32 v{a0}, 4, v{a0}", f"v_mov_b32 v{a1}, {14336 - 448}",
             f"v_cndmask_b32 v{a1}, 0, v{a1}, vcc", f"v_add_u32 v{a0}, v{a0}, v{a1}", f"v_add_u32 v{a1}, s{S_LX}, v{V_L16}"]
        ld = [f"s_mul_i32 s{T}, s{S_g}, 448", f"s_add_u32 s{T}, s{T}, {M_CS}"]
        dst = lambda j: (A_TMP if j < 4 else A_RES + 4 - 16) + 4 * j
        for j in range(8):
            ld += [It(f"buffer_load_dwordx4 a[{dst(j)}:{dst(j) + 3}], v{a0}, s[{SRD_FL}:{SRD_FL + 3}], s{T} offen sc1", "vm", "cols")]
            if j < 7:
                ld += [f"s_add_u32 s{T}, s{T}, 28672"]
        sm = [f"v_accvgpr_read_b32 v{P0 + r}, a{dst(0) + r}" for r in range(4)]
        for j in range(1, 8):
            sm += [f"v_accvgpr_read_b32 v{P0 + 4 + r}, a{dst(j) + r}" for r in range(4)]
            sm += [f"v_add_f32 v{P0 + r}, v{P0 + r}, v{P0 + 4 + r}" for r in range(4)]
        sm += [f"v_cmp_u_f32 s[{T + 1}:{T + 2}], v{P0}, v{P0 + 1}", f"v_cmp_u_f32 vcc, v{P0 + 2}, v{P0 + 3}", f"s_or_b64 vcc, vcc, s[{T + 1}:{T + 2}]"]
        self.spins.append(("LF_cs", [x.text[0] if isinstance(x, It) else x for x in ld], sm))
        u = [It(sm[0], needs=[("vm", "cols")])] + sm[1:] + [It(["s_cbranch_vccnz LF_cs_spin", "LF_cs_back:"])]
        u += [It(f"ds_write_b128 v{a1}, v[{P0}:{P0 + 3}] offset:{TB_CS}", "lg", "tb")]
        u += [f"v_and_b32 v0, 48, v{V_LANE}", f"v_lshl_add_u32 v0, v0, 3, s{S_LX}",
              f"v_lshlrev_b32 v{V_L8}, 3, v{V_LANE}"]
        return o + ld, u

    def k_items(self):
        o = [It(f"v_accvgpr_read_b32 v{56 + j}, a{A_BS + j}", needs=[("vm", "rows")] if j == 0 else ()) for j in range(4)]
        for sb in range(2):
            cf, k, x = par(sb, P_CF), 52 + 2 * sb, 56 + 2 * sb
            o += [f"v_mul_f32 v{k}, v{cf}, v{x}", f"v_mul_f32 v{k + 1}, v{cf}, v{x + 1}",
                  f"v_fma_f32 v{k}, -v{cf + 1}, v{x + 1}, v{k}", f"v_fmac_f32 v{k + 1}, v{cf + 1}, v{x}"]
        return o

    def prefetch_items(self):
        T = S_T
        t0, t1 = V_RAW + 6, V_RAW + 7
        o = []
        if self.opt.get("pf_code", 1):
            o += [[f"s_getpc_b64 s[{T + 3}:{T + 4}]", "LF_pc:"],
                  f"s_lshr_b32 s{T}, s2, 3", f"s_lshl_b32 s{T}, s{T}, 2", f"s_add_u32 s{T}, s{T}, s{S_W}",
                  f"s_lshl_b32 s{T}, s{T}, 9",
                  f"v_lshrrev_b32 v{t0}, 4, v{V_LANE}", f"v_lshl_add_u32 v{t0}, v{t0}, 7, s{T}",
                  f"v_min_u32 v{t0}, LF_end-LF_pc, v{t0}",
                  f"v_mov_b32 v{t1}, s{T + 4}",
                  f"v_add_co_u32 v{t0}, vcc, s{T + 3}, v{t0}",
                  "s_nop 0",
                  f"v_addc_co_u32 v{t1}, vcc, 0, v{t1}, vcc",
                  It(f"global_load_dword v0, v[{t0}:{t1}], off", "vm", "pf")]
        return o

    def gemm1(self):
        A, PD = self.A, self.PD
        S = Stream(self.vm, self.lg)
        S.strict = bool(self.opt.get('strict', 0))
        T = S_T
        NV = 10
        for s in range(NV):
            for f in range(0, 36, 2):
                needs = [("lg", ("W", s, f)), ("lg", ("W", s, f + 1))]
                if f == 0:
                    needs += [("lg", ("XR", s, 0)), ("lg", ("XR", s, 1))]
                bar = s + 1 < NV and f + PD == 36
                if bar:
                    needs.append(("vm", ("D", s + 1)))
                    if s >= 3:
                        needs.append(("vm", "pub"))
                for j, (h, b) in enumerate(zig(f // 2)):
                    S.mfma(self.mfma1(s, f + h, b), needs if j == 0 else (), bar and j == 0)
        opt = self.opt
        sj_at = {}
        S.thin = True

        adv_end = {}

        def tile(t, n, st):
            n = max(n, adv_end.get(t - 1, 0) + 2)
            for k in range(9):
                m, ld = self.dma1(k)
                last = self.put_dma(S, m, ld, ("D", t), n)
                n = last + st
            thin, S.thin = S.thin, t != 2
            adv_end[t] = S.seq(self.dma1_adv(), last + 1)
            S.thin = thin
            assert adv_end[t] // 144 == last // 144
            return n

        def stage(step, hb, n, st):
            m, lds, adv = self.xstage(hb)
            for j, x in enumerate(lds):
                last = self.put_dma(S, m if j == 0 else None, x, ("XS", step, hb), n)
                if j == 0:
                    S.g[last]["V"][-1].needs.append(("lg", ("XR", step - 1, hb)))
                n = last + st
            S.place(adv, last + 1)
            return n

        def xreads(step, hb, n):
            for j, x in enumerate(self.xs_reads(step, hb)):
                n = S.place(It(x, "lg", ("XR", step, hb), needs=[("vm", ("XS", step, hb))] if j == 0 else ()), n) + 2
            assert n < 144 * step - 8
            return n

        def side(s, n):
            if s & 1 or s == 0:
                x = [It(f"buffer_load_dword v0, v{V_L16}, s[{SRD_D}:{SRD_D + 3}], s{S_PFD} offen", "vm", "pf"), f"s_add_u32 s{S_PFD}, s{S_PFD}, {1 << 20}"]
            else:
                x = [It(f"buffer_load_dword v0, v{V_L16}, s[{SRD_C}:{SRD_C + 3}], s{S_PFC} offen", "vm", "pf"), f"s_add_u32 s{S_PFC}, s{S_PFC}, {1 << 19}"]
            sj_at[s] = n
            n = S.seq(self.sj_w(V_LW, "s") + x, n)
            assert n < 144 * s + 143, (s, n - 144 * s)
            return n
        for s in range(NV):
            base = 144 * s
            do_next = s + 1 < NV
            for f in range(36):
                nxt = f + PD
                if nxt < 36 or do_next:
                    tag = ("W", s, nxt) if nxt < 36 else ("W", s + 1, nxt - 36)
                    for i, ins in enumerate(self.rd1(nxt % 36)):
                        S.force(It(ins, "lg", tag), base + 4 * (f & ~1) + RD_GAPS[2 * (f & 1) + i])
            if do_next:
                n = S.seq(self.ring_a(S_R0, S_RST) + [f"s_sub_u32 s{S_RST}, s{S_R0}, s{S_RST}"] + [f"v_add_u32 v{V_RD + j}, s{S_RST}, v{V_RD + j}" for j in range(4)] +
                          [f"s_mov_b32 s{S_RST}, s{S_R0}"] + self.ring_b(S_R0, S_RBO) + [f"s_sub_u32 s{S_R1}, s{S_R0}, s{S_RBO}", f"s_mov_b32 s{S_RBO}, s{S_R0}"], base + 4 * 19)
                assert n < base + 4 * (36 - PD)
                n = S.seq([f"v_add_u32 v{V_RD + j}, s{S_R1}, v{V_RD + j}" for j in (4, 5)], base + 4 * (36 - PD))
                assert n < base + 144
            x0, x1 = opt.get("xr0", 54), opt.get("xr1", 84)
            DA = opt.get("d_ahead", 1)
            if DA <= s < NV - DA:
                n = tile(s + DA, base + 2, opt.get("w_stride", 6))
                n_tile = n
            if s >= 2 or s == 1:
                if s == 1 and DA == 2:
                    x0, x1 = opt.get("xr0_1", 66), opt.get("xr1_1", 88)
                    hs = opt.get("head_stride", 3)
                    n = tile(3, tile(2, base + 2, hs), hs)
                if s < NV - 1:
                    xreads(s + 1, 0, base + x0)
                    self.n_xr = xreads(s + 1, 1, base + x1)
                    self.last_xr = ("XR", s + 1, 1)
                if s < NV - 2:
                    xst = opt.get("x_stride", 4) if (s > 1 or DA == 1) else 3
                    n = stage(s + 2, 0, max(n, base + x0 + 20), xst)
                    n = stage(s + 2, 1, max(n, base + x1 + 20), xst)
            if 0 < s < NV - 3:
                n = side(s, max(n - xst + 2, base + 126))
            if s == 2:
                S.place(It(f"buffer_load_dword v0, v{V_ZR}, s[{SRD_FL}:{SRD_FL + 3}], s{S_V} offen sc1", "vm", "pf"), n, base + 142)
            if s in (4, 6):
                S.place(f"s_add_u32 s{S_IT}, s{S_IT}, 1", base + 4)
                n = S.seq([It(f"buffer_store_dword v{V_TG}, v{V_ZR}, s[{SRD_FL}:{SRD_FL + 3}], s{S_V} offen sc1", "vm", "fc"),
                       f"s_mov_b32 s{S_V}, {hx(OOB)}"], n)
                assert n < base + 144
        hs = opt.get("head_stride", 3)
        n = S.seq(self.sj_w(V_QB, 2) + self.sj_w(V_LW, 3), 0) + 1
        n = stage(1, 1, stage(1, 0, n, hs), hs)
        n = tile(1, n, hs)
        x0, x1 = opt.get("xr0_0", 66), opt.get("xr1_0", 84)
        xreads(1, 0, x0); xreads(1, 1, x1)
        n = stage(2, 0, max(n, x0 + 20), hs)
        n = stage(2, 1, max(n, x1 + 20), hs)
        self.n_head = [n]
        side(0, max(n - hs + 2, 130))
        if self.acc_late:
            n = S.seq(self.sj_acc_w(V_CSA + 4, 0) + self.sj_acc_w(V_QA, 1), 40)
            assert n < opt.get("w23_at", 84)
        n = S.seq(self.sj_acc_w(V_QB, 2) + self.sj_acc_w(V_LW, 3), opt.get("w23_at", 84))
        assert n < sj_at[0], n
        for s in range(1, NV - 3):
            n = S.seq(self.sj_acc_w(V_LW, "s"), sj_at[s] - 24)
            assert n < sj_at[s], (s, n, sj_at[s])
        S.seq(self.sj_rows(2, V_QA, V_QE), opt.get("q2_ld", 90 if self.acc_late else 120))
        if self.acc_late:
            n = S.seq(self.sj_acc_q(0, V_QC, V_QD) + self.sj_rows(1, V_QC, V_QD), 10)
            n = S.seq(self.sj_acc_q(2, V_QA, V_QE) + self.sj_rows(3, V_QA, V_QE) + self.sj_acc_q(1, V_QC, V_QD) +
                      [It(f"buffer_load_dword v0, v{V_ZR}, s[{SRD_FL}:{SRD_FL + 3}], s{T + j} offen sc1", "vm", "pf") for j in (1, 2)], max(n + 1, 144 + 20))
            q3 = self.sj_acc_q(3, V_QA, V_QE)
        else:
          q3 = self.sj_acc_q(3, V_QC, V_QD)
          n = S.seq(self.sj_acc_q(1, V_QC, V_QD), opt.get("q1_at", 24))
          n = S.seq(self.sj_rows(3, V_QC, V_QD), max(n + 1, opt.get("q3_ld", 144 + 30)))
          n = S.seq(self.sj_acc_q(2, V_QA, V_QE) +
                  [It(f"buffer_load_dword v0, v{V_ZR}, s[{SRD_FL}:{SRD_FL + 3}], s{T + j} offen sc1", "vm", "pf") for j in (1, 2)], max(n + 1, 144 + opt.get("q2_at", 70)))
        o = [f"v_mov_b32 v{V_QB + j}, -1" for j in range(4)] + [f"v_and_b32 v{V_QA}, 0xff, v{V_L16}",
             It(f"buffer_store_dwordx4 v[{V_QB}:{V_QB + 3}], v{V_QA}, s[{SRD_FL}:{SRD_FL + 3}], s{T} offen sc1", "vm", "pub"),
             f"s_sub_u32 s{T}, 31, s{S_G}", f"s_lshl_b32 s{T}, s{T}, 8",
             It(f"buffer_store_dwordx4 v[{V_QB}:{V_QB + 3}], v{V_QA}, s[{SRD_AG}:{SRD_AG + 3}], s{T} offen sc1", "vm", "pub")]
        n = S.seq(q3 + o + self.sj_finish_rows(), n + 1)
        self.n_pub = n - 288
        assert n < 432
        B13, B14, B15 = 144 * (NV - 3), 144 * (NV - 2), 144 * (NV - 1)
        FC, FM = 28, 42
        ld, chk = self.poll_items("LF_c", f"buffer_load_dwordx4 v[{FC}:{FC + 3}], v{V_L16}, s[{SRD_FL}:{SRD_FL + 3}], s{S_V} offen sc1", FM + 1,
                                  [f"v_min3_u32 v{FM}, v{FC}, v{FC + 1}, v{FC + 2}", f"v_max3_u32 v{FM + 1}, v{FC}, v{FC + 1}, v{FC + 2}",
                                   f"v_min_u32 v{FM}, v{FM}, v{FC + 3}", f"v_max_u32 v{FM + 1}, v{FM + 1}, v{FC + 3}",
                                   f"v_cmp_ne_u32 s[{T + 3}:{T + 4}], s{S_TAG}, v{FM}"],
                                  [f"s_or_b64 vcc, vcc, s[{T + 3}:{T + 4}]"])
        S.thin = False
        n = B15
        for t in range(2):
            for e in range(8):
                m, x = self.dma2(t, e)
                n = self.put_dma(S, m, x, ("D2", t), n + opt.get("d2_stride", 5))
            n = S.seq(self.dma2_adv(t), n + 1)
        self.n_tail = [n - B15]
        n_cs = S.seq([f"s_mov_b32 s{S_V}, {FL_C}", ld] + self.sj_finish_cols(), B13)
        n_rows = S.seq(chk + self.rows_in(), max(n_cs + 1, B13 + opt.get("fc_chk", 70)))
        n = S.seq(self.prefetch_items(), max(n_rows + 1, B14))
        n = S.seq(self.fo2_items(), max(n + 1, adv_end[NV - 1] + 1))
        n = S.seq(self.res_items() + self.tables(), max(n + 1, self.n_xr))
        assert n < B15
        cl, cu = self.cols_in()
        n_cols = S.seq(cl, max(n + 1, B14 + opt.get("cols_at", 120)))
        pi = self.param_items()
        pi[self.par_first].needs.append(("vm", ("sw", "s")))
        n = S.seq(pi[:self.par_split], n_cs + 1)
        n = S.seq(pi[self.par_split:] + self.k_items(), max(n, n_rows) + 1)
        self.n_tail += [n - B14, n_cols - B15]
        n = S.seq(cu, max(n + 1, n_cols + opt.get("cols_lat", 56)))
        self.n_tail.append(n - B15)
        pre, segs = S.emit()
        flat = lambda a, b: [x for s in segs[a:b] for x in s]
        body, body2 = flat(432, 720), flat(720, 1008)
        if body != body2:
            assert len(body) == len(body2)
            for x, y in zip(body, body2):
                if x != y:
                    assert x.startswith("s_waitcnt") and y.startswith("s_waitcnt"), (x, y)
                    cx, cy = dict(re.findall(r"(\w+)\((\d+)\)", x)), dict(re.findall(r"(\w+)\((\d+)\)", y))
                    assert all(k in cy and int(cy[k]) <= int(v) for k, v in cx.items()), (x, y)
        A(pre)
        A(self.st.stamp("tile0"))
        A(flat(0, 144))
        A(self.st.stamp("step0"))
        cuts = [144] + sorted(self.opt.get("cuts", [])) + [432]
        for a, b in zip(cuts, cuts[1:]):
            A(flat(a, b))
            A(self.st.stamp("step2" if b == 432 else f"c{b}"))
        A(".p2align 5")
        A("LF_loop:")
        abl = self.opt.get("abl", "")
        if abl:
            def keep(l):
                if l.startswith("ds_read"): return "W" not in abl
                if l.startswith("buffer_load") and l.endswith("lds"): return "D" not in abl
                if re.match(r"s_\w+ m0,", l): return "D" not in abl
                if l.startswith("buffer_load_dwordx4"): return "X" not in abl
                if l.startswith("buffer_load_dword "): return "P" not in abl
                if l.startswith("s_barrier"): return "B" not in abl
                return True
            body2 = [l if keep(l) else "s_nop 0" for l in body2]
        A(body2)
        A(f"s_cmp_lt_u32 s{S_IT}, 5")
        A("s_cbranch_scc1 LF_loop")
        A(self.st.stamp("loop12"))
        A(flat(B13, B14))
        A(self.st.stamp("step13"))
        A(flat(B14, B15))
        A(self.st.stamp("step14"))
        A(flat(B15, 144 * NV))
        bad = hazard.check(body2 + body2)
        assert not bad, bad
        self.over1 = S.over

    def transition(self):
        A = self.A
        T = S_T
        vm = self.vm
        A(self.st.stamp("loopend"))
        lg = self.lg
        p = lambda x: f"v[{x}:{x + 1}]"
        SB = [44, 12]

        def st_read(b):
            for j in range(2):
                d = SB[b & 1] + 4 * j
                A(f"ds_read_b128 v[{d}:{d + 3}], v0 offset:{TB_S2 + 32 * b + 16 * j}"); lg.issue(("st", b))
        st_read(0); st_read(1)
        for b in range(4):
            first = True
            for sb in range(2):
                cf, k = par(sb, P_CF), 52 + 2 * sb
                l1, l2, l3, l4 = [], [], [], []
                for r in range(4):
                    d, st = uu(sb, 4 * r + b), SB[b & 1] + 2 * r
                    a_re, a_im, s = accS(0, sb, b).i + r, accS(1, sb, b).i + r, r & 1
                    l1.append(f"v_pk_mul_f32 {p(d)}, {p(cf)}, {p(a_re - s)} op_sel:[0,{s}] op_sel_hi:[1,{s}]")
                    l2.append(f"v_pk_fma_f32 {p(d)}, {p(cf)}, {p(a_im - s)}, {p(d)} op_sel:[1,{s},0] op_sel_hi:[0,{s},1] neg_lo:[1,0,0]")
                    l3.append(f"v_pk_fma_f32 {p(d)}, {p(k)}, {p(st)}, {p(d)} op_sel_hi:[1,0,1] neg_lo:[0,1,0] neg_hi:[0,1,0]")
                    l4.append(f"v_pk_mul_f32 {p(d)}, {p(d)}, {p(st)} op_sel:[0,1]")
                A(l1); A(l2)
                if first:
                    A(waitcnt(None, lg.need(("st", b))))
                first = False
                A(l3); A(l4)
            if b < 2:
                st_read(b + 2)
        CB = [44, 48, 12, 16]
        vc0, vc6 = par(0, P_CF), par(0, P_CF) + 1
        A(f"v_and_b32 v0, 15, v{V_LANE}")
        A(f"v_lshl_add_u32 v0, v0, 5, s{S_LX}")
        A(f"v_and_b32 v{vc6}, 48, v{V_LANE}")
        A(f"s_lshl_b32 s{T}, s{S_odd}, 6")
        A(f"s_add_u32 s{T}, s{T}, s{S_LX}")
        A(f"s_mul_i32 s{T + 1}, s{S_odd}, 384")
        A(f"s_sub_u32 s{T + 1}, s{S_LX}, s{T + 1}")
        A(f"v_add_u32 v{vc0}, s{T}, v{vc6}")
        A(f"v_add_u32 v{vc6}, s{T + 1}, v{vc6}")

        def cb_read(b):
            A(f"ds_read_b64 {p(CB[b] + 2)}, v0 offset:{TB_S1 + 8 * b}"); lg.issue(("cb", b))

        def cs_read(t, jb, d):
            A(f"ds_read_b128 v[{d}:{d + 3}], v{vc0 if jb < 6 else vc6} offset:{TB_CS + 448 * t + 64 * jb}"); lg.issue(("cs", t, jb))
        cb_read(0); cb_read(1)
        Q0, Q1 = 120, 124
        cur = [uu(0, 0), uu(1, 0)]
        for tau in range(1, 16):
            dst = Q0 if tau & 1 else Q1
            A(interleave(*[cmul_add(dst + 2 * sb, par(sb, P_L1), cur[sb], uu(sb, tau)) for sb in range(2)]))
            cur = [dst, dst + 2]
        g0, g1, g2, g3, PQ = Q0, Q1, 12, 16, 52
        A([f"v_mov_b64 v[{g2 + j}:{g2 + j + 1}], v[{g0 + j}:{g0 + j + 1}]" for j in (0, 2)])
        A(f"s_sub_u32 s{T}, 31, s{S_G}")
        A(f"s_lshl_b32 s{T}, s{T}, 8")
        A([f"v_permlane32_swap_b32 v{g0 + j}, v{g2 + j}" for j in range(4)])
        A([f"v_mov_b64 v[{g1 + j}:{g1 + j + 1}], v[{g0 + j}:{g0 + j + 1}]" for j in (0, 2)])
        A([f"v_mov_b64 v[{g3 + j}:{g3 + j + 1}], v[{g2 + j}:{g2 + j + 1}]" for j in (0, 2)])
        A([f"v_permlane16_swap_b32 v{g0 + j}, v{g1 + j}" for j in range(4)])
        A([f"v_permlane16_swap_b32 v{g2 + j}, v{g3 + j}" for j in range(4)])
        for prev, nx in [(g0, g1), (g1, g2), (g2, g3)]:
            A(interleave(*[cmul_add(nx + 2 * sb, par(sb, P_L16), prev + 2 * sb, nx + 2 * sb) for sb in range(2)]))
        A("s_mov_b64 exec, 0xffff")
        A(f"buffer_store_dwordx4 v[{g3}:{g3 + 3}], v{V_L16}, s[{SRD_AG}:{SRD_AG + 3}], s{T} offen sc1"); vm.issue("agg")
        A(f"v_mov_b64 v[{PQ}:{PQ + 1}], 0")
        A(f"v_mov_b64 v[{PQ + 2}:{PQ + 3}], 0")
        for src in (g0, g1, g2):
            A("s_lshl_b64 exec, exec, 16")
            A(f"v_mov_b64 v[{PQ}:{PQ + 1}], v[{src}:{src + 1}]")
            A(f"v_mov_b64 v[{PQ + 2}:{PQ + 3}], v[{src + 2}:{src + 3}]")
        A("s_mov_b64 exec, -1")
        A(self.st.stamp("publish"))
        cb_read(2); cb_read(3)
        cs_read(0, 0, 120); cs_read(0, 1, 124)
        A(f"s_mov_b32 s{T}, s{S_AOWN}")
        A(f"s_lshr_b32 s{T + 2}, s{S_nt}, 1")
        A(f"s_sub_u32 s{T + 2}, s{T + 2}, s{S_DOWN}")
        A(f"s_add_u32 s{T + 2}, s{T + 2}, 24")
        A(f"s_lshl_b32 s{T + 2}, s{T + 2}, 3")
        A(f"s_add_u32 s{T + 2}, s{T + 2}, s{S_odd}")
        A(f"s_lshl_b32 s{T + 2}, s{T + 2}, 9")
        A(f"s_add_u32 s{T + 2}, s{T + 2}, s{T}")
        c0 = -2.0 * LOG2E * math.sqrt(2.0 / math.pi)
        A(waitcnt(None, lg.need(("cb", 3))))
        A([f"v_mul_f32 v{c}, v{c + 3}, v{c + 3}" for c in CB])
        A([f"v_mul_f32 v{c + 1}, {hx(f2u(c0))}, v{c + 3}" for c in CB])
        A([f"v_rcp_f32 v{c + 3}, v{c}" for c in CB])
        A([f"v_mul_f32 v{c}, v{c}, v{c + 1}" for c in CB])
        A([f"v_mul_f32 v{c}, {hx(f2u(0.044715))}, v{c}" for c in CB])
        demean = lambda x, cs, b: f"v_pk_fma_f32 {p(x)}, {p(cs)}, {p(CB[b] + 2)}, {p(x)} op_sel_hi:[1,0,1] neg_lo:[0,1,0] neg_hi:[0,1,0]"

        def demean_block(t, jb, cs):
            A(waitcnt(None, lg.need(("cs", t, jb))))
            A([demean(accF(t, jb, b).i + j, cs + j, b) for b in range(4) for j in (0, 2)])
        CSQ = {(0, 2): 192, (0, 3): 196, (1, 2): 200, (1, 3): 204, (0, 4): 176, (0, 5): 180, (1, 4): 184, (1, 5): 188, (0, 6): 248, (1, 6): 252}
        demean_block(0, 0, 120); cs_read(1, 0, 120)
        demean_block(0, 1, 124); cs_read(1, 1, 124)
        demean_block(1, 0, 120)
        demean_block(1, 1, 124)
        Z = 120
        GT, UT = 224, 232

        def gelu(blk, out):
            g, u, cb = [], [], []
            gq, uq = [accF(0, jb, b) for jb, b in blk], [accF(1, jb, b) for jb, b in blk]
            ag = gq[0].t == "a"
            for h in range(2):
                cb += [CB[blk[h][1]]] * 2
                if ag:
                    A([f"v_accvgpr_read_b32 v{GT + 4 * h + r}, a{gq[h].i + r}" for r in range(4)])
                    g += [GT + 4 * h, GT + 4 * h + 2]; u += [UT + 4 * h, UT + 4 * h + 2]
                else:
                    g += [gq[h].i, gq[h].i + 2]; u += [uq[h].i, uq[h].i + 2]
            if ag:
                A(waitcnt(None, lg.need(*[("cs", t, jb) for t in range(2) for jb, b in blk])))
                A([demean(g[j], CSQ[(0, blk[j >> 1][0])] + 2 * (j & 1), blk[j >> 1][1]) for j in range(4)])
            A([f"v_pk_mul_f32 {p(Z + 2 * j)}, {p(g[j])}, {p(g[j])}" for j in range(4)])
            A([f"v_pk_fma_f32 {p(Z + 2 * j)}, {p(Z + 2 * j)}, {p(cb[j])}, {p(cb[j])} op_sel:[0,0,1] op_sel_hi:[1,0,1]" for j in range(4)])
            A([f"v_pk_mul_f32 {p(Z + 2 * j)}, {p(Z + 2 * j)}, {p(g[j])}" for j in range(4)])
            A([f"v_exp_f32 v{Z + j}, v{Z + j}" for j in range(8)])
            if ag:
                for h in range(2):
                    A([f"v_accvgpr_read_b32 v{UT + 4 * h + r}, a{uq[h].i + r}" for r in range(4)])
                A([demean(u[j], CSQ[(1, blk[j >> 1][0])] + 2 * (j & 1), blk[j >> 1][1]) for j in range(4)])
            A([f"v_pk_fma_f32 {p(Z + 2 * j)}, {p(Z + 2 * j)}, {p(cb[j] + 2)}, {p(cb[j] + 2)} op_sel:[0,1,1] op_sel_hi:[1,1,1]" for j in range(4)])
            A([f"v_rcp_f32 v{Z + j}, v{Z + j}" for j in range(8)])
            A([f"v_pk_mul_f32 {p(u[j])}, {p(u[j])}, {p(g[j])}" for j in range(4)])
            A([f"v_pk_mul_f32 {p(u[j])}, {p(u[j])}, {p(Z + 2 * j)}" for j in range(4)])
            A([f"v_cvt_pk_bf16_f32 v{out + j}, v{u[j]}, v{u[j] + 1}" for j in range(4)])

        A(f"s_lshl_b32 s{T + 3}, s{S_nt}, 2")
        assert V_T2 + 2 == par(1, P_CF)
        A(f"v_mov_b32 v{V_T2 + 2}, s{T + 3}")
        A(f"v_mov_b32 v{V_T2 + 3}, s{S_TAG}")

        def emit_fa(where):
            if where != self.opt.get("fa_at", "horner"):
                return
            A(self.st.stamp("prefa"))
            A(waitcnt(vm.need("act")))
            A("s_mov_b64 exec, 1")
            A(f"buffer_store_dword v{V_T2 + 3}, v{V_T2 + 2}, s[{SRD_FL}:{SRD_FL + 3}], s{S_FA} offen sc1"); vm.issue("fa")
            A("s_mov_b64 exec, -1")
            A(self.st.stamp("faflag"))

        LB = 192
        va, vx = 0, Z
        lb_loads = [f"buffer_load_dwordx4 v[{LB + 4 * e}:{LB + 4 * e + 3}], v{va}, s[{SRD_AG}:{SRD_AG + 3}], 0 offen offset:{e * 256} sc1" for e in range(8)]
        for pp in range(3):
            for b in range(4):
                o = own(pp, b)
                gelu([(2 * pp, b), (2 * pp + 1, b)], o)
                A(f"buffer_store_dwordx4 v[{o}:{o + 3}], v{V_L16}, s[{SRD_A2}:{SRD_A2 + 3}], s{T} offen offset:{b * 1024} sc1"); vm.issue("act")
            if pp < 2:
                A(f"s_add_u32 s{T}, s{T}, 4096")
            for (t, jb), d in CSQ.items():
                if (pp == 0 and jb < 4) or (pp == 1 and jb >= 4):
                    cs_read(t, jb, d)
            if pp == 0:
                A(waitcnt(vm.need(("D2", 0), ("D2", 1), "res")))
                A("s_barrier")
                for e in range(8):
                    m, ld = self.dma2(2, e)
                    if m:
                        A(m); A("s_nop 0")
                    A(ld); vm.issue(("D2", 2))
                for x in self.dma2_adv(2):
                    A(x)
                for t in range(2):
                    for jb in (2, 3):
                        demean_block(t, jb, CSQ[(t, jb)])
            if pp == 1:
                A(f"v_lshrrev_b32 v{va}, 4, v{V_LANE}")
                A(f"v_and_b32 v{vx}, 15, v{V_LANE}")
                A(f"v_lshlrev_b32 v{va}, 11, v{va}")
                A(f"v_lshl_add_u32 v{va}, v{vx}, 4, v{va}")
                A(f"s_sub_u32 s{T + 3}, 32, s{S_G}")
                A(f"s_lshl_b32 s{T + 3}, s{T + 3}, 8")
                A(f"v_add_u32 v{va}, s{T + 3}, v{va}")
                for x in lb_loads:
                    A(x); vm.issue("lb")
        for b2 in range(2):
            o = 240 + 4 * b2
            gelu([(6, 2 * b2), (6, 2 * b2 + 1)], o)
            for h in range(2):
                A(f"buffer_store_dwordx2 v[{o + 2 * h}:{o + 2 * h + 1}], v{V_L8}, s[{SRD_A2}:{SRD_A2 + 3}], s{T + 2} offen offset:{(2 * b2 + h) * 1024} sc1"); vm.issue("hst")
        A(self.st.stamp("gelu"))
        emit_fa("gelu")
        A(f"s_mov_b32 s{T + 4}, 0")
        A(waitcnt(vm.need("lb")))
        A("LF_lbchk:")
        A(f"v_max_u32 v{vx}, v{LB}, v{LB + 1}")
        for j in range(2, 32, 2):
            A(f"v_max3_u32 v{vx}, v{vx}, v{LB + j}, v{LB + j + 1}")
        A(f"v_cmp_eq_u32 vcc, -1, v{vx}")
        A(f"s_add_u32 s{T + 4}, s{T + 4}, 1")
        A("s_cbranch_vccnz LF_lbspin")
        A("LF_lbok:")
        self.lb_loads = lb_loads
        for e in range(6, -1, -1):
            A(interleave(*[cmul_add(LB + 4 * e + 2 * sb, par(sb, P_L64), LB + 4 * (e + 1) + 2 * sb, LB + 4 * e + 2 * sb) for sb in range(2)]))
        Sx, St = LB + 4, LB + 8
        A(interleave(*[cmul(Sx + 2 * sb, par(sb, P_L512Q), LB + 2 * sb) for sb in range(2)]))
        for swp in ["v_permlane32_swap_b32", "v_permlane16_swap_b32"]:
            A([f"v_mov_b64 v[{St + j}:{St + j + 1}], v[{Sx + j}:{Sx + j + 1}]" for j in (0, 2)])
            A("s_nop 1")
            A([f"{swp} v{Sx + j}, v{St + j}" for j in range(4)])
            A([f"v_pk_add_f32 v[{Sx + j}:{Sx + j + 1}], v[{Sx + j}:{Sx + j + 1}], v[{St + j}:{St + j + 1}]" for j in (0, 2)])
        A(interleave(*[cmul_add(PQ + 2 * sb, par(sb, P_L16Q), Sx + 2 * sb, PQ + 2 * sb) for sb in range(2)]))
        emit_fa("horner")
        cur = [PQ, PQ + 2]
        for tau in range(16):
            A(interleave(*[cmul_add(uu(sb, tau), par(sb, P_L1), cur[sb], uu(sb, tau)) for sb in range(2)]))
            cur = [uu(0, tau), uu(1, tau)]
        vw, vrd, q, i = V_T + 2, V_T + 3, V_T2, V_T2 + 1
        emit_fa("p2")
        A(f"v_and_b32 v{i}, 15, v{V_LANE}")
        A(f"v_lshrrev_b32 v{q}, 4, v{V_LANE}")
        A(f"s_add_u32 s{T + 3}, s{S_DB}, {L_H}")
        t0, t1 = V_T, V_T + 1
        A(f"v_lshrrev_b32 v{t0}, 2, v{i}")
        A(f"v_xor_b32 v{t0}, v{t0}, v{q}")
        A(f"v_lshl_add_u32 v{vw}, v{i}, 5, s{T + 3}")
        A(f"v_lshl_add_u32 v{vw}, v{t0}, 3, v{vw}")
        k = 0
        for ri in range(2):
            ng = "-" if ri else ""
            cv, wr = [], []
            for b in range(4):
                for sb in range(2):
                    d = V_FR + 2 * k; k += 1
                    cv.append(f"v_cvt_pk_bf16_f32 v{d}, {ng}v{uu(sb, b) + ri}, {ng}v{uu(sb, 4 + b) + ri}")
                    cv.append(f"v_cvt_pk_bf16_f32 v{d + 1}, {ng}v{uu(sb, 8 + b) + ri}, {ng}v{uu(sb, 12 + b) + ri}")
                    wr.append(f"ds_write_b64 v{vw}, v[{d}:{d + 1}] offset:{(ri * 4 + b) * 1024 + sb * 512}")
            A(cv); A(wr)
            for x in wr:
                self.lg.issue("hwr")
        A(f"v_lshlrev_b32 v{t0}, 1, v{q}")
        A(f"v_and_b32 v{t0}, 2, v{t0}")
        A(f"v_xor_b32 v{t0}, v{t0}, v{i}")
        A(f"v_lshl_add_u32 v{vrd}, v{t0}, 3, s{T + 3}")
        A(f"v_lshl_add_u32 v{vrd}, v{q}, 8, v{vrd}")
        A(f"v_xor_b32 v{vw}, 8, v{vrd}")
        for ri in range(2):
            for b in range(4):
                for h in range(2):
                    d = V_FR + (ri * 4 + b) * 4 + 2 * h
                    A(f"ds_read_b64_tr_b16 v[{d}:{d + 1}], v{vw if h else vrd} offset:{(ri * 4 + b) * 1024 + h * 128}")
                    self.lg.issue(("hrd", ri, b))
        A(f"v_lshrrev_b32 v{t0}, 2, v{V_LANE}")
        A(f"v_and_b32 v{t1}, 7, v{t0}")
        A(f"v_lshlrev_b32 v{t0}, 8, v{t0}")
        A(f"v_lshl_add_u32 v{t0}, v{t1}, 5, v{t0}")
        A(f"v_and_b32 v{t1}, 3, v{V_LANE}")
        A(f"v_lshl_add_u32 v{V_RF}, v{t1}, 3, v{t0}")
        for jl in range(1, 8):
            A(f"v_xor_b32 v{V_RF + jl}, {jl * 32}, v{V_RF}")
        A(f"v_and_b32 v{V_FLG + 1}, 7, v{V_LANE}")
        A(f"v_lshlrev_b32 v{V_FLG + 1}, 2, v{V_FLG + 1}")
        A(f"s_lshl_b32 s{S_HO}, s{S_nt}, 13")
        A(f"s_add_u32 s{S_HO}, s{S_HO}, s{S_ASSM}")
        A(f"s_add_u32 s{S_U4}, s{S_HO}, 4096")

    def gemm2(self):
        A, PD, opt = self.A, self.PD, self.opt
        T = S_T
        TK, PM = opt.get("TK", 3), opt.get("PM", 2)
        assert PM <= TK <= 3
        G = []
        for s in range(NSTEP - PM):
            G += [(s, kb, jl) for kb in range(4) for jl in range(0 if s < NSTEP - TK else 2, 8)]
        pair_end = {}
        for d in (1, 2, 3):
            G += [(s, kb, jl) for s in range(NSTEP - PM, NSTEP) for kb in range(4) for jl in (2 * d, 2 * d + 1)]
            pair_end[d] = len(G)
        G += [(s, kb, jl) for s in range(NSTEP - TK, NSTEP) for kb in range(4) for jl in (0, 1)]
        first_s, first_a, last_a = {}, {}, {}
        for idx, (s, kb, jl) in enumerate(G):
            first_s.setdefault(s, idx); first_a.setdefault((s, kb), idx); last_a[(s, kb)] = idx
        bar_at = {first_s[t] - PD: t for t in range(1, NSTEP)}
        S = Stream(self.vm, self.lg)
        S.strict = bool(self.opt.get('strict', 0))
        for idx in range(0, len(G), 2):
            s, kb, jl = G[idx]
            assert G[idx + 1] == (s, kb, jl + 1)
            needs = [("lg", ("W2", idx)), ("lg", ("W2", idx + 1))]
            if first_a[(s, kb)] == idx and not (s == 0 and kb < 3):
                needs.append(("vm", ("A", s, kb)))
            if idx in bar_at:
                needs.append(("vm", ("D2", bar_at[idx])))
            for j, (h, b) in enumerate(zig(idx // 2)):
                w = A_W2 + 4 * ((idx + h) % 8)
                c = acc2(jl + h, b)
                sc = "0" if (s == 0 and kb == 0) else f"v[{c}:{c + 3}]"
                S.mfma(f"v_mfma_f32_16x16x32_bf16 v[{c}:{c + 3}], a[{w}:{w + 3}], {self.areg(s, kb, b).r(4)}, {sc}", needs if j == 0 else (), idx in bar_at and j == 0)
        NG = len(G)
        RXr = lambda k, b: V_OWN + 16 * k + 4 * b
        rx_m = {}
        for k in range(3):
            for b in range(4):
                for jl in range(2):
                    c, sel = acc2(jl, b), V_SEL + (2 if jl == 0 else 0)
                    n = S.mfma(f"v_mfma_f32_16x16x32_bf16 v[{c}:{c + 3}], v[{sel}:{sel + 3}], v[{RXr(k, b)}:{RXr(k, b) + 3}], v[{c}:{c + 3}]",
                               [("vm", ("RX", k, b))] if jl == 0 else ())
                    rx_m.setdefault(k, n)
        A(self.st.stamp("g2start"))
        for idx in range(PD):
            for ins in self.rd2(idx, *G[idx]):
                A(ins); self.lg.issue(("W2", idx))
        last_rf = {}
        for idx in range(NG - PD):
            s, kb, jl = G[idx + PD]
            for i, ins in enumerate(self.rd2(idx + PD, s, kb, jl)):
                n = S.force(It(ins, "lg", ("W2", idx + PD)), 4 * (idx & ~1) + RD_GAPS[2 * (idx & 1) + i])
            last_rf[(s, jl)] = n
        for s in (1, 3, 5):
            for jl in range(8):
                S.place(f"v_xor_b32 v{V_RF + jl}, 0x10000, v{V_RF + jl}", last_rf[(s, jl)], last_rf[(s, jl)] + 3)
        n = opt.get("hst0", 0)
        for ri in range(2):
            for b in range(4):
                d = V_FR + (ri * 4 + b) * 4
                x = It(f"buffer_store_dwordx4 v[{d}:{d + 3}], v{V_L16}, s[{SRD_A2}:{SRD_A2 + 3}], s{S_U4 if ri else S_HO} offen offset:{b * 1024} sc1",
                       "vm", "hst", needs=[("lg", ("hrd", ri, b))])
                n = S.place(x, n) + opt.get("hst_gap", 2)
        ld, chk = self.poll_items("LF_fa", f"buffer_load_dword v{V_FLG}, v{V_FLG + 1}, s[{SRD_FL}:{SRD_FL + 3}], s{S_FA} offen sc1", V_FLG)
        n_hst = n
        n = S.place(ld, opt.get("fa_ld", 30))
        p_fa = S.seq(chk, max(n + 1, opt.get("fa_chk", 60)))
        x = self.st.stamp("fapoll")
        if x:
            S.place(It(x), p_fa + 1)
        for t in range(1, NSTEP):
            x = self.st.stamp(f"s{t}")
            if x:
                S.place(It(x), 4 * first_s[t])
        fs_ld, fs_chk = self.poll_items("LF_fs", f"buffer_load_dword v{V_FLG}, v{V_FLG + 1}, s[{SRD_FL}:{SRD_FL + 3}], s{S_FA} offen offset:32 sc1", V_FLG)
        Q = []
        for s in range(NSTEP):
            for kb in range(4):
                if s == 0 and kb < 3:
                    continue
                early = 4 * last_a[(s - 3, kb)] + 4 if s >= 3 else 0
                Q.append((4 * first_a[(s, kb)], "A", s, kb, early))
        for t in range(3, NSTEP):
            early = 4 * (first_s[t - 2] - PD)
            Q.append((4 * (first_s[t] - PD), "D", t, 0, early))
        Q.sort(key=lambda x: x[0])
        rate, burst = opt.get("rate", 5), opt.get("burst", 4)
        n = p_fa + 1
        slack = []
        q, i = V_T2, V_T2 + 1
        pos = {}
        for need, kind, a, b_, early in Q:
            step = rate if need - n > opt.get("ahead", 128) else (burst if need - n > 80 else opt.get("burst0", 2))
            n = max(n, early)
            if kind == "A":
                if (a, b_) == (NF - 1, 0):
                    n = S.seq(fs_chk, n) + 1
                lds_ = self.a_loads(a, b_)
                for j, x in enumerate(lds_):
                    n = S.place(It(x, "vm", ("A", a, b_)), n)
                    last = n
                    n += step if len(lds_) == 4 else (step + (j & 1)) // 2
                slack.append((kind, a, b_, need - last))
                n = max(n, S.seq(self.a_adv(a, b_), last + 1))
                pos[(a, b_)] = n
                if (a, b_) == tuple(opt.get("fs_at", (2, 3))):
                    assert n > n_hst
                    p_fs = S.place(It([f"buffer_store_dword v{V_T2 + 3}, v{V_T2 + 2}, s[{SRD_FL}:{SRD_FL + 3}], s{S_FA} offen offset:32 sc1"], "vm", "fs", needs=[("vm", "hst")]), n)
                    n = p_fs + 1
                if (a, b_) == (NF - 2, opt.get("fs_kb", 0)):
                    n = S.place(fs_ld, n) + 1
            else:
                for e in range(8):
                    m, ldi = self.dma2(a, e)
                    n = self.put_dma(S, m, ldi, ("D2", a), n)
                    last = n
                    n += step
                slack.append((kind, a, 0, need - last))
                n = max(n, S.seq(self.dma2_adv(a), last + 1))
                pos[("D", a)] = n
        self.slack = slack
        assert min(x[3] for x in slack) > 1, slack
        t0, t1, t2, t3 = V_T2 + 4, V_T2 + 5, V_T2 + 6, V_T2 + 7
        o = [f"s_and_b32 s{T}, s{S_W}, 1", f"s_lshl_b32 s{T}, s{T}, 1", f"s_add_u32 s{T}, s{T}, s{S_sp}", f"s_lshl_b32 s{T}, s{T}, 5",
             f"v_lshrrev_b32 v{t0}, 3, v{V_LANE}", f"v_and_b32 v{t1}, 7, v{V_LANE}"]
        for e in range(8):
            o += [f"v_add_u32 v{t2}, {8 * e}, v{t0}",
                  f"v_bfe_u32 v{t3}, v{t2}, 1, 3",
                  f"v_xor_b32 v{t3}, v{t3}, v{t1}",
                  f"v_lshlrev_b32 v{t3}, 4, v{t3}",
                  f"v_add_u32 v{t2}, s{T}, v{t2}",
                  f"v_and_b32 v{t2}, 127, v{t2}",
                  f"v_lshl_add_u32 v{V_SO2 + e}, v{t2}, 11, v{t3}"]
            if e & 3:
                o.append(f"v_subrev_u32 v{V_SO2 + e}, {(e & 3) * 1024}, v{V_SO2 + e}")
        o += [f"v_lshrrev_b32 v{t0}, 1, v{i}", f"v_xor_b32 v{t0}, v{t0}, v{q}", f"v_lshlrev_b32 v{t0}, 4, v{t0}",
              f"v_lshl_add_u32 v{V_RS}, v{i}, 7, v{t0}", f"v_xor_b32 v{V_RS + 1}, 64, v{V_RS}",
              f"v_add_u32 v{V_RS + 2}, 0x10000, v{V_RS}", f"v_add_u32 v{V_RS + 3}, 0x10000, v{V_RS + 1}"]
        o += [f"v_mov_b32 v{V_SEL + j}, 0" for j in (0, 1, 4, 5)]
        o += [f"v_lshlrev_b32 v{t0}, 2, v{q}", f"v_sub_u32 v{t0}, v{i}, v{t0}",
              f"v_and_b32 v{t1}, 1, v{t0}", f"v_lshlrev_b32 v{t1}, 4, v{t1}", f"v_mov_b32 v{t2}, 0x3f80", f"v_lshlrev_b32 v{t1}, v{t1}, v{t2}",
              f"v_lshrrev_b32 v{t0}, 1, v{t0}",
              f"v_cmp_eq_u32 s[{T + 1}:{T + 2}], 0, v{t0}", f"v_cmp_eq_u32 s[{T + 3}:{T + 4}], 1, v{t0}", f"v_mov_b32 v{t2}, 0", f"v_mov_b32 v{t3}, 0",
              f"v_cndmask_b32 v{V_SEL + 2}, v{t2}, v{t1}, s[{T + 1}:{T + 2}]", f"v_cndmask_b32 v{V_SEL + 3}, v{t2}, v{t1}, s[{T + 3}:{T + 4}]"]
        n = S.seq(o, p_fa + 2)
        assert n < pos[("D", NF - 1)] - 64
        ST, DKr, XR, DK, NM, XT = V_OWN, V_OWN + 8, V_OWN + 12, V_OWN + 28, V_OWN + 36, V_OWN + 40
        n = max(n + 1, 4 * first_s[1], p_fs + 1)
        o = [f"v_lshl_add_u32 v{t3}, v{i}, 5, s{S_LX}"]
        o += [It(f"ds_read_b128 v[{ST + 4 * j}:{ST + 4 * j + 3}], v{t3} offset:{TB_S1 + 16 * j}", "lg", "xr") for j in range(2)]
        o += [f"v_lshl_add_u32 v{t3}, v{i}, 6, s{S_LX}", f"v_lshl_add_u32 v{t3}, v{q}, 3, v{t3}"]
        o += [It(f"ds_read_b64 v[{XR + (b * 2 + jl) * 2}:{XR + (b * 2 + jl) * 2 + 1}], v{t3} offset:{TB_X + b * 1024 + jl * 32}", "lg", "xr") for b in range(4) for jl in range(2)]
        o += [f"v_accvgpr_read_b32 v{DKr + j}, a{A_RES + j}" for j in range(4)]
        n = S.seq(o, n) + 1
        o = []
        for j in range(4):
            o += [f"v_lshlrev_b32 v{DK + 2 * j}, 16, v{DKr + j}", f"v_and_b32 v{DK + 2 * j + 1}, 0xffff0000, v{DKr + j}"]
        o += [It(f"v_mul_f32 v{NM + b}, v{ST + 2 * b}, v{ST + 2 * b + 1}", needs=[("lg", "xr")] if b == 0 else ()) for b in range(4)]
        Rr = lambda jl, b: V_FR + (jl * 4 + b) * 4
        first = True
        for b in range(4):
            for jl in range(2):
                d = XR + (b * 2 + jl) * 2
                for r in range(4):
                    un = f"v_and_b32 v{XT}, 0xffff0000, v{d + (r >> 1)}" if r & 1 else f"v_lshlrev_b32 v{XT}, 16, v{d + (r >> 1)}"
                    o += [It(un, needs=[("lg", "xr")] if first else ()),
                          f"v_fma_f32 v{XT + 1}, v{XT}, v{ST + 2 * b + 1}, -v{NM + b}",
                          f"v_fma_f32 v{Rr(jl, b) + r}, v{XT + 1}, v{DK + 4 * jl + r}, v{XT}"]
                    first = False
        vo, fz = t0, t1
        o += [f"v_lshlrev_b32 v{vo}, 14, v{i}", f"v_lshl_add_u32 v{vo}, v{q}, 4, v{vo}", f"v_mov_b32 v{fz}, 0",
              f"s_lshl_b32 s{S_U0}, s{S_U0}, 7", f"s_lshl_b32 s{T}, s{S_G}, 18", f"s_add_u32 s{S_U0}, s{S_U0}, s{T}",
              f"s_lshl_b32 s{S_U1}, s{S_tile}, 11", f"s_lshl_b32 s{T}, s{S_W}, 7", f"s_add_u32 s{S_U1}, s{S_U1}, s{T}", f"s_add_u32 s{S_U1}, s{S_U1}, {FL_P}",
              f"s_mul_i32 s{S_U2}, s{S_tile}, {12 * 16384}", f"s_lshl_b32 s{T}, s{S_W}, 12", f"s_add_u32 s{S_U2}, s{S_U2}, s{T}"]
        n = S.seq(o, n + 8)
        o = []
        for d in (1, 2, 3):
            sd, sf = T + 2 * (d - 1), T + 2 * (d - 1) + 1
            o += [f"s_add_u32 s{sf}, s{S_sp}, {d}", f"s_and_b32 s{sf}, s{sf}, 3",
                  f"s_mul_i32 s{sd}, s{sf}, {3 * 16384}", f"s_add_u32 s{sd}, s{sd}, {(d - 1) * 16384}", f"s_add_u32 s{sd}, s{sd}, s{S_U2}",
                  f"s_lshl_b32 s{sf}, s{sf}, 9", f"s_add_u32 s{sf}, s{sf}, s{S_U1}"]
        o += [f"s_lshl_b32 s{S_U3}, s{S_sp}, 9", f"s_add_u32 s{S_U1}, s{S_U1}, s{S_U3}",
              f"s_mul_i32 s{S_U3}, s{S_sp}, {3 * 16384}", f"s_add_u32 s{S_U2}, s{S_U2}, s{S_U3}",
              f"s_add_u32 s{S_U3}, s{S_U2}, 16384", f"s_add_u32 s{S_U4}, s{S_U2}, 32768"]
        n = S.seq(o, n + 1)
        assert n < 4 * pair_end[1], (n, pair_end)
        end_keep = 4 * NG - 1
        for nm, at in [("send1", 4 * pair_end[1]), ("send2", 4 * pair_end[2]), ("send3", 4 * pair_end[3]), ("keepend", end_keep - 2)]:
            x = self.st.stamp(nm)
            if x:
                S.place(It(x), at)
        sent = {}
        for d in (1, 2, 3):
            n = 4 * pair_end[d] + 6
            for b in range(4):
                c0, c1 = acc2(2 * d, b), acc2(2 * d + 1, b)
                n = S.seq([f"v_cvt_pk_bf16_f32 v{c0}, v{c0}, v{c0 + 1}", f"v_cvt_pk_bf16_f32 v{c0 + 1}, v{c0 + 2}, v{c0 + 3}",
                           f"v_cvt_pk_bf16_f32 v{c0 + 2}, v{c1}, v{c1 + 1}", f"v_cvt_pk_bf16_f32 v{c0 + 3}, v{c1 + 2}, v{c1 + 3}",
                           It(f"buffer_store_dwordx4 v[{c0}:{c0 + 3}], v{V_L16}, s[{SRD_P}:{SRD_P + 3}], s{T + 2 * (d - 1)} offen offset:{b * 1024} sc1", "vm", ("S", d))], n)
            sent[d] = n
        fd = opt.get("flag_delay", 64)
        lim = rx_m[0] - 1
        for d in (1, 2, 3):
            x = It(f"buffer_store_dword v{V_T2 + 3}, v{fz}, s[{SRD_FL}:{SRD_FL + 3}], s{T + 2 * (d - 1) + 1} offen offset:{4 * (d - 1)} sc1", "vm", ("F", d), needs=[("vm", ("S", d))])
            S.place(x, min(sent[d] + fd, lim - 3), lim - 1)
        rx_pos = opt.get("rx", [[98, 56], [40, 0], [0, 0]])
        tail = []
        for k in range(3):
            fr = [V_FLG, V_FLG + 1, t2][k]
            ld, chk = self.poll_items(f"LF_rx{k}", f"buffer_load_dword v{fr}, v{fz}, s[{SRD_FL}:{SRD_FL + 3}], s{S_U1} offen offset:{4 * k} sc1", fr)
            rxl = [It(f"buffer_load_dwordx4 v[{RXr(k, b)}:{RXr(k, b) + 3}], v{V_L16}, s[{SRD_P}:{SRD_P + 3}], s{[S_U2, S_U3, S_U4][k]} offen offset:{b * 1024} sc1", "vm", ("RX", k, b)) for b in range(4)]
            a, c = rx_pos[k]
            if a:
                n = S.place(ld, lim - a, lim - 1)
            else:
                tail.insert(0, ld)
            if c:
                assert a > c
                n = S.seq(chk + rxl, max(n + 1, lim - c))
                assert n < lim
            else:
                tail += [chk[0], It(["s_nop 0"] + chk[-1].text)] + rxl
        for x in tail:
            x.scalar = False
            S.g[lim]["V"].append(x)
        pre, segs = S.emit()
        A(pre)
        for s in segs:
            A(s)
        self.over2 = S.over
        for k in range(3):
            f = [j for j, l in enumerate(A.l) if l.startswith(f"buffer_store_dword v{V_T2 + 3}, v{fz},") and f"offset:{4 * k} " in l]
            assert len(f) == 1 and f[0] < A.l.index(f"LF_rx{k}_back:")
        A(self.st.stamp("rxdone"))
        A("s_nop 6")
        aux = opt.get("out_st", "sc1")
        for b in range(4):
            for jl in range(2):
                c, r = acc2(jl, b), Rr(jl, b)
                A([f"v_pk_add_f32 v[{c + j}:{c + j + 1}], v[{c + j}:{c + j + 1}], v[{r + j}:{r + j + 1}]" for j in (0, 2)])
                A(f"buffer_store_dwordx4 v[{c}:{c + 3}], v{vo}, s[{SRD_O}:{SRD_O + 3}], s{S_U0} offen offset:{jl * 64} {aux}")
            if b < 3:
                A(f"s_add_u32 s{S_U0}, s{S_U0}, 4096")

    def gen(self):
        A = self.A
        self.prologue()
        self.gemm1()
        self.transition()
        self.gemm2()
        self.st.dump(A, S_WSP, S_W, V_OWN, SRD_T)
        A("s_endpgm")
        A("LF_lbspin:")
        A(f"s_cmp_gt_u32 s{S_T + 4}, 0x40000")
        A("s_cbranch_scc1 LF_lbok")
        A(self.lb_loads)
        A("s_waitcnt vmcnt(0)")
        A("s_branch LF_lbchk")
        self.emit_spins()
        A("LF_end:")
        A("s_endpgm")
        A.l, pads, size = post.layout(A.l, "LF_main", "LF_pad", "LF_walked", 4)
        assert len(pads) >= 4
        self.size = size
        bad = hazard.check(A.l)
        assert not bad, "\n".join(bad)
        fresh, prev = False, None
        for l in A.l:
            if re.match(r"s_\w+ m0,", l):
                assert not fresh, l
                fresh = True
            elif l.startswith("buffer_load") and l.endswith(" lds"):
                off = int(re.search(r"offset:(\d+)", l).group(1))
                srdn = re.search(r"s\[(\d+):", l).group(1)
                assert fresh == (off == 0), l
                assert off == 0 or prev == (srdn, off - 1024), l
                fresh, prev = False, (srdn, off)
        if self.opt.get("verbose"):
            print("over1", self.over1, "over2", self.over2, "size", self.size, "pub", self.n_pub, "head", self.n_head, "tail", self.n_tail)
            print("slack", self.slack)
        return dict(text=kernel_head(self.name) + A.text(), desc=kernel_desc(self.name, 512, 256), lds=163840, grid=256, block=256, stamps=self.st.names)


def gen_f(name, opt):
    return F(name, opt).gen()
```
